```python
import torch

def _softmax(x, axis=-1):
    return torch.softmax(x, dim=axis)
def _gelu(x):
    return torch.nn.functional.gelu(x, approximate="tanh")
def _silu(x):
    return torch.nn.functional.silu(x)
def _sigmoid(x):
    return torch.sigmoid(x)
def _layernorm(x, axis=-1, eps=1e-5):
    m = x.mean(dim=axis, keepdim=True)
    v = x.var(dim=axis, keepdim=True, unbiased=False)
    return (x - m) / torch.sqrt(v + eps)
def _scatter_add(tgt, idx, src, axis=0):
    return tgt.clone().index_add_(axis, idx, src)
def _segment_sum(src, seg, n):
    out = torch.zeros((n,) + src.shape[1:], dtype=src.dtype)
    return out.index_add_(0, seg, src)
def _pad(x, pw):
    flat = tuple(v for pair in reversed(pw) for v in pair)
    return torch.nn.functional.pad(x, flat)

kernel_name = 'interleave_layers__spectral_fnet__swiglu_ffn__prompt'

def setup_inputs():

    _w = (lambda a: (lambda t: t.to(torch.bfloat16) if t.is_floating_point() else t)(torch.as_tensor(a)))
    def _A_setup():
        B, S, D = 1, 2048, 640
        ns = torch.arange(S)[:, None] * torch.arange(S)[None, :]
        nd = torch.arange(D)[:, None] * torch.arange(D)[None, :]
        Ws_re = torch.cos(-2.0 * torch.pi * ns / S).to(float)
        Ws_im = torch.sin(-2.0 * torch.pi * ns / S).to(float)
        Wd_re = torch.cos(-2.0 * torch.pi * nd / D).to(float)
        Wd_im = torch.sin(-2.0 * torch.pi * nd / D).to(float)
        return {
            "x": _w((lambda *s: torch.randn(*s, dtype=torch.bfloat16) * 0.05)(B, S, D)),
            "dft_seq_re": _w(Ws_re),
            "dft_seq_im": _w(Ws_im),
            "dft_hid_re": _w(Wd_re),
            "dft_hid_im": _w(Wd_im),
        }
    _A_in = _A_setup()

    def _B_setup():
        B, S, D, F = 1, 2048, 640, 1728
        return {
            "x": _w((lambda *s: torch.randn(*s, dtype=torch.bfloat16) * 0.05)(B, S, D)),
            "w_gate": _w((lambda *s: torch.randn(*s, dtype=torch.bfloat16) * 0.4)(D, F)),
            "w_up": _w((lambda *s: torch.randn(*s, dtype=torch.bfloat16) * 0.4)(D, F)),
            "w_down": _w((lambda *s: torch.randn(*s, dtype=torch.bfloat16) * 0.4)(F, D)),
        }
    _B_in = _B_setup()

    return {
        "A_x": _A_in["x"],
        "A_dft_seq_re": _A_in["dft_seq_re"],
        "A_dft_seq_im": _A_in["dft_seq_im"],
        "A_dft_hid_re": _A_in["dft_hid_re"],
        "A_dft_hid_im": _A_in["dft_hid_im"],
        "B_x": _B_in["x"],
        "B_w_gate": _B_in["w_gate"],
        "B_w_up": _B_in["w_up"],
        "B_w_down": _B_in["w_down"],
    }

def reference(A_x, A_dft_seq_re, A_dft_seq_im, A_dft_hid_re, A_dft_hid_im, B_x, B_w_gate, B_w_up, B_w_down):
    def _A_ref(x, dft_seq_re, dft_seq_im, dft_hid_re, dft_hid_im):
        a = torch.einsum("bsd,ed->bse", x, dft_hid_re)
        b = torch.einsum("bsd,ed->bse", x, dft_hid_im)
        y = torch.einsum("ts,bse->bte", dft_seq_re, a) - torch.einsum("ts,bse->bte", dft_seq_im, b)
        return y

    def _B_ref(x, w_gate, w_up, w_down):
        g = _silu(x @ w_gate)
        u = x @ w_up
        return (g * u) @ w_down

    x = A_x
    x = x + _A_ref(_layernorm(x, axis=-1), A_dft_seq_re, A_dft_seq_im, A_dft_hid_re, A_dft_hid_im)
    x = x + _B_ref(_layernorm(x, axis=-1), B_w_gate, B_w_up, B_w_down)
    x = x + _A_ref(_layernorm(x, axis=-1), A_dft_seq_re, A_dft_seq_im, A_dft_hid_re, A_dft_hid_im)
    x = x + _B_ref(_layernorm(x, axis=-1), B_w_gate, B_w_up, B_w_down)
    return x
```

```python
import re

_REG = re.compile(r'(?<![\w.])(-?)(?:abs\()?([vas])(?:(\d+)|\[(\d+):(\d+)\])')
TRANS = ('v_exp_f32', 'v_log_f32', 'v_rcp_f32', 'v_rsq_f32', 'v_sqrt_f32', 'v_sin_f32', 'v_cos_f32')


def regs_of(op):
    op = op.strip()
    out = set()
    if op in ('vcc', 'vcc_lo', 'vcc_hi'):
        return {'vcc'}
    if op in ('exec', 'exec_lo', 'exec_hi'):
        return {'exec'}
    if op == 'm0':
        return {'m0'}
    for m in _REG.finditer(op):
        k = m.group(2)
        if m.group(3) is not None:
            out.add(k + m.group(3))
        else:
            for i in range(int(m.group(4)), int(m.group(5)) + 1):
                out.add(k + str(i))
    return out


class Ins:
    __slots__ = ('text', 'op', 'ops', 'dst', 'src', 'kind', 'tag', 'passes', 'srcC', 'srcAB', 'data', 'dpp')

    def __init__(self, text, tag=None):
        self.text = text
        self.tag = tag
        body = text.split(';')[0].strip()
        parts = body.split(None, 1)
        self.op = op = parts[0]
        rest = parts[1] if len(parts) > 1 else ''
        ops, depth, cur = [], 0, ''
        for ch in rest:
            if ch == '[':
                depth += 1
            if ch == ']':
                depth -= 1
            if ch == ',' and depth == 0:
                ops.append(cur.strip())
                cur = ''
            else:
                cur += ch
        if cur.strip():
            ops.append(cur.strip())
        mods = ''
        if ops:
            sp = ops[-1].split(None, 1)
            ops[-1] = sp[0]
            mods = sp[1] if len(sp) > 1 else ''
        self.ops = ops
        R = [regs_of(o) for o in ops]
        U = lambda l: set().union(*l) if l else set()
        self.passes = 0
        self.srcC = set()
        self.srcAB = set()
        self.data = set()
        self.dpp = ('_dpp' in op)
        ml = mods.split()
        if op.startswith('v_mfma'):
            self.kind = 'mfma'
            self.dst = R[0]
            self.srcAB = R[1] | R[2]
            self.srcC = R[3]
            self.src = self.srcAB | self.srcC
            self.passes = 8 if '32x32' in op else 4
        elif op.startswith('buffer_load') or op.startswith('global_load'):
            self.kind = 'vmem'
            if 'lds' in ml or '_lds_' in op:
                self.dst = set()
                self.src = U(R) | {'m0'}
            else:
                self.dst = R[0]
                self.src = U(R[1:])
        elif op.startswith('buffer_store') or op.startswith('buffer_atomic'):
            self.kind = 'vmem'
            self.dst = R[0] if (op.startswith('buffer_atomic') and 'sc0' in ml) else set()
            self.src = U(R)
            if 'x3' in op or 'x4' in op:
                self.data = R[0]
        elif op.startswith('global_store'):
            self.kind = 'vmem'
            self.dst = set()
            self.src = U(R)
            if 'x3' in op or 'x4' in op:
                self.data = R[1]
        elif op.startswith('ds_'):
            self.kind = 'ds'
            if op.startswith('ds_write'):
                self.dst = set()
                self.src = U(R)
            else:
                self.dst = R[0]
                self.src = U(R[1:])
        elif op.startswith('s_load') or op.startswith('s_mem') or op.startswith('s_buffer_load'):
            self.kind = 'smem'
            self.dst = R[0]
            self.src = U(R[1:])
        elif op.startswith('s_atomic'):
            self.kind = 'smem'
            self.dst = R[0]
            self.src = U(R)
        elif op.startswith('v_'):
            self.kind = 'valu'
            if op.startswith('v_permlane') and 'swap' in op:
                self.dst = R[0] | R[1]
                self.src = R[0] | R[1]
            elif op.startswith('v_cmp'):
                self.dst = R[0]
                self.src = U(R[1:])
            elif '_co_' in op:
                self.dst = R[0] | R[1]
                self.src = U(R[2:])
            elif op == 'v_nop':
                self.dst = set()
                self.src = set()
            else:
                self.dst = R[0]
                self.src = U(R[1:])
                if op.startswith('v_fmac') or op.startswith('v_dot2c') or self.dpp or op.startswith('v_writelane'):
                    self.src = self.src | R[0]
        elif op.startswith('s_'):
            self.kind = 'salu'
            if op.startswith(('s_cmp', 's_cbranch', 's_branch', 's_waitcnt', 's_barrier', 's_nop', 's_endpgm',
                              's_sleep', 's_setprio', 's_bitcmp', 's_setpc')):
                self.dst = set()
                self.src = U(R)
            else:
                self.dst = R[0] if R else set()
                self.src = U(R[1:])
                if 'saveexec' in op:
                    self.dst = self.dst | {'exec'}
                if op.startswith(('s_addk', 's_mulk')):
                    self.src = self.src | R[0]
        else:
            raise ValueError('unknown op ' + text)


class Asm:
    def __init__(self):
        self.items = []

    def I(self, text, tag=None):
        for t in text.split('\n'):
            t = t.strip()
            if t:
                self.items.append(Ins(t, tag))

    def ext(self, lst):
        for x in lst:
            if isinstance(x, str):
                self.I(x)
            else:
                self.items.append(x)

    def raw(self, text):
        self.items.append(('raw', text))

    def label(self, name):
        self.items.append(('label', name))

    def wait_vm(self, tag):
        self.items.append(('wait_vm', tag))

    def wait_ds(self, tag):
        self.items.append(('wait_ds', tag))

    def reset(self):
        self.items.append(('reset',))

    def finalize(self):
        out = []
        hist = []
        vm, lg = [], []

        def emit(ins):
            need = hazard(ins)
            while need > 0:
                n = min(need, 16)
                nop = Ins('s_nop %d' % (n - 1))
                out.append('    ' + nop.text)
                hist.append((nop, n))
                need -= n
            out.append('    ' + ins.text)
            st = 1
            if ins.op == 's_nop':
                st = int(ins.ops[0], 0) + 1
            hist.append((ins, st))
            if len(hist) > 40:
                del hist[:-30]

        def hazard(c):
            need = 0
            dist = 0
            for p, st in reversed(hist):
                if dist >= 20:
                    break
                req = 0
                if p.kind == 'valu':
                    vd = {r for r in p.dst if r[0] in 'va' and r != 'vcc'}
                    sd = p.dst - vd
                    isdot = p.op.startswith('v_dot')
                    if c.kind == 'mfma' and vd & c.src:
                        req = max(req, 3 if isdot else 2)
                    if c.kind == 'valu':
                        if c.dpp and vd & c.src:
                            req = max(req, 2)
                        if c.op.startswith('v_permlane') and vd & c.src:
                            req = max(req, 2)
                        if c.op.startswith(('v_readfirstlane', 'v_readlane')) and vd & c.src:
                            req = max(req, 1)
                        if p.op.split('_e')[0] in TRANS and vd & c.src:
                            req = max(req, 1)
                        if ('sdwa' in p.op or 'op_sel' in p.text) and vd & (c.src | c.dst):
                            req = max(req, 1)
                        if sd & c.src or ('vcc' in sd and (c.op.startswith('v_cndmask') or 'addc' in c.op)):
                            req = max(req, 4 if c.op.startswith(('v_readlane', 'v_writelane')) else 2)
                    if isdot and vd & (c.src | c.dst) and c.kind != 'salu':
                        same = c.op == p.op
                        if not (same and vd == c.dst and not (vd & set().union(*[regs_of(o) for o in c.ops[1:3]]))):
                            req = max(req, 3)
                    if c.kind == 'vmem' and sd & c.src:
                        req = max(req, 5)
                    if c.kind in ('salu', 'smem') and sd & c.src:
                        req = max(req, 2)
                elif p.kind == 'mfma':
                    big = p.passes == 8
                    if c.kind == 'mfma':
                        if p.dst & c.srcAB:
                            req = max(req, 12 if big else 8)
                        if p.dst & c.srcC and not (p.dst == c.srcC and p.passes == c.passes):
                            req = max(req, 10 if big else 6)
                        if p.dst & c.dst and not (p.dst == c.srcC and p.passes == c.passes):
                            req = max(req, 10 if big else 6)
                    elif c.kind in ('valu', 'vmem', 'ds'):
                        if p.dst & (c.src | c.dst):
                            req = max(req, 12 if big else 8)
                        if p.srcC & c.dst:
                            req = max(req, 7 if big else 3)
                elif p.kind == 'salu':
                    if 'm0' in p.dst and c.kind == 'vmem' and 'm0' in c.src:
                        req = max(req, 1)
                elif p.kind == 'vmem':
                    if p.data & c.dst:
                        req = max(req, 2)
                need = max(need, req - dist)
                dist += st
            return need

        def do_wait(nvm, nlg):
            parts = []
            if nvm is not None:
                nvm = min(nvm, 62)
                parts.append('vmcnt(%d)' % nvm)
                del vm[:max(0, len(vm) - nvm)]
            if nlg is not None:
                nlg = min(nlg, 14)
                parts.append('lgkmcnt(%d)' % nlg)
                del lg[:max(0, len(lg) - nlg)]
            if parts:
                emit(Ins('s_waitcnt ' + ' '.join(parts)))

        def needed(q, pred):
            last = -1
            for i, e in enumerate(q):
                if pred(e):
                    last = i
            if last < 0:
                return None
            return len(q) - 1 - last

        for it in self.items:
            if isinstance(it, tuple):
                if it[0] == 'raw':
                    out.append(it[1])
                elif it[0] == 'label':
                    out.append(it[1] + ':')
                elif it[0] == 'reset':
                    vm.clear()
                    lg.clear()
                    hist.clear()
                elif it[0] == 'wait_vm':
                    do_wait(needed(vm, lambda e: e[1] == it[1]), None)
                elif it[0] == 'wait_ds':
                    n = needed(lg, lambda e: e[1] == it[1])
                    if n is not None and any(e[2] for e in lg):
                        n = 0
                    do_wait(None, n)
                continue
            ins = it
            if ins.op == 's_waitcnt':
                m = re.search(r'vmcnt\((\d+)\)', ins.text)
                if m:
                    del vm[:max(0, len(vm) - int(m.group(1)))]
                m = re.search(r'lgkmcnt\((\d+)\)', ins.text)
                if m:
                    n = int(m.group(1))
                    if n == 0 or not any(e[2] for e in lg):
                        del lg[:max(0, len(lg) - n)]
                emit(ins)
                continue
            touch = ins.src | ins.dst
            nvm = needed(vm, lambda e: e[0] & touch)
            nlg = needed(lg, lambda e: e[0] & touch)
            if nlg is not None and any(e[2] for e in lg):
                nlg = 0
            do_wait(nvm, nlg)
            emit(ins)
            if ins.kind == 'vmem':
                vm.append((ins.dst, ins.tag, False))
            elif ins.kind == 'ds':
                lg.append((ins.dst, ins.tag, False))
            elif ins.kind == 'smem':
                lg.append((ins.dst, ins.tag, True))
        return '\n'.join(out) + '\n'


def vr(b, n=1, k='v'):
    return '%s%d' % (k, b) if n == 1 else '%s[%d:%d]' % (k, b, b + n - 1)


def weave(main, fill, start=0, per=1.0):
    out = []
    fi = 0
    acc = 0.0
    for i, m in enumerate(main):
        out.append(m)
        if i >= start:
            acc += per
            while acc >= 1.0 - 1e-9 and fi < len(fill):
                out.append(fill[fi])
                fi += 1
                acc -= 1.0
    out.extend(fill[fi:])
    return out
```

```python
import struct, sys
from asmlib import Asm, Ins, vr, weave

STAMP = '--stamp' in sys.argv

W1P, WDP = 0x0, 0x440000
LB0, LBS = 0x800000, 0x1400000
oG, oXA, oZ, oX1, oH, oST = 0x0, 0x280000, 0x500000, 0x780000, 0xA00000, 0x1100000
DUMP = 0x3800000
STAMPS = 0x4000000
WS_BYTES = 0x10000000
XB = 2048 * 640 * 2
W1B = 640 * 1728 * 2

WS, SA, SB = 's[4:7]', 's[8:11]', 's[12:15]'
sW, sG, sMU, sHB, sJJ, sLB, sLN = 's16', 's17', 's18', 's19', 's20', 's21', 's22'
sT = ['s%d' % i for i in range(24, 48)]
sSTMP = 's[48:49]'


def fl(x):
    return '0x%08x' % struct.unpack('<I', struct.pack('<f', x))[0]


def srd(a, base, lo, size):
    a.I('s_mov_b32 s%d, s%d' % (base, lo))
    a.I('s_and_b32 s%d, s%d, 0xffff' % (base + 1, lo + 1))
    a.I('s_mov_b32 s%d, 0x%x' % (base + 2, size))
    a.I('s_mov_b32 s%d, 0x20000' % (base + 3))


_stamp_n = [0]


def stamp(a, launch, idx, vt=(250, 251, 252)):
    if not STAMP:
        return
    a.I('s_memrealtime %s' % sSTMP)
    a.I('s_lshl_b32 s50, s2, 2')
    a.I('s_add_u32 s50, s50, %s' % sW)
    a.I('s_lshl_b32 s50, s50, 6')
    a.I('s_add_u32 s50, s50, s51')
    a.I('s_add_u32 s50, s50, 0x%x' % (STAMPS + idx * 4))
    a.I('s_waitcnt lgkmcnt(0)')
    a.I('v_mov_b32 v%d, s48' % vt[0])
    a.I('v_mov_b32 v%d, 0' % vt[1])
    a.I('buffer_store_dword v%d, v%d, %s, s50 offen' % (vt[0], vt[1], WS))


def entry(a, name, nwg, layer, launch, ptrs, end):
    a.raw('.globl %s\n.p2align 8\n.type %s,@function' % (name, name))
    a.label(name)
    a.reset()
    a.I('s_cmp_ge_u32 s2, %d' % nwg)
    a.I('s_cbranch_scc1 %s' % end)
    a.I('s_load_dwordx2 s[52:53], s[0:1], 88')
    for i, (b, off, sz) in enumerate(ptrs):
        a.I('s_load_dwordx2 s[%d:%d], s[0:1], %d' % (54 + 2 * i, 55 + 2 * i, off))
    a.I('v_lshrrev_b32 v1, 6, v0')
    a.I('v_and_b32 v0, 63, v0')
    a.I('v_readfirstlane_b32 %s, v1' % sW)
    a.I('s_mov_b32 %s, 0x%x' % (sLB, LB0 + layer * LBS))
    a.I('s_mov_b32 %s, 0x%x' % (sLN, LB0 + (layer + 1) * LBS))
    a.I('s_mov_b32 s51, 0x%x' % (launch * 0x40000))
    a.I('s_and_b32 %s, s2, 1' % sG)
    a.I('s_lshl_b32 %s, %s, 3' % (sG, sG))
    a.I('s_bfe_u32 s3, s2, 0x30003')
    a.I('s_or_b32 %s, %s, s3' % (sG, sG))
    a.I('s_bfe_u32 %s, s2, 0x20001' % sMU)
    a.I('s_lshl_b32 %s, %s, 2' % (sMU, sMU))
    a.I('s_bfe_u32 s3, s2, 0x20006')
    a.I('s_or_b32 %s, %s, s3' % (sMU, sMU))
    a.I('s_bfe_u32 %s, %s, 0x10002' % (sHB, sMU))
    a.I('s_lshr_b32 %s, %s, 3' % (sJJ, sMU))
    a.I('s_lshl_b32 %s, %s, 2' % (sJJ, sJJ))
    a.I('s_or_b32 %s, %s, s3' % (sJJ, sJJ))
    a.I('s_waitcnt lgkmcnt(0)')
    srd(a, 4, 52, WS_BYTES)
    for i, (b, off, sz) in enumerate(ptrs):
        srd(a, b, 54 + 2 * i, sz)


def kdesc(name, vgpr, acc):
    return '''.amdhsa_kernel %s
  .amdhsa_next_free_vgpr %d
  .amdhsa_next_free_sgpr 72
  .amdhsa_accum_offset %d
  .amdhsa_group_segment_fixed_size 0
  .amdhsa_kernarg_size 96
  .amdhsa_user_sgpr_count 2
  .amdhsa_user_sgpr_kernarg_segment_ptr 1
  .amdhsa_system_sgpr_workgroup_id_x 1
  .amdhsa_float_denorm_mode_32 3
.end_amdhsa_kernel
''' % (name, vgpr, acc)


def unpack20(pk, dst):
    o = []
    for i in range(10):
        o.append('v_lshlrev_b32 v%d, 16, v%d' % (dst(2 * i), pk + i))
        o.append('v_and_b32 v%d, 0xffff0000, v%d' % (dst(2 * i + 1), pk + i))
    return o


def xr_addr(a, vA0, vA2, vm, vi, t):
    a.I('v_lshrrev_b32 v%d, 1, v%d' % (t, vm))
    a.I('v_mul_u32_u24 v%d, 640, v%d' % (t, t))
    a.I('v_and_b32 v%d, 1, v%d' % (t + 1, vm))
    a.I('v_and_b32 v%d, 7, v%d' % (vA0, vm))
    a.I('v_xor_b32 v%d, v%d, v%d' % (vA0, vA0, vi))
    a.I('v_lshl_add_u32 v%d, v%d, 4, v%d' % (vA0, vA0, t))
    a.I('v_and_b32 v%d, 6, v%d' % (vA2, vm))
    a.I('v_xor_b32 v%d, v%d, v%d' % (vA2, vA2, vi))
    a.I('v_lshl_add_u32 v%d, v%d, 4, v%d' % (vA2, vA2, t))
    a.I('v_lshl_add_u32 v%d, v%d, 3, v%d' % (vA2, t + 1, vA2))
    a.I('v_add_u32 v%d, 256, v%d' % (vA2, vA2))
    a.I('v_mul_u32_u24 v%d, 384, v%d' % (t + 1, t + 1))
    a.I('v_add_u32 v%d, v%d, v%d' % (vA0, vA0, t + 1))


def tile_xr_addr(a, vA0, vA2, t):
    a.I('v_lshrrev_b32 v%d, 4, v0' % (t + 2))
    a.I('s_lshl_b32 s3, %s, 2' % sJJ)
    a.I('v_add_u32 v%d, s3, v%d' % (t + 2, t + 2))
    a.I('v_and_b32 v%d, 7, v0' % (t + 3))
    xr_addr(a, vA0, vA2, t + 2, t + 3, t)
    a.I('v_bfe_u32 v%d, v0, 3, 1' % t)
    a.I('v_mul_u32_u24 v%d, 10240, v%d' % (t, t))
    a.I('v_add_u32 v%d, v%d, v%d' % (vA0, vA0, t))
    a.I('v_add_u32 v%d, v%d, v%d' % (vA2, vA2, t))


def tile_blk_soff(a, sd, sbase, off):
    a.I('s_lshl_b32 %s, %s, 1' % (sd, sG))
    a.I('s_add_u32 %s, %s, %s' % (sd, sd, sHB))
    a.I('s_lshl_b32 %s, %s, 2' % (sd, sd))
    a.I('s_add_u32 %s, %s, %s' % (sd, sd, sW))
    a.I('s_mul_i32 %s, %s, 20480' % (sd, sd))
    a.I('s_add_u32 %s, %s, %s' % (sd, sd, sbase))
    a.I('s_add_u32 %s, %s, 0x%x' % (sd, sd, off))


def ln_coef(a, vS, vQ, vR, vN, t):
    a.I('v_mul_f32 v%d, %s, v%d' % (vN, fl(-1.0 / 640), vS))
    a.I('v_mul_f32 v%d, v%d, v%d' % (t, vN, vN))
    a.I('v_mul_f32 v%d, %s, v%d' % (vR, fl(1.0 / 640), vQ))
    a.I('v_sub_f32 v%d, v%d, v%d' % (vR, vR, t))
    a.I('v_max_f32 v%d, 0, v%d' % (vR, vR))
    a.I('v_add_f32 v%d, %s, v%d' % (vR, fl(1e-5), vR))
    a.I('v_rsq_f32 v%d, v%d' % (vR, vR))
    a.I('v_mul_f32 v%d, v%d, v%d' % (vN, vN, vR))


class AT:
    F = 2
    ZW, ZR, GA = 10, 11, 12
    T = 13


def atail_setup(a, sOut, ldsb):
    T = AT.T
    a.I('v_and_b32 v%d, 15, v0' % T)
    a.I('v_lshrrev_b32 v%d, 1, v%d' % (T + 1, T))
    a.I('s_lshl_b32 s3, %s, 3' % sW)
    a.I('v_add_u32 v%d, s3, v%d' % (T + 1, T + 1))
    a.I('v_mul_u32_u24 v%d, 81920, v%d' % (AT.GA, T + 1))
    a.I('v_and_b32 v%d, 1, v0' % (T + 2))
    a.I('v_lshl_add_u32 v%d, v%d, 3, v%d' % (AT.GA, T + 2, AT.GA))
    a.I('v_cvt_f32_u32 v%d, v%d' % (T + 3, T + 2))
    a.I('v_mul_f32 v%d, 0.25, v%d' % (T + 3, T + 3) if False else 'v_mul_f32 v%d, %s, v%d' % (T + 3, fl(0.25), T + 3))
    a.I('v_cmp_eq_u32 vcc, 0, v%d' % (T + 1))
    a.I('v_lshlrev_b32 v%d, 5, v%d' % (T + 2, T + 2))
    a.I('v_cndmask_b32 v%d, v%d, v%d, vcc' % (T + 1, T + 1, T + 2))
    a.I('v_cndmask_b32 v%d, v%d, 0, vcc' % (T + 3, T + 3) if False else 'v_cndmask_b32_e64 v%d, v%d, 0, vcc' % (T + 3, T + 3))
    a.I('v_cvt_f32_u32 v%d, v%d' % (T + 1, T + 1))
    a.I('v_mul_f32 v%d, %s, v%d' % (T + 1, fl(1.0 / 64), T + 1))
    a.I('v_bfe_u32 v%d, v0, 4, 1' % (T + 2))
    a.I('v_lshlrev_b32 v%d, 5, v%d' % (T + 2, T + 2))
    a.I('v_lshrrev_b32 v%d, 5, v0' % (T + 4))
    a.I('v_lshl_add_u32 v%d, v%d, 1, v%d' % (T + 2, T + 4, T + 2))
    a.I('v_cvt_f32_u32 v%d, v%d' % (T + 2, T + 2))
    a.I('v_fma_f32 v%d, v%d, v%d, v%d' % (T + 3, T + 1, T + 2, T + 3))
    for ks in range(2):
        for p in range(4):
            for e in range(2):
                j = 2 * p + e
                k = 8 * (j & 3) + 4 * (j >> 2) + ks
                a.I('v_fmamk_f32 v%d, v%d, %s, v%d' % (T + 2 + 2 * e, T + 1, fl(k), T + 3))
            a.I('v_cos_f32 v%d, v%d' % (T + 2, T + 2))
            a.I('v_cos_f32 v%d, v%d' % (T + 4, T + 4))
            a.I('v_cvt_pk_bf16_f32 v%d, v%d, v%d' % (AT.F + 4 * ks + p, T + 2, T + 4))
    a.I('s_lshl_b32 s3, %s, 4' % sW)
    a.I('v_add_u32 v%d, s3, v%d' % (T, T))
    a.I('v_mul_u32_u24 v%d, 168, v%d' % (AT.ZW, T))
    a.I('v_lshrrev_b32 v%d, 4, v0' % T)
    a.I('v_mul_u32_u24 v%d, 40, v%d' % (T + 1, T))
    a.I('v_add_u32 v%d, v%d, v%d' % (AT.ZW, AT.ZW, T + 1))
    a.I('v_and_b32 v%d, 28, v0' % (T + 1))
    a.I('v_lshrrev_b32 v%d, 5, v0' % (T + 2))
    a.I('v_add_u32 v%d, v%d, v%d' % (T + 1, T + 1, T + 2))
    a.I('v_mul_u32_u24 v%d, 168, v%d' % (T + 1, T + 1))
    a.I('v_and_b32 v%d, 3, v0' % (T + 2))
    a.I('v_lshl_add_u32 v%d, v%d, 3, v%d' % (AT.ZR, T + 2, T + 1))
    if ldsb:
        a.I('v_add_u32 v%d, 0x%x, v%d' % (AT.ZW, ldsb, AT.ZW))
        a.I('v_add_u32 v%d, 0x%x, v%d' % (AT.ZR, ldsb, AT.ZR))
    a.I('s_and_b32 s3, %s, 3' % sG)
    a.I('v_xor_b32 v%d, s3, v%d' % (T, T))
    a.I('v_lshl_add_u32 v%d, v%d, 4, v%d' % (AT.GA, T, AT.GA))
    a.I('s_lshl_b32 s3, %s, 4' % sHB)
    a.I('s_add_u32 s3, s3, %s' % sG)
    a.I('s_mul_i32 s3, s3, 2560')
    a.I('s_add_u32 s3, s3, %s' % sOut)
    a.I('s_mul_i32 %s, %s, 5' % (sT[5], sJJ))
    for t in range(5):
        a.I('s_add_u32 %s, %s, %d' % (sT[t], sT[5], t))
        a.I('s_bfe_u32 %s, %s, 0x10002' % (sT[6], sT[t]))
        a.I('s_xor_b32 %s, %s, %s' % (sT[t], sT[t], sT[6]))
        a.I('s_lshl_b32 %s, %s, 6' % (sT[t], sT[t]))
        a.I('s_add_u32 %s, %s, s3' % (sT[t], sT[t]))


def atail_main(a, X, vS, vQ, W):
    T = AT.T
    ln_coef(a, vS, vQ, T, T + 1, T + 2)
    for n in range(5):
        for i in range(4):
            a.I('v_fma_f32 v%d, v%d, v%d, v%d' % (X + 4 * n + i, X + 4 * n + i, T, T + 1))
        a.I('v_cvt_pk_bf16_f32 v%d, v%d, v%d' % (W + 2 * n, X + 4 * n, X + 4 * n + 1))
        a.I('v_cvt_pk_bf16_f32 v%d, v%d, v%d' % (W + 2 * n + 1, X + 4 * n + 2, X + 4 * n + 3))
        a.I('ds_write_b64 v%d, %s offset:%d' % (AT.ZW, vr(W + 2 * n, 2), 8 * n))
    a.I('s_waitcnt lgkmcnt(0)')
    a.I('s_barrier')
    for t in range(5):
        for ks in range(2):
            for rd in range(2):
                a.I('ds_read_b64_tr_b16 %s, v%d offset:%d' % (vr(W + 8 * t + 4 * ks + 2 * rd, 2), AT.ZR,
                                                           (32 * ks + 2 * rd) * 168 + 32 * t))
    D = W + 40
    for t in range(5):
        a.I('v_mfma_f32_16x16x32_bf16 %s, %s, %s, 0' % (vr(D + 4 * t, 4), vr(W + 8 * t, 4), vr(AT.F, 4)))
        a.I('v_mfma_f32_16x16x32_bf16 %s, %s, %s, %s' % (vr(D + 4 * t, 4), vr(W + 8 * t + 4, 4), vr(AT.F + 4, 4), vr(D + 4 * t, 4)))
    for t in range(5):
        a.I('v_cvt_pk_bf16_f32 v%d, v%d, v%d' % (X + 2 * t, D + 4 * t, D + 4 * t + 1))
        a.I('v_cvt_pk_bf16_f32 v%d, v%d, v%d' % (X + 2 * t + 1, D + 4 * t + 2, D + 4 * t + 3))
        a.I('buffer_store_dwordx2 %s, v%d, %s, %s offen' % (vr(X + 2 * t, 2), AT.GA, WS, sT[t]))


def row_nat_soff(a, sd):
    a.I('s_lshl_b32 %s, %s, 4' % (sd, sHB))
    a.I('s_add_u32 %s, %s, %s' % (sd, sd, sG))
    a.I('s_lshr_b32 s3, %s, 1' % sW)
    a.I('s_lshl_b32 s3, s3, 5')
    a.I('s_add_u32 %s, %s, s3' % (sd, sd))
    a.I('s_and_b32 s3, %s, 1' % sW)
    a.I('s_lshl_b32 s3, s3, 10')
    a.I('s_add_u32 %s, %s, s3' % (sd, sd))
    a.I('s_mul_i32 %s, %s, 1280' % (sd, sd))


def nat_lane_off(a, vd, t):
    a.I('v_and_b32 v%d, 15, v0' % vd)
    a.I('v_mul_u32_u24 v%d, 81920, v%d' % (vd, vd))
    a.I('v_lshrrev_b32 v%d, 4, v0' % t)
    a.I('v_mul_u32_u24 v%d, 40, v%d' % (t, t))
    a.I('v_add_u32 v%d, v%d, v%d' % (vd, vd, t))


def k_prep(a):
    entry(a, 'prep_kernel', 634, 0, 0, [(8, 0, XB)], 'prep_end')
    a.I('s_cmp_ge_u32 s2, 256')
    a.I('s_cbranch_scc1 prep_w')
    stamp(a, 0, 0, (126, 127, 0))
    RW = 48
    PK, X = 18, 28
    row_nat_soff(a, sT[8])
    a.I('s_add_u32 %s, %s, %d' % (sT[9], sT[8], 512 * 1280))
    a.I('v_lshrrev_b32 v1, 3, v0')
    a.I('v_mul_u32_u24 v1, 81920, v1')
    a.I('v_and_b32 v2, 7, v0')
    a.I('v_lshl_add_u32 v1, v2, 4, v1')
    for st in range(2):
        for i in range(10):
            a.I('buffer_load_dwordx4 %s, v1, %s, %s offen offset:%d' % (vr(RW + 40 * st + 4 * i, 4), SA, sT[8 + st], 128 * i))
    nat_lane_off(a, 1, 2)
    a.I('s_mul_i32 s3, %s, 160' % sJJ)
    a.I('s_add_u32 %s, %s, s3' % (sT[8], sT[8]))
    a.I('buffer_load_dwordx4 %s, v1, %s, %s offen' % (vr(PK, 4), SA, sT[8]))
    a.I('buffer_load_dwordx4 %s, v1, %s, %s offen offset:16' % (vr(PK + 4, 4), SA, sT[8]))
    a.I('buffer_load_dwordx2 %s, v1, %s, %s offen offset:32' % (vr(PK + 8, 2), SA, sT[8]))
    atail_setup(a, sLB, 0)
    tile_xr_addr(a, X, X + 1, X + 2)
    tile_blk_soff(a, sT[8], sLB, oXA)
    S = X + 8
    a.I('v_mov_b32 v%d, 0x3f803f80' % (S + 4))
    for i in range(4):
        a.I('v_mov_b32 v%d, 0' % (S + i))
    for i in range(40):
        for st in range(2):
            a.I('v_dot2c_f32_bf16 v%d, v%d, v%d' % (S + 2 * st, RW + 40 * st + i, S + 4))
            a.I('v_dot2c_f32_bf16 v%d, v%d, v%d' % (S + 2 * st + 1, RW + 40 * st + i, RW + 40 * st + i))
    a.I('buffer_store_dwordx4 %s, v%d, %s, %s offen' % (vr(PK, 4), X, WS, sT[8]))
    a.I('buffer_store_dwordx4 %s, v%d, %s, %s offen offset:128' % (vr(PK + 4, 4), X, WS, sT[8]))
    a.I('buffer_store_dwordx2 %s, v%d, %s, %s offen' % (vr(PK + 8, 2), X + 1, WS, sT[8]))
    for m in ('quad_perm:[1,0,3,2]', 'quad_perm:[2,3,0,1]', 'row_half_mirror'):
        for i in range(4):
            a.I('v_add_f32_dpp v%d, v%d, v%d %s row_mask:0xf bank_mask:0xf' % (S + i, S + i, S + i, m))
    a.I('v_and_b32 v1, 1, v0')
    a.I('v_cmp_eq_u32 vcc, 1, v1')
    a.I('v_and_b32 v1, 7, v0')
    a.I('v_bfe_u32 v%d, v0, 3, 1' % (S + 4))
    a.I('v_lshl_add_u32 v1, v1, 3, v%d' % (S + 4))
    a.I('v_lshlrev_b32 v1, 2, v1')
    a.I('v_cndmask_b32 v%d, v%d, v%d, vcc' % (S, S, S + 2))
    a.I('v_cndmask_b32 v%d, v%d, v%d, vcc' % (S + 1, S + 1, S + 3))
    a.I('ds_bpermute_b32 v%d, v1, v%d' % (RW + 70, S))
    a.I('ds_bpermute_b32 v%d, v1, v%d' % (RW + 71, S + 1))
    a.I('s_waitcnt lgkmcnt(0)')
    a.ext(unpack20(PK, lambda i: X + i))
    atail_main(a, X, RW + 70, RW + 71, RW)
    if STAMP:
        a.I('s_waitcnt vmcnt(0)')
    stamp(a, 0, 1, (126, 127, 0))
    a.I('s_endpgm')

    a.label('prep_w')
    a.reset()
    stamp(a, 0, 0, (126, 127, 0))
    a.I('s_load_dwordx4 s[56:59], s[0:1], 48')
    a.I('s_load_dwordx2 s[60:61], s[0:1], 64')
    a.I('s_cmp_ge_u32 s2, 526')
    a.I('s_cbranch_scc1 prep_wd')
    a.I('s_sub_u32 %s, s2, 256' % sT[0])
    a.I('s_mul_i32 %s, %s, 205' % (sT[1], sT[0]))
    a.I('s_lshr_b32 %s, %s, 11' % (sT[1], sT[1]))
    a.I('s_mul_i32 s3, %s, 10' % sT[1])
    a.I('s_sub_u32 %s, %s, s3' % (sT[0], sT[0]))
    a.I('s_lshl_b32 %s, %s, 2' % (sT[0], sT[0]))
    a.I('s_add_u32 %s, %s, %s' % (sT[0], sT[0], sW))
    a.I('v_lshrrev_b32 v1, 3, v0')
    a.I('v_and_b32 v2, 7, v0')
    a.I('v_lshlrev_b32 v2, 4, v2')
    a.I('v_lshrrev_b32 v3, 2, v1')
    for h in range(2):
        a.I('s_lshl_b32 %s, %s, 1' % (sT[2], sT[0]))
        a.I('s_add_u32 %s, %s, %d' % (sT[2], sT[2], h))
        a.I('s_mul_i32 %s, %s, 205' % (sT[3], sT[2]))
        a.I('s_lshr_b32 %s, %s, 10' % (sT[3], sT[3]))
        a.I('s_mul_i32 s3, %s, 5' % sT[3])
        a.I('s_sub_u32 %s, %s, s3' % (sT[3], sT[2]))
        a.I('s_lshl_b32 %s, %s, 3' % (sT[2], sT[2]))
        a.I('s_cmp_ge_u32 %s, 3' % sT[3])
        a.I('s_cselect_b32 s3, 4, 0')
        a.I('s_sub_u32 %s, %s, s3' % (sT[2], sT[2]))
        a.I('s_cmp_eq_u32 %s, 2' % sT[3])
        a.I('s_cselect_b32 s3, 16, 0')
        a.I('v_mad_u32_u24 v%d, v3, s3, v1' % (4 + h))
        a.I('v_add_u32 v%d, %s, v%d' % (4 + h, sT[2], 4 + h))
        a.I('v_mul_u32_u24 v%d, 3456, v%d' % (4 + h, 4 + h))
        a.I('v_add_u32 v%d, v%d, v2' % (4 + h, 4 + h))
    a.I('s_lshl_b32 %s, %s, 7' % (sT[4], sT[1]))
    a.I('s_lshl_b32 %s, %s, 12' % (sT[5], sW))
    a.I('s_waitcnt lgkmcnt(0)')
    srd(a, 8, 56, W1B)
    srd(a, 12, 58, W1B)
    for mat in range(2):
        for h in range(2):
            a.I('s_add_u32 m0, %s, %d' % (sT[5], mat * 2048 + h * 1024))
            a.I('buffer_load_dwordx4 v%d, %s, %s offen lds' % (4 + h, (SA, SB)[mat], sT[4]), tag='d')
    a.I('v_bfe_u32 v1, v0, 4, 1')
    a.I('v_lshlrev_b32 v1, 11, v1')
    a.I('v_lshrrev_b32 v2, 5, v0')
    a.I('v_lshl_add_u32 v1, v2, 10, v1')
    a.I('v_bfe_u32 v2, v0, 2, 2')
    a.I('v_lshl_add_u32 v1, v2, 7, v1')
    a.I('v_and_b32 v2, 1, v0')
    a.I('v_lshl_add_u32 v1, v2, 4, v1')
    a.I('v_bfe_u32 v2, v0, 1, 1')
    a.I('v_lshl_add_u32 v1, v2, 3, v1')
    a.I('v_add_u32 v1, %s, v1' % sT[5])
    a.I('v_lshlrev_b32 v2, 4, v0')
    a.I('s_mul_i32 %s, %s, %d' % (sT[1], sT[1], 4 * 40960))
    a.I('s_lshl_b32 %s, %s, 10' % (sT[0], sT[0]))
    a.I('s_add_u32 %s, %s, %s' % (sT[0], sT[0], sT[1]))
    a.wait_vm('d')
    for ft in range(4):
        for rd in range(2):
            a.I('ds_read_b64_tr_b16 %s, v1 offset:%d' % (vr(8 + 4 * ft + 2 * rd, 2), rd * 512 + ft * 32))
    for ft in range(4):
        a.I('s_add_u32 %s, %s, 0x%x' % (sT[1], sT[0], W1P + ft * 40960))
        a.I('buffer_store_dwordx4 %s, v2, %s, %s offen sc1' % (vr(8 + 4 * ft, 4), WS, sT[1]))
    if STAMP:
        a.I('s_waitcnt vmcnt(0)')
    stamp(a, 0, 1, (126, 127, 0))
    a.I('s_endpgm')

    a.label('prep_wd')
    a.reset()
    a.I('s_sub_u32 %s, s2, 526' % sT[0])
    a.I('s_and_b32 %s, %s, 1' % (sT[1], sT[0]))
    a.I('s_lshr_b32 %s, %s, 1' % (sT[0], sT[0]))
    a.I('s_mul_i32 %s, %s, 40960' % (sT[2], sT[0]))
    a.I('s_mul_i32 s3, %s, 640' % sT[1])
    a.I('s_add_u32 %s, %s, s3' % (sT[2], sT[2]))
    a.I('s_mul_i32 %s, %s, 320' % (sT[3], sW))
    a.I('v_add_u32 v1, %s, v0' % sT[3])
    a.I('s_lshl_b32 %s, %s, 4' % (sT[3], sT[3]))
    a.I('s_waitcnt lgkmcnt(0)')
    srd(a, 12, 60, W1B)
    for it in range(5):
        a.I('v_add_u32 v2, %d, v1' % (64 * it))
        a.I('v_mul_u32_u24 v3, 1639, v2')
        a.I('v_lshrrev_b32 v3, 16, v3')
        a.I('v_mul_u32_u24 v3, 640, v3')
        a.I('v_lshl_add_u32 v3, v2, 4, v3')
        a.I('s_add_u32 m0, %s, %d' % (sT[3], it * 1024))
        a.I('buffer_load_dwordx4 v3, %s, %s offen lds' % (SB, sT[2]), tag='d')
    a.I('v_lshrrev_b32 v1, 4, v0')
    a.I('v_bfe_u32 v2, v0, 2, 2')
    a.I('v_lshl_add_u32 v1, v1, 3, v2')
    a.I('v_mul_u32_u24 v1, 640, v1')
    a.I('v_and_b32 v2, 3, v0')
    a.I('v_mul_u32_u24 v2, 40, v2')
    a.I('s_mul_i32 s3, %s, 160' % sW)
    a.I('v_add3_u32 v1, v1, v2, s3')
    a.I('v_lshrrev_b32 v2, 5, v0')
    a.I('v_mul_u32_u24 v2, 2560, v2')
    a.I('v_and_b32 v3, 31, v0')
    a.I('v_lshl_add_u32 v2, v3, 4, v2')
    a.I('s_lshl_b32 %s, %s, 2' % (sT[1], sT[1]))
    a.I('s_add_u32 %s, %s, %s' % (sT[1], sT[1], sW))
    a.I('s_mul_i32 %s, %s, 276480' % (sT[1], sT[1]))
    a.I('s_mul_i32 %s, %s, 5120' % (sT[0], sT[0]))
    a.I('s_add_u32 %s, %s, %s' % (sT[0], sT[0], sT[1]))
    a.I('s_add_u32 %s, %s, 0x%x' % (sT[0], sT[0], WDP))
    a.wait_vm('d')
    a.I('s_barrier')
    for n in range(5):
        for rd in range(2):
            a.I('ds_read_b64_tr_b16 %s, v1 offset:%d' % (vr(8 + 4 * n + 2 * rd, 2), rd * 2560 + n * 8))
    for n in range(5):
        a.I('buffer_store_dwordx4 %s, v2, %s, %s offen offset:%d sc1' % (vr(8 + 4 * n, 4), WS, sT[0], n * 512))
    if STAMP:
        a.I('s_waitcnt vmcnt(0)')
    stamp(a, 0, 1, (126, 127, 0))
    a.label('prep_end')
    a.I('s_endpgm')


def k_ka(a):
    entry(a, 'ka_kernel', 256, 1, 4, [], 'ka_end')
    stamp(a, 4, 0, (126, 127, 0))
    PK, X, RW = 18, 28, 48
    tile_xr_addr(a, X, X + 1, X + 2)
    tile_blk_soff(a, sT[8], sLB, oXA)
    a.I('buffer_load_dwordx4 %s, v%d, %s, %s offen' % (vr(PK, 4), X, WS, sT[8]))
    a.I('buffer_load_dwordx4 %s, v%d, %s, %s offen offset:128' % (vr(PK + 4, 4), X, WS, sT[8]))
    a.I('buffer_load_dwordx2 %s, v%d, %s, %s offen' % (vr(PK + 8, 2), X + 1, WS, sT[8]))
    stats_soff(a, sT[9], sLB)
    a.I('v_and_b32 v1, 15, v0')
    a.I('v_lshlrev_b32 v1, 3, v1')
    a.I('v_lshrrev_b32 v2, 4, v0')
    a.I('v_lshl_add_u32 v1, v2, 8, v1')
    a.I('buffer_load_dwordx2 %s, v1, %s, %s offen' % (vr(RW + 70, 2), WS, sT[9]))
    a.I('buffer_load_dwordx2 %s, v1, %s, %s offen offset:128' % (vr(RW + 72, 2), WS, sT[9]))
    atail_setup(a, sLB, 0)
    a.I('v_add_f32 v%d, v%d, v%d' % (RW + 70, RW + 70, RW + 72))
    a.I('v_add_f32 v%d, v%d, v%d' % (RW + 71, RW + 71, RW + 73))
    quad_reduce(a, RW + 70, RW + 71, RW + 72)
    a.ext(unpack20(PK, lambda i: X + i))
    atail_main(a, X, RW + 70, RW + 71, RW)
    if STAMP:
        a.I('s_waitcnt vmcnt(0)')
    stamp(a, 4, 1, (126, 127, 0))
    a.label('ka_end')
    a.I('s_endpgm')


def stats_soff(a, sd, sbase):
    a.I('s_lshl_b32 %s, %s, 1' % (sd, sG))
    a.I('s_add_u32 %s, %s, %s' % (sd, sd, sHB))
    a.I('s_lshl_b32 %s, %s, 2' % (sd, sd))
    a.I('s_add_u32 %s, %s, %s' % (sd, sd, sW))
    a.I('s_lshl_b32 %s, %s, 10' % (sd, sd))
    a.I('s_add_u32 %s, %s, %s' % (sd, sd, sbase))
    a.I('s_add_u32 %s, %s, 0x%x' % (sd, sd, oST))


def quad_reduce(a, r0, r1, t):
    for op in ('v_permlane16_swap_b32', 'v_permlane32_swap_b32'):
        a.I('v_mov_b32 v%d, v%d' % (t, r0))
        a.I('v_mov_b32 v%d, v%d' % (t + 1, r1))
        a.I('%s v%d, v%d' % (op, r0, t))
        a.I('%s v%d, v%d' % (op, r1, t + 1))
        a.I('v_add_f32 v%d, v%d, v%d' % (r0, r0, t))
        a.I('v_add_f32 v%d, v%d, v%d' % (r1, r1, t + 1))


L_G, L_V, L_X, L_Z = 0, 81920, 106496, 116736
KB_LDS = 126976


def kb_body(a, launch):
    FS, TA, TB, AP, AM = 16, 24, 88, 136, 152
    WA, WD = 168, 208
    vRS = (1, 2)
    vVW = (3, 4)
    vVR = (5, 6, 7, 8)
    vA0, vA2 = 9, 10
    vZS = (11, 12, 13)
    vL16 = 14
    T = 248
    stamp(a, launch, 0)
    a.I('s_lshr_b32 %s, %s, 2' % (sT[0], sMU))
    a.I('s_lshl_b32 %s, %s, 2' % (sT[1], sG))
    a.I('s_add_u32 %s, %s, %s' % (sT[1], sT[1], sT[0]))
    a.I('s_and_b32 %s, %s, 3' % (sT[2], sMU))
    a.I('s_and_b32 s3, %s, 1' % sT[0])
    a.I('s_lshl_b32 s3, s3, 5')
    a.I('s_lshr_b32 %s, %s, 1' % (sT[0], sT[0]))
    a.I('s_lshl_b32 %s, %s, 4' % (sT[0], sT[0]))
    a.I('s_add_u32 %s, %s, s3' % (sT[0], sT[0]))
    a.I('s_add_u32 %s, %s, %s' % (sT[0], sT[0], sG))
    a.I('s_sub_u32 s3, 64, %s' % sT[0])
    a.I('s_min_u32 s3, s3, %s' % sT[0])
    a.I('s_and_b32 s3, s3, 31')
    a.I('s_mul_i32 s3, s3, 81920')
    a.I('s_add_u32 s3, s3, %s' % sLB)
    a.I('v_lshlrev_b32 v%d, 4, v0' % vL16)
    a.I('v_add_u32 v%d, s3, v%d' % (T, vL16))
    a.I('s_mul_i32 %s, %s, 10240' % (sT[3], sW))
    a.I('s_lshl_b32 %s, %s, 2' % (sT[4], sT[1]))
    a.I('s_add_u32 %s, %s, %s' % (sT[4], sT[4], sT[2]))
    a.I('s_mul_i32 %s, %s, 10240' % (sT[4], sT[4]))
    a.I('s_add_u32 %s, %s, %s' % (sT[4], sT[4], sLB))
    a.I('s_add_u32 s3, %s, 0x%x' % (sT[4], oXA - L_X))
    a.I('v_add_u32 v%d, s3, v%d' % (T + 1, vL16))
    a.I('s_mul_i32 %s, %s, 2560' % (sT[5], sW))

    def gdma(hf):
        for i in range(10):
            if i % 4 == 0:
                a.I('s_add_u32 m0, %s, %d' % (sT[3], hf * 40960 + i * 1024))
            a.I('buffer_load_dwordx4 v%d, %s, m0 offen offset:%d lds' % (T, WS, (i % 4) * 1024), tag='g%d' % hf)
    gdma(0)
    a.I('s_add_u32 m0, %s, %d' % (sT[5], L_X))
    a.I('buffer_load_dwordx4 v%d, %s, m0 offen lds' % (T + 1, WS), tag='g0')
    a.I('buffer_load_dwordx4 v%d, %s, m0 offen offset:1024 lds' % (T + 1, WS), tag='g0')
    a.I('s_mov_b32 exec_hi, 0')
    a.I('buffer_load_dwordx4 v%d, %s, m0 offen offset:2048 lds' % (T + 1, WS), tag='g0')
    a.I('s_mov_b32 exec_hi, -1')
    gdma(1)

    a.I('s_cmp_lt_u32 %s, 32' % sT[0])
    a.I('s_cselect_b32 %s, %s, %s' % (sT[6], fl(-0.25), '0'))
    a.I('s_cmp_gt_u32 %s, 32' % sT[0])
    a.I('s_cselect_b32 %s, %s, %s' % (sT[6], fl(0.25), sT[6]))
    a.I('s_cmp_eq_u32 %s, 0' % sT[0])
    a.I('s_cselect_b32 %s, 0xffff, -1' % sT[7])
    a.I('s_cmp_eq_u32 %s, 32' % sT[0])
    a.I('s_cselect_b32 %s, 0xffff0000, %s' % (sT[7], sT[7]))
    a.I('s_lshl_b32 s3, %s, 9' % sT[2])
    a.I('s_add_u32 s3, s3, %s' % sT[0])
    a.I('v_bfe_u32 v%d, v0, 1, 3' % T)
    a.I('v_lshl_add_u32 v%d, v%d, 6, s3' % (T, T))
    a.I('v_cvt_f32_u32 v%d, v%d' % (T, T))
    a.I('v_mul_f32 v%d, %s, v%d' % (T, fl(1.0 / 2048), T))
    a.I('v_lshrrev_b32 v%d, 4, v0' % (T + 1))
    a.I('v_cvt_f32_u32 v%d, v%d' % (T + 5, T + 1))
    a.I('v_add_f32 v%d, v%d, v%d' % (T + 1, T + 5, T + 5))
    a.I('v_and_b32 v%d, 1, v0' % (T + 2))
    a.I('v_cvt_f32_u32 v%d, v%d' % (T + 2, T + 2))
    a.I('v_mul_f32 v%d, %s, v%d' % (T + 2, fl(0.25), T + 2))
    a.I('v_fma_f32 v%d, v%d, v%d, v%d' % (T + 1, T, T + 1, T + 2))
    for ks in range(2):
        for p in range(4):
            k = 16 * ks + 8 * (p >> 1) + (p & 1)
            a.I('v_fmamk_f32 v%d, v%d, %s, v%d' % (T + 2, T, fl(k), T + 1))
            a.I('v_add_f32 v%d, %s, v%d' % (T + 3, sT[6], T + 2))
            a.I('v_cos_f32 v%d, v%d' % (T + 2, T + 2))
            a.I('v_cos_f32 v%d, v%d' % (T + 3, T + 3))
            a.I('v_cvt_pk_bf16_f32 v%d, v%d, v%d' % (T + 2, T + 2, T + 3))
            a.I('v_and_b32 v%d, %s, v%d' % (FS + 4 * ks + p, sT[7], T + 2))
    a.I('v_lshrrev_b32 v%d, 3, v0' % T)
    a.I('v_mul_u32_u24 v%d, 2560, v%d' % (T + 1, T))
    a.I('v_bfe_u32 v%d, v0, 2, 1' % (T + 2))
    a.I('v_lshl_add_u32 v%d, v%d, 3, v%d' % (T + 1, T + 2, T + 1))
    a.I('v_and_b32 v%d, 3, v0' % (T + 2))
    a.I('v_lshl_add_u32 v%d, v%d, 7, v%d' % (T + 1, T + 2, T + 1))
    a.I('v_and_b32 v%d, 3, v%d' % (T, T))
    a.I('v_and_b32 v%d, 2, v0' % (T + 2))
    a.I('v_lshl_or_b32 v%d, v%d, 1, v%d' % (T, T + 2, T))
    a.I('s_lshl_b32 s3, %s, 1' % sW)
    a.I('v_xor_b32 v%d, s3, v%d' % (T, T))
    a.I('v_lshl_add_u32 v%d, v%d, 4, v%d' % (vRS[0], T, T + 1))
    a.I('v_xor_b32 v%d, 16, v%d' % (vRS[1], vRS[0]))
    a.I('v_and_b32 v%d, 15, v0' % T)
    a.I('v_cvt_f32_u32 v%d, v%d' % (T, T))
    a.I('v_mul_f32 v%d, %s, v%d' % (T, fl(1.0 / 640), T))
    a.I('s_lshl_b32 s3, %s, 3' % sW)
    a.I('v_cvt_f32_u32 v%d, s3' % (T + 1))
    a.I('v_fmamk_f32 v%d, v%d, %s, v%d' % (T + 1, T + 5, fl(32), T + 1))
    a.I('v_mul_f32 v%d, v%d, v%d' % (T + 1, T, T + 1))
    for ib in range(8):
        C, Sn = TA + 8 * ib, TA + 8 * ib + 4
        for p in range(2):
            a.I('v_fmamk_f32 v%d, v%d, %s, v%d' % (T + 2, T, fl(256 * p + ib), T + 1))
            a.I('v_fmamk_f32 v%d, v%d, %s, v%d' % (T + 3, T, fl(256 * p + 128 + ib), T + 1))
            a.I('v_cos_f32 v%d, v%d' % (C + p, T + 2))
            a.I('v_cos_f32 v%d, v%d' % (T + 4, T + 3))
            a.I('v_sin_f32 v%d, v%d' % (T + 2, T + 2))
            a.I('v_sin_f32 v%d, v%d' % (T + 3, T + 3))
            a.I('v_cvt_pk_bf16_f32 v%d, v%d, v%d' % (C + p, C + p, T + 4))
            a.I('v_cvt_pk_bf16_f32 v%d, v%d, v%d' % (Sn + p, T + 2, T + 3))
        a.I('v_fmamk_f32 v%d, v%d, %s, v%d' % (T + 2, T, fl(512 + ib), T + 1))
        a.I('v_mov_b32 v%d, 0' % (C + 3))
        a.I('v_cos_f32 v%d, v%d' % (T + 3, T + 2))
        a.I('v_sin_f32 v%d, v%d' % (T + 2, T + 2))
        a.I('v_mov_b32 v%d, 0' % (Sn + 3))
        a.I('v_cvt_pk_bf16_f32 v%d, v%d, 0' % (C + 2, T + 3))
        a.I('v_cvt_pk_bf16_f32 v%d, v%d, 0' % (Sn + 2, T + 2))
    a.I('v_lshrrev_b32 v%d, 5, v0' % (T + 5))
    a.I('v_lshlrev_b32 v%d, 3, v%d' % (T + 5, T + 5))
    a.I('v_cvt_f32_u32 v%d, v%d' % (T + 5, T + 5))
    for mi in range(2):
        a.I('v_and_b32 v%d, 31, v0' % T)
        if mi:
            a.I('v_add_u32 v%d, 1, v%d' % (T, T))
        a.I('v_cvt_f32_u32 v%d, v%d' % (T, T))
        a.I('v_mul_f32 v%d, %s, v%d' % (T, fl(1.0 / 32), T))
        a.I('v_mul_f32 v%d, v%d, v%d' % (T + 1, T, T + 5))
        for wh in range(2):
            for p in range(4):
                c, s, ng = TB + 24 * mi + 4 * wh + p, TB + 24 * mi + 8 + 4 * wh + p, TB + 24 * mi + 16 + 4 * wh + p
                a.I('v_fmamk_f32 v%d, v%d, %s, v%d' % (T + 2, T, fl(16 * wh + 2 * p), T + 1))
                a.I('v_add_f32 v%d, v%d, v%d' % (T + 3, T + 2, T))
                a.I('v_cos_f32 v%d, v%d' % (c, T + 2))
                a.I('v_cos_f32 v%d, v%d' % (T + 4, T + 3))
                a.I('v_sin_f32 v%d, v%d' % (T + 2, T + 2))
                a.I('v_sin_f32 v%d, v%d' % (T + 3, T + 3))
                a.I('v_cvt_pk_bf16_f32 v%d, v%d, v%d' % (c, c, T + 4))
                a.I('v_cvt_pk_bf16_f32 v%d, v%d, v%d' % (s, T + 2, T + 3))
                a.I('v_xor_b32 v%d, 0x80008000, v%d' % (ng, c if mi else s))
    a.I('v_bfe_u32 v%d, v0, 1, 3' % T)
    a.I('v_lshrrev_b32 v%d, 4, v0' % (T + 1))
    a.I('v_mul_u32_u24 v%d, 3, v%d' % (T + 2, T))
    a.I('v_add_u32 v%d, v%d, v%d' % (T + 2, T + 2, T + 1))
    a.I('v_lshlrev_b32 v%d, 9, v%d' % (T + 2, T + 2))
    a.I('v_and_b32 v%d, 3, v%d' % (T, T))
    a.I('v_lshlrev_b32 v%d, 1, v%d' % (T + 1, T + 1))
    a.I('v_xor_b32 v%d, v%d, v%d' % (T, T, T + 1))
    a.I('v_and_b32 v%d, 1, v0' % (T + 1))
    a.I('v_lshl_or_b32 v%d, v%d, 2, %s' % (T + 1, T + 1, sW))
    a.I('v_xor_b32 v%d, v%d, v%d' % (T, T, T + 1))
    a.I('v_lshl_add_u32 v%d, v%d, 4, v%d' % (T, T, T + 2))
    a.I('v_add_u32 v%d, 0x%x, v%d' % (vVW[0], L_V, T))
    a.I('v_xor_b32 v%d, 16, v%d' % (vVW[1], vVW[0]))
    a.I('v_bfe_u32 v%d, v0, 2, 1' % T)
    a.I('s_lshl_b32 s3, %s, 1' % sW)
    a.I('v_add_u32 v%d, s3, v%d' % (T, T))
    a.I('v_bfe_u32 v%d, v0, 3, 2' % (T + 1))
    a.I('v_cmp_eq_u32 vcc, 3, v%d' % (T + 1))
    a.I('v_and_b32 v%d, 3, v0' % (T + 2))
    a.I('v_cndmask_b32_e64 v%d, v%d, 0, vcc' % (T + 1, T + 1))
    a.I('v_lshl_add_u32 v%d, v%d, 2, v%d' % (T + 1, T + 1, T + 2))
    a.I('v_mad_u32_u24 v%d, v%d, 12, v%d' % (T + 2, T, T + 1))
    a.I('v_lshlrev_b32 v%d, 7, v%d' % (T + 2, T + 2))
    a.I('v_lshrrev_b32 v%d, 1, v%d' % (T + 1, T + 1))
    a.I('v_and_b32 v%d, 3, v%d' % (T, T))
    a.I('v_xor_b32 v%d, v%d, v%d' % (T, T, T + 1))
    a.I('v_lshrrev_b32 v%d, 5, v0' % (T + 1))
    a.I('v_xor_b32 v%d, v%d, v%d' % (T, T, T + 1))
    a.I('v_lshl_add_u32 v%d, v%d, 4, v%d' % (T, T, T + 2))
    a.I('v_add_u32 v%d, 0x%x, v%d' % (vVR[0], L_V, T))
    for k in range(1, 4):
        a.I('v_xor_b32 v%d, %d, v%d' % (vVR[k], 32 * k, vVR[0]))
    a.I('v_and_b32 v%d, 31, v0' % (T + 2))
    a.I('v_lshrrev_b32 v%d, 5, v0' % (T + 3))
    a.I('v_add_u32 v%d, s3, v%d' % (T + 3, T + 3))
    xr_addr(a, vA0, vA2, T + 2, T + 3, T)
    a.I('v_add_u32 v%d, 0x%x, v%d' % (vA0, L_X, vA0))
    a.I('v_add_u32 v%d, 0x%x, v%d' % (vA2, L_X, vA2))
    a.I('s_mul_i32 s3, %s, 20' % sW)
    for it in range(3):
        a.I('v_lshrrev_b32 v%d, 3, v0' % T)
        a.I('v_add_u32 v%d, s3, v%d' % (T, T))
        if it:
            a.I('v_add_u32 v%d, %d, v%d' % (T, 8 * it, T))
        a.I('v_mul_u32_u24 v%d, 205, v%d' % (T + 1, T))
        a.I('v_lshrrev_b32 v%d, 10, v%d' % (T + 1, T + 1))
        a.I('v_mul_u32_u24 v%d, 5, v%d' % (T + 2, T + 1))
        a.I('v_sub_u32 v%d, v%d, v%d' % (T + 2, T, T + 2))
        a.I('v_add_u32 v%d, 1, v%d' % (T + 2, T + 2))
        a.I('v_lshrrev_b32 v%d, 2, v%d' % (T + 2, T + 2))
        a.I('v_lshl_add_u32 v%d, v%d, 1, v%d' % (T + 1, T + 1, T + 2))
        a.I('v_xor_b32 v%d, v%d, v0' % (T + 1, T + 1))
        a.I('v_and_b32 v%d, 7, v%d' % (T + 1, T + 1))
        a.I('v_lshlrev_b32 v%d, 9, v%d' % (T, T))
        a.I('v_lshl_add_u32 v%d, v%d, 4, v%d' % (vZS[it], T + 1, T))
    a.I('s_mul_i32 %s, %s, 40960' % (sT[8], sT[1]))
    a.I('s_lshl_b32 s3, %s, 7' % sT[2])
    a.I('s_add_u32 %s, %s, s3' % (sT[8], sT[8]))
    a.I('s_add_u32 %s, %s, %s' % (sT[8], sT[8], sLB))
    a.I('s_add_u32 %s, %s, 0x%x' % (sT[8], sT[8], oZ))
    a.I('s_add_u32 %s, %s, %s' % (sT[9], sT[4], sT[5]))
    a.I('s_add_u32 %s, %s, 0x%x' % (sT[9], sT[9], oX1))
    a.I('v_add_u32 v15, %s, v%d' % (sT[5], vL16))
    a.I('v_add_u32 v15, 0x%x, v15' % L_X)
    stamp(a, launch, 1)

    XE = lambda e: AP + e if e < 10 else AM + 20 - e
    for ks in range(2):
        a.wait_vm('g%d' % ks)
        a.I('s_barrier')
        if ks == 1:
            stamp(a, launch, 2)
        for bg in range(2):
            for t in range(5):
                for rd in range(2):
                    a.I('ds_read_b64_tr_b16 %s, v%d offset:%d' % (vr(WA + 20 * bg + 4 * t + 2 * rd, 2), vRS[bg],
                                                               (16 * ks + 8 * rd) * 2560 + 512 * t))
        for i in range(10):
            a.I('v_mfma_f32_16x16x32_bf16 %s, %s, %s, %s' % (vr(WD + 4 * i, 4), vr(WA + 4 * i, 4), vr(FS + 4 * ks, 4),
                                                          vr(WD + 4 * i, 4) if ks else '0'))
        if ks == 0:
            a.I('ds_read_b128 %s, v%d' % (vr(T, 4), vA0))
            a.I('ds_read_b128 %s, v%d offset:128' % (vr(T + 4, 4), vA0))
            a.I('ds_read_b64 %s, v%d' % (vr(AP + 12, 2), vA2))
            for i in range(10):
                src = T + i if i < 8 else AP + 12 + i - 8
                a.I('v_lshlrev_b32 v%d, 16, v%d' % (XE(2 * i), src))
                a.I('v_and_b32 v%d, 0xffff0000, v%d' % (XE(2 * i + 1), src))
    for ib in range(8):
        d = lambda t: WD + 20 * (ib >> 2) + 4 * t + (ib & 3)
        u = WA + 4 * ib
        a.I('v_cvt_pk_bf16_f32 v%d, v%d, v%d' % (u, d(0), d(1)))
        a.I('v_cvt_pk_bf16_f32 v%d, v%d, v%d' % (u + 1, d(2), d(3)))
        a.I('v_cvt_pk_bf16_f32 v%d, v%d, 0' % (u + 2, d(4)))
    PQ = [[WD + 4 * ib for ib in range(8)], [TA + 8 * ib for ib in range(8)]]
    for ib in range(8):
        a.I('v_mfma_f32_16x16x32_bf16 %s, %s, %s, 0' % (vr(PQ[0][ib], 4), vr(TA + 8 * ib, 4), vr(WA + 4 * ib, 4)))
    for ib in range(8):
        a.I('v_mfma_f32_16x16x32_bf16 %s, %s, %s, 0' % (vr(PQ[1][ib], 4), vr(TA + 8 * ib + 4, 4), vr(WA + 4 * ib, 4)))
    a.I('s_mov_b32 exec_hi, 0xffff')
    for pq in range(2):
        for r in range(4):
            t = (WA + 32, WA + 36, WD + 32, WD + 36)[r]
            for p in range(4):
                a.I('v_cvt_pk_bf16_f32 v%d, v%d, v%d' % (t + p, PQ[pq][2 * p] + r, PQ[pq][2 * p + 1] + r))
            a.I('ds_write_b128 v%d, %s offset:%d' % (vVW[r >> 1], vr(t, 4), pq * 12288 + r * 128))
    a.I('s_mov_b32 exec_hi, -1')
    a.I('s_waitcnt lgkmcnt(0)')
    a.I('s_barrier')
    for pq in range(2):
        for k in range(4):
            a.I('ds_read_b128 %s, v%d offset:%d' % (vr(WA + 16 * pq + 4 * k, 4), vVR[k], pq * 12288))
    for pq in range(2):
        for k in range(4):
            ri, wh = k >> 1, k & 1
            tp = ((0, 8), (16, 0))[pq][ri]
            tm = ((24, 32), (32, 40))[pq][ri]
            A = vr(WA + 16 * pq + 4 * k, 4)
            a.I('v_mfma_f32_32x32x16_bf16 %s, %s, %s, %s' % (vr(AP, 16), A, vr(TB + tp + 4 * wh, 4), vr(AP, 16)))
            a.I('v_mfma_f32_32x32x16_bf16 %s, %s, %s, %s' % (vr(AM, 16), A, vr(TB + tm + 4 * wh, 4), vr(AM, 16)))
    S = WD
    a.I('v_add_f32 v%d, v%d, v%d' % (S, XE(0), XE(1)))
    a.I('v_mul_f32 v%d, v%d, v%d' % (S + 1, XE(0), XE(0)))
    a.I('v_fmac_f32 v%d, v%d, v%d' % (S + 1, XE(1), XE(1)))
    for e in range(2, 20):
        a.I('v_add_f32 v%d, v%d, v%d' % (S, S, XE(e)))
        a.I('v_fmac_f32 v%d, v%d, v%d' % (S + 1, XE(e), XE(e)))
    pk = ['v_cvt_pk_bf16_f32 v%d, v%d, v%d' % (WA + i, XE(2 * i), XE(2 * i + 1)) for i in range(10)]
    red = []
    for m in ('quad_perm:[1,0,3,2]', 'quad_perm:[2,3,0,1]', 'row_half_mirror', 'row_mirror'):
        for i in range(2):
            red.append('v_add_f32_dpp v%d, v%d, v%d %s row_mask:0xf bank_mask:0xf' % (S + i, S + i, S + i, m))
    a.I(pk[0])
    a.I(pk[1])
    a.ext(weave(red, pk[2:], 0, 1.0))
    a.I('v_mov_b32 v%d, v%d' % (S + 2, S))
    a.I('v_mov_b32 v%d, v%d' % (S + 3, S + 1))
    a.I('ds_write_b128 v%d, %s' % (vA0, vr(WA, 4)))
    a.I('ds_write_b128 v%d, %s offset:128' % (vA0, vr(WA + 4, 4)))
    a.I('v_permlane16_swap_b32 v%d, v%d' % (S, S + 2))
    a.I('v_permlane16_swap_b32 v%d, v%d' % (S + 1, S + 3))
    a.I('v_add_f32 v%d, v%d, v%d' % (S, S, S + 2))
    a.I('v_add_f32 v%d, v%d, v%d' % (S + 1, S + 1, S + 3))
    a.I('ds_write_b64 v%d, %s' % (vA2, vr(WA + 8, 2)))
    ln_coef(a, S, S + 1, S + 2, S + 3, S + 4)
    ZP = WA + 12
    for i in range(10):
        a.I('v_fma_f32 v%d, v%d, v%d, v%d' % (XE(2 * i), XE(2 * i), S + 2, S + 3))
        a.I('v_fma_f32 v%d, v%d, v%d, v%d' % (XE(2 * i + 1), XE(2 * i + 1), S + 2, S + 3))
        a.I('v_cvt_pk_bf16_f32 v%d, v%d, v%d' % (ZP + i, XE(2 * i), XE(2 * i + 1)))
        if i == 3:
            a.I('ds_write_b128 v%d, %s offset:%d' % (vA0, vr(ZP, 4), L_Z - L_X))
        if i == 7:
            a.I('ds_write_b128 v%d, %s offset:%d' % (vA0, vr(ZP + 4, 4), L_Z - L_X + 128))
    a.I('ds_write_b64 v%d, %s offset:%d' % (vA2, vr(ZP + 8, 2), L_Z - L_X))
    a.I('s_waitcnt lgkmcnt(0)')
    a.I('s_barrier')
    for it in range(3):
        a.I('ds_read_b128 %s, v15 offset:%d' % (vr(WD + 4 * it, 4), L_Z - L_X + 1024 * it))
    for it in range(3):
        a.I('ds_read_b128 %s, v15 offset:%d' % (vr(WD + 12 + 4 * it, 4), 1024 * it))
    for it in range(2):
        a.I('buffer_store_dwordx4 %s, v%d, %s, %s offen sc1' % (vr(WD + 4 * it, 4), vZS[it], WS, sT[8]))
    a.I('s_mov_b32 exec_hi, 0')
    a.I('buffer_store_dwordx4 %s, v%d, %s, %s offen sc1' % (vr(WD + 8, 4), vZS[2], WS, sT[8]))
    a.I('buffer_store_dwordx4 %s, v%d, %s, %s offen offset:2048 sc1' % (vr(WD + 20, 4), vL16, WS, sT[9]))
    a.I('s_mov_b32 exec_hi, -1')
    for it in range(2):
        a.I('buffer_store_dwordx4 %s, v%d, %s, %s offen offset:%d sc1' % (vr(WD + 12 + 4 * it, 4), vL16, WS, sT[9], 1024 * it))
    stamp(a, launch, 3)
    if STAMP:
        a.I('s_waitcnt vmcnt(0)')
    stamp(a, launch, 4)


def g1_body(a, launch):
    ACC = [16 + 16 * i for i in range(5)]
    WB, NWB = 96, 6
    ET = 120
    vL16, vLD, vD = 1, (2, 3, 4), 5
    stamp(a, launch, 0)
    a.I('s_lshr_b32 %s, %s, 2' % (sT[0], sMU))
    a.I('s_mul_i32 %s, %s, 27' % (sT[0], sT[0]))
    a.I('s_and_b32 %s, %s, 3' % (sT[1], sMU))
    a.I('s_mul_i32 s3, %s, 7' % sT[1])
    a.I('s_add_u32 %s, %s, s3' % (sT[0], sT[0]))
    a.I('s_lshl_b32 %s, %s, 2' % (sT[2], sG))
    a.I('s_add_u32 %s, %s, %s' % (sT[2], sT[2], sW))
    a.I('s_mul_i32 %s, %s, 40960' % (sT[3], sT[2]))
    a.I('s_add_u32 %s, %s, %s' % (sT[3], sT[3], sLB))
    a.I('s_add_u32 %s, %s, 0x%x' % (sT[3], sT[3], oZ))
    a.I('s_mul_i32 %s, %s, 40960' % (sT[4], sW))
    a.I('s_mul_i32 s3, %s, 40960' % sT[0])
    a.I('v_lshlrev_b32 v%d, 4, v0' % vL16)
    a.I('v_add_u32 v%d, s3, v%d' % (vD, vL16))

    def load_k(k):
        o = []
        if k % 4 == 0:
            o.append('s_add_u32 m0, %s, %d' % (sT[4], k * 1024))
            o.append('s_add_u32 %s, %s, %d' % (sT[5], sT[3], k * 1024))
        o.append(Ins('buffer_load_dwordx4 v%d, %s, m0 offen offset:%d lds' % (vD, WS, (k % 4) * 1024), 'w%d' % (k // 5)))
        o.append('buffer_load_dwordx4 %s, v%d, %s, %s offen offset:%d' % (vr(4 * k, 4, 'a'), vL16, WS, sT[5], (k % 4) * 1024))
        return o
    PRE = 24
    for k in range(PRE):
        a.ext(load_k(k))
    for i in range(3):
        a.I('v_add_u32 v%d, 0x%x, v%d' % (vLD[i], 65536 * i, vL16))
    a.I('s_mul_i32 %s, %s, 110592' % (sT[6], sT[2]))
    a.I('s_lshl_b32 s3, %s, 10' % sT[0])
    a.I('s_add_u32 %s, %s, s3' % (sT[6], sT[6]))
    a.I('s_add_u32 %s, %s, %s' % (sT[6], sT[6], sLB))
    a.I('s_add_u32 %s, %s, 0x%x' % (sT[6], sT[6], oH))
    a.I('s_add_u32 %s, %s, 4096' % (sT[7], sT[6]))
    a.I('s_lshl_b32 s3, s2, 12')
    a.I('s_add_u32 s3, s3, 0x%x' % DUMP)
    a.I('s_cmp_eq_u32 %s, 3' % sT[1])
    a.I('s_cselect_b32 %s, s3, %s' % (sT[8], sT[7]))
    a.I('s_mul_i32 %s, %s, 30720' % (sT[9], sW))
    a.I('s_mov_b32 %s, %s' % (sT[10], fl(-1.4426950408889634)))

    def late_dma(p):
        o = []
        if p == 0:
            o.append('v_subrev_u32 v%d, %s, v%d' % (vD, sT[9], vD))
            o.append('v_add_u32 v%d, 0x%x, v%d' % (vD, 163840, vD))
        else:
            o.append('v_add_u32 v%d, 0x%x, v%d' % (vD, 30720, vD))
        for i in range(10):
            if i % 4 == 0:
                o.append('s_add_u32 m0, %s, %d' % (sT[4], p * 10240 + i * 1024))
            o.append(Ins('buffer_load_dwordx4 v%d, %s, m0 offen offset:%d lds' % (vD, WS, (i % 4) * 1024), 't%d' % (4 + p)))
        return o

    seq = [(t, k) for k in range(40) for t in range(4)] + [(t, k) for t in range(4, 7) for k in range(40)]
    accof = {0: 0, 1: 1, 2: 2, 3: 3, 4: 4, 5: 0, 6: 1}

    def ldsoff(t, k):
        return t * 40960 + k * 1024 if t < 4 else (k // 10) * 40960 + (t - 4) * 10240 + (k % 10) * 1024

    def rd(n):
        t, k = seq[n]
        o = []
        if t == 0 and k % 5 == 0:
            o += [('wait_vm', 'w%d' % (k // 5)), 's_barrier']
        if t >= 4 and k == 0:
            o += [('wait_vm', 't%d' % t), 's_barrier']
        off = ldsoff(t, k)
        o.append('ds_read_b128 %s, v%d offset:%d' % (vr(WB + 4 * (n % NWB), 4), vLD[off >> 16], off & 0xffff))
        return o

    def epi(t):
        A = ACC[accof[t]]
        o = []
        for r in range(8):
            o.append('v_mul_f32 v%d, %s, v%d' % (ET + r, sT[10], A + r))
        for r in range(8):
            o.append('v_exp_f32 v%d, v%d' % (ET + r, ET + r))
            o.append('v_mul_f32 v%d, v%d, v%d' % (A + 8 + r, A + r, A + 8 + r))
        for r in range(8):
            o.append('v_add_f32 v%d, 1.0, v%d' % (ET + r, ET + r))
        for r in range(8):
            o.append('v_rcp_f32 v%d, v%d' % (ET + r, ET + r))
        for r in range(8):
            o.append('v_mul_f32 v%d, v%d, v%d' % (A + 8 + r, A + 8 + r, ET + r))
        for p in range(4):
            o.append('v_cvt_pk_bf16_f32 v%d, v%d, v%d' % (ET + p, A + 8 + 2 * p, A + 9 + 2 * p))
        so = sT[6] if t < 4 else (sT[7] if t < 6 else sT[8])
        o.append('buffer_store_dwordx4 %s, v%d, %s, %s offen offset:%d sc1' % (vr(ET, 4), vL16, WS, so, (t % 4) * 1024))
        return o

    fill = {n: [] for n in range(len(seq))}

    def spread(lst, n0, n1):
        for i, x in enumerate(lst):
            fill[n0 + (i * (n1 - n0)) // len(lst)].append(x)
    for k in range(PRE, 40):
        spread(load_k(k), 4 * (k - PRE), 4 * (k - PRE) + 4)
    spread(late_dma(0), 66, 98)
    spread(late_dma(1), 102, 136)
    spread(late_dma(2), 142, 160)
    spread(epi(0) + epi(1), 162, 199)
    spread(epi(2) + epi(3), 200, 239)
    spread(epi(4) + epi(5), 242, 279)
    LA = 4
    for n in range(LA):
        a.ext(rd(n))
    for n, (t, k) in enumerate(seq):
        if n + LA < len(seq):
            a.ext(rd(n + LA))
        A = vr(ACC[accof[t]], 16)
        a.I('v_mfma_f32_32x32x16_bf16 %s, %s, %s, %s' % (A, vr(WB + 4 * (n % NWB), 4), vr(4 * k, 4, 'a'), A if k else '0'))
        if n == 0:
            stamp(a, launch, 1)
        a.ext(fill[n])
    stamp(a, launch, 2)
    a.ext(epi(6))
    stamp(a, launch, 3)
    if STAMP:
        a.I('s_waitcnt vmcnt(0)')
    stamp(a, launch, 4)


def g2_body(a, launch, last):
    wd_slots = [('v', 128 + 4 * i) for i in range(32)] + [('a', 160 + 4 * i) for i in range(24)] + [('a', 4 * i) for i in range(14)]
    h_slots = [('a', 56 + 4 * i) for i in range(26)] + [('v', 112 + 4 * i) for i in range(4)]
    R = lambda s: vr(s[1], 4, s[0])
    ACC = (20, 40)
    SUM, TMP, PK = 60, 80, 100
    vH = list(range(1, 9))
    vWd, vWd13, vA0, vA2, vP = 9, 10, 11, 12, (13, 14, 15)
    vPR, vO = 16, 17
    T = TMP
    st = (110, 111, 0)
    stamp(a, launch, 0, st)
    a.I('v_lshrrev_b32 v%d, 5, v0' % T)
    a.I('v_and_b32 v%d, 31, v0' % (T + 1))
    a.I('v_lshlrev_b32 v%d, 4, v%d' % (T + 1, T + 1))
    a.I('v_mul_u32_u24 v%d, 2560, v%d' % (vWd, T))
    a.I('v_add_u32 v%d, v%d, v%d' % (vWd, vWd, T + 1))
    a.I('v_lshl_add_u32 v%d, v%d, 31, v%d' % (vWd13, T, T + 1))
    a.I('s_mul_i32 %s, %s, 276480' % (sT[10], sJJ))
    a.I('s_mul_i32 s3, %s, %d' % (sW, 27 * 2560))
    a.I('s_add_u32 %s, %s, s3' % (sT[10], sT[10]))
    a.I('s_add_u32 %s, %s, 0x%x' % (sT[10], sT[10], WDP))
    for i in range(14):
        for n in range(5):
            a.I('buffer_load_dwordx4 %s, v%d, %s, %s offen offset:%d' % (R(wd_slots[5 * i + n]), vWd13 if i == 13 else vWd, WS, sT[10], 512 * n))
        if i < 13:
            a.I('s_add_u32 %s, %s, 5120' % (sT[10], sT[10]))
        if i == 0:
            tile_xr_addr(a, vA0, vA2, T + 4)
            tile_blk_soff(a, sT[11], sLB, oX1)
            a.I('buffer_load_dwordx4 %s, v%d, %s, %s offen' % (vr(PK, 4), vA0, WS, sT[11]))
            a.I('buffer_load_dwordx4 %s, v%d, %s, %s offen offset:128' % (vr(PK + 4, 4), vA0, WS, sT[11]))
            a.I('buffer_load_dwordx2 %s, v%d, %s, %s offen' % (vr(PK + 8, 2), vA2, WS, sT[11]))
        if i == 1:
            a.I('v_lshrrev_b32 v%d, 4, v0' % (T + 2))
            a.I('v_and_b32 v%d, 15, v0' % (T + 3))
            a.I('v_lshlrev_b32 v%d, 4, v%d' % (T + 3, T + 3))
            a.I('v_lshl_add_u32 v%d, v%d, 9, v%d' % (vH[0], T + 2, T + 3))
            for j in range(1, 7):
                a.I('v_add_u32 v%d, 0x%x, v%d' % (vH[j], 4096 * j, vH[0]))
            a.I('v_lshl_add_u32 v%d, v%d, 31, v%d' % (vH[7], T, vH[6]))
            a.I('s_lshl_b32 %s, %s, 1' % (sT[16], sG))
            a.I('s_add_u32 %s, %s, %s' % (sT[16], sT[16], sHB))
            a.I('s_mul_i32 %s, %s, %d' % (sT[16], sT[16], 2 * 110592))
            a.I('s_mul_i32 s3, %s, %d' % (sW, 27 * 1024))
            a.I('s_add_u32 %s, %s, s3' % (sT[16], sT[16]))
            a.I('s_add_u32 %s, %s, %s' % (sT[16], sT[16], sLB))
            a.I('s_add_u32 %s, %s, 0x%x' % (sT[16], sT[16], oH))
            a.I('v_lshlrev_b32 v%d, 4, v0' % (T + 2))
            for p in range(4):
                a.I('s_add_u32 %s, %s, %d' % (sT[17], sW, p + 1))
                a.I('s_and_b32 %s, %s, 3' % (sT[17], sT[17]))
                a.I('s_lshr_b32 s3, %s, 1' % sT[17])
                a.I('s_mul_i32 s3, s3, 110592')
                a.I('s_add_u32 %s, %s, s3' % (sT[12 + p], sT[16]))
                a.I('s_and_b32 s3, %s, 1' % sT[17])
                a.I('s_lshl_b32 s3, s3, 8')
                a.I('s_add_u32 %s, %s, s3' % (sT[12 + p], sT[12 + p]))
                a.I('s_mul_i32 s3, %s, 15360' % sT[17])
                if p < 3:
                    a.I('s_add_u32 s3, s3, %d' % (p * 5120))
                    a.I('v_add_u32 v%d, s3, v%d' % (vP[p], T + 2))
                else:
                    a.I('v_add_u32 v%d, s3, v%d' % (vPR, T + 2))

    def hload(f):
        p, i = divmod(f, 14)
        return 'buffer_load_dwordx4 %s, v%d, %s, %s offen offset:%d' % (R(h_slots[f % 30]), vH[7] if i == 13 else vH[i >> 1], WS, sT[12 + p], 2048 * (i & 1))
    for f in range(30):
        a.I(hload(f))
    if last:
        nat_lane_off(a, vO, T)
        row_nat_soff(a, sT[18])
        a.I('s_mul_i32 s3, %s, 160' % sJJ)
        a.I('s_add_u32 %s, %s, s3' % (sT[18], sT[18]))
    else:
        tile_blk_soff(a, sT[18], sLN, oXA)
        stats_soff(a, sT[19], sLN)
        a.I('s_lshl_b32 s3, %s, 7' % sJJ)
        a.I('s_add_u32 %s, %s, s3' % (sT[19], sT[19]))
        a.I('v_lshlrev_b32 v%d, 3, v0' % vO)
    a.ext(unpack20(PK, lambda i: SUM + i))

    fill = {n: [] for n in range(280)}

    def spread(lst, n0, n1):
        for i, x in enumerate(lst):
            fill[n0 + (i * (n1 - n0)) // len(lst)].append(x)
    for f in range(30, 56):
        fill[5 * (f - 30) + 5].append(hload(f))
    for p in range(3):
        spread(['ds_write_b128 v%d, %s offset:%d' % (vP[p], vr(ACC[p & 1] + 4 * n, 4), 1024 * n) for n in range(5)],
               70 * (p + 1) + 8, 70 * (p + 1) + 13)
    fill[226] += ['s_waitcnt lgkmcnt(0)', 's_barrier']
    rds = lambda p, b: ['ds_read_b128 %s, v%d offset:%d' % (vr(b + 4 * n, 4), vPR, p * 5120 + n * 1024) for n in range(5)]
    add = lambda b: ['v_add_f32 v%d, v%d, v%d' % (SUM + i, SUM + i, b + i) for i in range(20)]
    spread(rds(0, TMP) + rds(1, ACC[0]), 227, 237)
    spread(add(TMP), 238, 250)
    spread(rds(2, TMP) + add(ACC[0]), 250, 264)
    spread(add(TMP), 265, 278)
    n = 0
    for p in range(4):
        for i in range(14):
            for c in range(5):
                A = vr(ACC[p & 1] + 4 * c, 4)
                a.I('v_mfma_f32_16x16x32_bf16 %s, %s, %s, %s' % (A, R(wd_slots[5 * i + c]), R(h_slots[(14 * p + i) % 30]), A if i else '0'))
                if n == 0:
                    stamp(a, launch, 1, st)
                a.ext(fill[n])
                n += 1
    stamp(a, launch, 2, st)
    a.ext(add(ACC[1]))
    for i in range(10):
        a.I('v_cvt_pk_bf16_f32 v%d, v%d, v%d' % (PK + i, SUM + 2 * i, SUM + 2 * i + 1))
    if last:
        a.I('buffer_store_dwordx4 %s, v%d, %s, %s offen' % (vr(PK, 4), vO, SA, sT[18]))
        a.I('buffer_store_dwordx4 %s, v%d, %s, %s offen offset:16' % (vr(PK + 4, 4), vO, SA, sT[18]))
        a.I('buffer_store_dwordx2 %s, v%d, %s, %s offen offset:32' % (vr(PK + 8, 2), vO, SA, sT[18]))
    else:
        a.I('buffer_store_dwordx4 %s, v%d, %s, %s offen' % (vr(PK, 4), vA0, WS, sT[18]))
        a.I('buffer_store_dwordx4 %s, v%d, %s, %s offen offset:128' % (vr(PK + 4, 4), vA0, WS, sT[18]))
        a.I('buffer_store_dwordx2 %s, v%d, %s, %s offen' % (vr(PK + 8, 2), vA2, WS, sT[18]))
        a.I('v_add_f32 v%d, v%d, v%d' % (T, SUM, SUM + 1))
        a.I('v_mul_f32 v%d, v%d, v%d' % (T + 1, SUM, SUM))
        a.I('v_fmac_f32 v%d, v%d, v%d' % (T + 1, SUM + 1, SUM + 1))
        for e in range(2, 20):
            a.I('v_add_f32 v%d, v%d, v%d' % (T, T, SUM + e))
            a.I('v_fmac_f32 v%d, v%d, v%d' % (T + 1, SUM + e, SUM + e))
        quad_reduce(a, T, T + 1, T + 2)
        a.I('s_mov_b32 exec_hi, 0')
        a.I('s_mov_b32 exec_lo, 0xffff')
        a.I('buffer_store_dwordx2 %s, v%d, %s, %s offen' % (vr(T, 2), vO, WS, sT[19]))
        a.I('s_mov_b64 exec, -1')
    stamp(a, launch, 3, st)
    if STAMP:
        a.I('s_waitcnt vmcnt(0)')
    stamp(a, launch, 4, st)


def two_entries(a, name, launches, body, ptrs=()):
    entry(a, name + '1_kernel', 256, 1, launches[1], list(ptrs), name + '_end')
    a.I('s_branch %s_body' % name)
    entry(a, name + '0_kernel', 256, 0, launches[0], list(ptrs), name + '_end')
    a.label(name + '_body')
    body(a)
    a.label(name + '_end')
    a.I('s_endpgm')


def main():
    a = Asm()
    launches = [('prep_kernel', 634, 20480), ('kb0_kernel', 256, KB_LDS), ('ga0_kernel', 256, 163840), ('gb0_kernel', 256, 61440),
                ('ka_kernel', 256, 10752), ('kb1_kernel', 256, KB_LDS), ('ga1_kernel', 256, 163840), ('gb1_kernel', 256, 61440)]
    head = ''.join('; @launch kernel=%s grid=(%d,1,1) block=(256,1,1) lds=%d\n' % l for l in launches)
    head += '.amdgcn_target "amdgcn-amd-amdhsa--gfx950"\n.text\n'
    k_prep(a)
    k_ka(a)
    two_entries(a, 'kb', (1, 5), lambda a: kb_body(a, 0))
    two_entries(a, 'ga', (2, 6), lambda a: g1_body(a, 0))
    for l in range(2):
        entry(a, 'gb%d_kernel' % l, 256, l, (3, 7)[l], [(8, 72, XB)] if l else [], 'gb%d_end' % l)
        g2_body(a, 0, l == 1)
        a.label('gb%d_end' % l)
        a.I('s_endpgm')
    tail = '.section .rodata,"a"\n'
    for n, v, ac in [('prep_kernel', 128, 128), ('ka_kernel', 128, 128), ('kb0_kernel', 256, 256), ('kb1_kernel', 256, 256),
                     ('ga0_kernel', 512, 256), ('ga1_kernel', 512, 256), ('gb0_kernel', 512, 256), ('gb1_kernel', 512, 256)]:
        tail += '.p2align 6\n' + kdesc(n, v, ac)
    sys.stdout.write(head + a.finalize() + tail)


if __name__ == '__main__':
    main()
```

```python
import struct, sys
from asmlib import Asm, Ins, vr, weave

STAMP = '--stamp' in sys.argv

W1P, WDP = 0x0, 0x440000
LB0, LBS = 0x800000, 0x1400000
oG, oXA, oZ, oX1, oH, oST = 0x0, 0x280000, 0x500000, 0x780000, 0xA00000, 0x1100000
DUMP = 0x3800000
STAMPS = 0x4000000
WS_BYTES = 0x10000000
XB = 2048 * 640 * 2
W1B = 640 * 1728 * 2

WS, SA, SB = 's[4:7]', 's[8:11]', 's[12:15]'
sW, sG, sMU, sHB, sJJ, sLB, sLN = 's16', 's17', 's18', 's19', 's20', 's21', 's22'
sT = ['s%d' % i for i in range(24, 48)]
sSTMP = 's[48:49]'


def fl(x):
    return '0x%08x' % struct.unpack('<I', struct.pack('<f', x))[0]


def srd(a, base, lo, size):
    a.I('s_mov_b32 s%d, s%d' % (base, lo))
    a.I('s_and_b32 s%d, s%d, 0xffff' % (base + 1, lo + 1))
    a.I('s_mov_b32 s%d, 0x%x' % (base + 2, size))
    a.I('s_mov_b32 s%d, 0x20000' % (base + 3))


def stamp(a, launch, idx, vt=None):
    if not STAMP:
        return
    a.I('s_memrealtime s[%d:%d]' % (64 + 4 * idx, 65 + 4 * idx))
    a.I('s_memtime s[%d:%d]' % (66 + 4 * idx, 67 + 4 * idx))


def stamp_flush(a, n):
    if not STAMP:
        return
    a.I('s_waitcnt vmcnt(0)')
    stamp(a, 0, n - 1)
    a.I('s_lshl_b32 s50, s2, 2')
    a.I('s_add_u32 s50, s50, %s' % sW)
    a.I('s_lshl_b32 s50, s50, 6')
    a.I('s_add_u32 s50, s50, s51')
    a.I('s_add_u32 s50, s50, 0x%x' % STAMPS)
    a.I('s_waitcnt lgkmcnt(0)')
    a.I('v_mov_b32 v1, 0')
    for i in range(n):
        a.I('v_mov_b32 v2, s%d' % (64 + 4 * i))
        a.I('v_mov_b32 v3, s%d' % (66 + 4 * i))
        a.I('buffer_store_dwordx2 v[2:3], v1, %s, s50 offen offset:%d' % (WS, 8 * i))


def entry(a, name, nwg, layer, launch, ptrs, end):
    a.raw('.globl %s\n.p2align 8\n.type %s,@function' % (name, name))
    a.label(name)
    a.reset()
    a.I('s_cmp_ge_u32 s2, %d' % nwg)
    a.I('s_cbranch_scc1 %s' % end)
    a.I('s_load_dwordx2 s[52:53], s[0:1], 88')
    for i, (b, off, sz) in enumerate(ptrs):
        a.I('s_load_dwordx2 s[%d:%d], s[0:1], %d' % (54 + 2 * i, 55 + 2 * i, off))
    a.I('v_lshrrev_b32 v1, 6, v0')
    a.I('v_and_b32 v0, 63, v0')
    a.I('v_readfirstlane_b32 %s, v1' % sW)
    a.I('s_mov_b32 %s, 0x%x' % (sLB, LB0 + layer * LBS))
    a.I('s_mov_b32 %s, 0x%x' % (sLN, LB0 + (layer + 1) * LBS))
    a.I('s_mov_b32 s51, 0x%x' % (launch * 0x40000))
    a.I('s_and_b32 %s, s2, 1' % sG)
    a.I('s_lshl_b32 %s, %s, 3' % (sG, sG))
    a.I('s_bfe_u32 s3, s2, 0x30003')
    a.I('s_or_b32 %s, %s, s3' % (sG, sG))
    a.I('s_bfe_u32 %s, s2, 0x20001' % sMU)
    a.I('s_lshl_b32 %s, %s, 2' % (sMU, sMU))
    a.I('s_bfe_u32 s3, s2, 0x20006')
    a.I('s_or_b32 %s, %s, s3' % (sMU, sMU))
    a.I('s_bfe_u32 %s, %s, 0x10002' % (sHB, sMU))
    a.I('s_lshr_b32 %s, %s, 3' % (sJJ, sMU))
    a.I('s_lshl_b32 %s, %s, 2' % (sJJ, sJJ))
    a.I('s_or_b32 %s, %s, s3' % (sJJ, sJJ))
    a.I('s_waitcnt lgkmcnt(0)')
    srd(a, 4, 52, WS_BYTES)
    for i, (b, off, sz) in enumerate(ptrs):
        srd(a, b, 54 + 2 * i, sz)


def kdesc(name, vgpr, acc):
    return '''.amdhsa_kernel %s
  .amdhsa_next_free_vgpr %d
  .amdhsa_next_free_sgpr 100
  .amdhsa_accum_offset %d
  .amdhsa_group_segment_fixed_size 0
  .amdhsa_kernarg_size 96
  .amdhsa_user_sgpr_count 2
  .amdhsa_user_sgpr_kernarg_segment_ptr 1
  .amdhsa_system_sgpr_workgroup_id_x 1
  .amdhsa_float_denorm_mode_32 3
.end_amdhsa_kernel
''' % (name, vgpr, acc)


def unpack20(pk, dst):
    o = []
    for i in range(10):
        o.append('v_lshlrev_b32 v%d, 16, v%d' % (dst(2 * i), pk + i))
        o.append('v_and_b32 v%d, 0xffff0000, v%d' % (dst(2 * i + 1), pk + i))
    return o


def xr_addr(a, vA0, vA2, vm, vi, t):
    a.I('v_lshrrev_b32 v%d, 1, v%d' % (t, vm))
    a.I('v_mul_u32_u24 v%d, 640, v%d' % (t, t))
    a.I('v_and_b32 v%d, 1, v%d' % (t + 1, vm))
    a.I('v_and_b32 v%d, 7, v%d' % (vA0, vm))
    a.I('v_xor_b32 v%d, v%d, v%d' % (vA0, vA0, vi))
    a.I('v_lshl_add_u32 v%d, v%d, 4, v%d' % (vA0, vA0, t))
    a.I('v_and_b32 v%d, 6, v%d' % (vA2, vm))
    a.I('v_xor_b32 v%d, v%d, v%d' % (vA2, vA2, vi))
    a.I('v_lshl_add_u32 v%d, v%d, 4, v%d' % (vA2, vA2, t))
    a.I('v_lshl_add_u32 v%d, v%d, 3, v%d' % (vA2, t + 1, vA2))
    a.I('v_add_u32 v%d, 256, v%d' % (vA2, vA2))
    a.I('v_mul_u32_u24 v%d, 384, v%d' % (t + 1, t + 1))
    a.I('v_add_u32 v%d, v%d, v%d' % (vA0, vA0, t + 1))


def tile_xr_addr(a, vA0, vA2, t):
    a.I('v_lshrrev_b32 v%d, 4, v0' % (t + 2))
    a.I('s_lshl_b32 s3, %s, 2' % sJJ)
    a.I('v_add_u32 v%d, s3, v%d' % (t + 2, t + 2))
    a.I('v_and_b32 v%d, 7, v0' % (t + 3))
    xr_addr(a, vA0, vA2, t + 2, t + 3, t)
    a.I('v_bfe_u32 v%d, v0, 3, 1' % t)
    a.I('v_mul_u32_u24 v%d, 10240, v%d' % (t, t))
    a.I('v_add_u32 v%d, v%d, v%d' % (vA0, vA0, t))
    a.I('v_add_u32 v%d, v%d, v%d' % (vA2, vA2, t))


def tile_blk_soff(a, sd, sbase, off):
    a.I('s_lshl_b32 %s, %s, 1' % (sd, sG))
    a.I('s_add_u32 %s, %s, %s' % (sd, sd, sHB))
    a.I('s_lshl_b32 %s, %s, 2' % (sd, sd))
    a.I('s_add_u32 %s, %s, %s' % (sd, sd, sW))
    a.I('s_mul_i32 %s, %s, 20480' % (sd, sd))
    a.I('s_add_u32 %s, %s, %s' % (sd, sd, sbase))
    a.I('s_add_u32 %s, %s, 0x%x' % (sd, sd, off))


def ln_coef(a, vS, vQ, vR, vN, t):
    a.I('v_mul_f32 v%d, %s, v%d' % (vN, fl(-1.0 / 640), vS))
    a.I('v_mul_f32 v%d, v%d, v%d' % (t, vN, vN))
    a.I('v_mul_f32 v%d, %s, v%d' % (vR, fl(1.0 / 640), vQ))
    a.I('v_sub_f32 v%d, v%d, v%d' % (vR, vR, t))
    a.I('v_max_f32 v%d, 0, v%d' % (vR, vR))
    a.I('v_add_f32 v%d, %s, v%d' % (vR, fl(1e-5), vR))
    a.I('v_rsq_f32 v%d, v%d' % (vR, vR))
    a.I('v_mul_f32 v%d, v%d, v%d' % (vN, vN, vR))


class AT:
    F = 2
    ZW, ZR, GA = 10, 11, 12
    T = 13


def atail_setup(a, sOut, ldsb):
    T = AT.T
    a.I('v_and_b32 v%d, 15, v0' % T)
    a.I('v_lshrrev_b32 v%d, 1, v%d' % (T + 1, T))
    a.I('s_lshl_b32 s3, %s, 3' % sW)
    a.I('v_add_u32 v%d, s3, v%d' % (T + 1, T + 1))
    a.I('v_mul_u32_u24 v%d, 81920, v%d' % (AT.GA, T + 1))
    a.I('v_and_b32 v%d, 1, v0' % (T + 2))
    a.I('v_lshl_add_u32 v%d, v%d, 3, v%d' % (AT.GA, T + 2, AT.GA))
    a.I('v_cvt_f32_u32 v%d, v%d' % (T + 3, T + 2))
    a.I('v_mul_f32 v%d, 0.25, v%d' % (T + 3, T + 3) if False else 'v_mul_f32 v%d, %s, v%d' % (T + 3, fl(0.25), T + 3))
    a.I('v_cmp_eq_u32 vcc, 0, v%d' % (T + 1))
    a.I('v_lshlrev_b32 v%d, 5, v%d' % (T + 2, T + 2))
    a.I('v_cndmask_b32 v%d, v%d, v%d, vcc' % (T + 1, T + 1, T + 2))
    a.I('v_cndmask_b32 v%d, v%d, 0, vcc' % (T + 3, T + 3) if False else 'v_cndmask_b32_e64 v%d, v%d, 0, vcc' % (T + 3, T + 3))
    a.I('v_cvt_f32_u32 v%d, v%d' % (T + 1, T + 1))
    a.I('v_mul_f32 v%d, %s, v%d' % (T + 1, fl(1.0 / 64), T + 1))
    a.I('v_bfe_u32 v%d, v0, 4, 1' % (T + 2))
    a.I('v_lshlrev_b32 v%d, 5, v%d' % (T + 2, T + 2))
    a.I('v_lshrrev_b32 v%d, 5, v0' % (T + 4))
    a.I('v_lshl_add_u32 v%d, v%d, 1, v%d' % (T + 2, T + 4, T + 2))
    a.I('v_cvt_f32_u32 v%d, v%d' % (T + 2, T + 2))
    a.I('v_fma_f32 v%d, v%d, v%d, v%d' % (T + 3, T + 1, T + 2, T + 3))
    for ks in range(2):
        for p in range(4):
            for e in range(2):
                j = 2 * p + e
                k = 8 * (j & 3) + 4 * (j >> 2) + ks
                a.I('v_fmamk_f32 v%d, v%d, %s, v%d' % (T + 2 + 2 * e, T + 1, fl(k), T + 3))
            a.I('v_cos_f32 v%d, v%d' % (T + 2, T + 2))
            a.I('v_cos_f32 v%d, v%d' % (T + 4, T + 4))
            a.I('v_cvt_pk_bf16_f32 v%d, v%d, v%d' % (AT.F + 4 * ks + p, T + 2, T + 4))
    a.I('s_lshl_b32 s3, %s, 4' % sW)
    a.I('v_add_u32 v%d, s3, v%d' % (T, T))
    a.I('v_mul_u32_u24 v%d, 168, v%d' % (AT.ZW, T))
    a.I('v_lshrrev_b32 v%d, 4, v0' % T)
    a.I('v_mul_u32_u24 v%d, 40, v%d' % (T + 1, T))
    a.I('v_add_u32 v%d, v%d, v%d' % (AT.ZW, AT.ZW, T + 1))
    a.I('v_and_b32 v%d, 28, v0' % (T + 1))
    a.I('v_lshrrev_b32 v%d, 5, v0' % (T + 2))
    a.I('v_add_u32 v%d, v%d, v%d' % (T + 1, T + 1, T + 2))
    a.I('v_mul_u32_u24 v%d, 168, v%d' % (T + 1, T + 1))
    a.I('v_and_b32 v%d, 3, v0' % (T + 2))
    a.I('v_lshl_add_u32 v%d, v%d, 3, v%d' % (AT.ZR, T + 2, T + 1))
    if ldsb:
        a.I('v_add_u32 v%d, 0x%x, v%d' % (AT.ZW, ldsb, AT.ZW))
        a.I('v_add_u32 v%d, 0x%x, v%d' % (AT.ZR, ldsb, AT.ZR))
    a.I('s_and_b32 s3, %s, 3' % sG)
    a.I('v_xor_b32 v%d, s3, v%d' % (T, T))
    a.I('v_lshl_add_u32 v%d, v%d, 4, v%d' % (AT.GA, T, AT.GA))
    a.I('s_lshl_b32 s3, %s, 4' % sHB)
    a.I('s_add_u32 s3, s3, %s' % sG)
    a.I('s_mul_i32 s3, s3, 2560')
    a.I('s_add_u32 s3, s3, %s' % sOut)
    a.I('s_mul_i32 %s, %s, 5' % (sT[5], sJJ))
    for t in range(5):
        a.I('s_add_u32 %s, %s, %d' % (sT[t], sT[5], t))
        a.I('s_bfe_u32 %s, %s, 0x10002' % (sT[6], sT[t]))
        a.I('s_xor_b32 %s, %s, %s' % (sT[t], sT[t], sT[6]))
        a.I('s_lshl_b32 %s, %s, 6' % (sT[t], sT[t]))
        a.I('s_add_u32 %s, %s, s3' % (sT[t], sT[t]))


def atail_main(a, X, vS, vQ, W):
    T = AT.T
    ln_coef(a, vS, vQ, T, T + 1, T + 2)
    for n in range(5):
        for i in range(4):
            a.I('v_fma_f32 v%d, v%d, v%d, v%d' % (X + 4 * n + i, X + 4 * n + i, T, T + 1))
        a.I('v_cvt_pk_bf16_f32 v%d, v%d, v%d' % (W + 2 * n, X + 4 * n, X + 4 * n + 1))
        a.I('v_cvt_pk_bf16_f32 v%d, v%d, v%d' % (W + 2 * n + 1, X + 4 * n + 2, X + 4 * n + 3))
        a.I('ds_write_b64 v%d, %s offset:%d' % (AT.ZW, vr(W + 2 * n, 2), 8 * n))
    a.I('s_waitcnt lgkmcnt(0)')
    a.I('s_barrier')
    for t in range(5):
        for ks in range(2):
            for rd in range(2):
                a.I('ds_read_b64_tr_b16 %s, v%d offset:%d' % (vr(W + 8 * t + 4 * ks + 2 * rd, 2), AT.ZR,
                                                           (32 * ks + 2 * rd) * 168 + 32 * t))
    D = W + 40
    for t in range(5):
        a.I('v_mfma_f32_16x16x32_bf16 %s, %s, %s, 0' % (vr(D + 4 * t, 4), vr(W + 8 * t, 4), vr(AT.F, 4)))
        a.I('v_mfma_f32_16x16x32_bf16 %s, %s, %s, %s' % (vr(D + 4 * t, 4), vr(W + 8 * t + 4, 4), vr(AT.F + 4, 4), vr(D + 4 * t, 4)))
    for t in range(5):
        a.I('v_cvt_pk_bf16_f32 v%d, v%d, v%d' % (X + 2 * t, D + 4 * t, D + 4 * t + 1))
        a.I('v_cvt_pk_bf16_f32 v%d, v%d, v%d' % (X + 2 * t + 1, D + 4 * t + 2, D + 4 * t + 3))
        a.I('buffer_store_dwordx2 %s, v%d, %s, %s offen' % (vr(X + 2 * t, 2), AT.GA, WS, sT[t]))


def row_nat_soff(a, sd):
    a.I('s_lshl_b32 %s, %s, 4' % (sd, sHB))
    a.I('s_add_u32 %s, %s, %s' % (sd, sd, sG))
    a.I('s_lshr_b32 s3, %s, 1' % sW)
    a.I('s_lshl_b32 s3, s3, 5')
    a.I('s_add_u32 %s, %s, s3' % (sd, sd))
    a.I('s_and_b32 s3, %s, 1' % sW)
    a.I('s_lshl_b32 s3, s3, 10')
    a.I('s_add_u32 %s, %s, s3' % (sd, sd))
    a.I('s_mul_i32 %s, %s, 1280' % (sd, sd))


def nat_lane_off(a, vd, t):
    a.I('v_and_b32 v%d, 15, v0' % vd)
    a.I('v_mul_u32_u24 v%d, 81920, v%d' % (vd, vd))
    a.I('v_lshrrev_b32 v%d, 4, v0' % t)
    a.I('v_mul_u32_u24 v%d, 40, v%d' % (t, t))
    a.I('v_add_u32 v%d, v%d, v%d' % (vd, vd, t))


def k_prep(a):
    entry(a, 'prep_kernel', 634, 0, 0, [(8, 0, XB)], 'prep_end')
    a.I('s_cmp_ge_u32 s2, 256')
    a.I('s_cbranch_scc1 prep_w')
    stamp(a, 0, 0, (126, 127, 0))
    RW = 48
    PK, X = 18, 28
    row_nat_soff(a, sT[8])
    a.I('s_add_u32 %s, %s, %d' % (sT[9], sT[8], 512 * 1280))
    a.I('v_lshrrev_b32 v1, 3, v0')
    a.I('v_mul_u32_u24 v1, 81920, v1')
    a.I('v_and_b32 v2, 7, v0')
    a.I('v_lshl_add_u32 v1, v2, 4, v1')
    for st in range(2):
        for i in range(10):
            a.I('buffer_load_dwordx4 %s, v1, %s, %s offen offset:%d' % (vr(RW + 40 * st + 4 * i, 4), SA, sT[8 + st], 128 * i))
    nat_lane_off(a, 1, 2)
    a.I('s_mul_i32 s3, %s, 160' % sJJ)
    a.I('s_add_u32 %s, %s, s3' % (sT[8], sT[8]))
    a.I('buffer_load_dwordx4 %s, v1, %s, %s offen' % (vr(PK, 4), SA, sT[8]))
    a.I('buffer_load_dwordx4 %s, v1, %s, %s offen offset:16' % (vr(PK + 4, 4), SA, sT[8]))
    a.I('buffer_load_dwordx2 %s, v1, %s, %s offen offset:32' % (vr(PK + 8, 2), SA, sT[8]))
    atail_setup(a, sLB, 0)
    tile_xr_addr(a, X, X + 1, X + 2)
    tile_blk_soff(a, sT[8], sLB, oXA)
    S = X + 8
    a.I('v_mov_b32 v%d, 0x3f803f80' % (S + 4))
    for i in range(4):
        a.I('v_mov_b32 v%d, 0' % (S + i))
    for i in range(40):
        for st in range(2):
            a.I('v_dot2c_f32_bf16 v%d, v%d, v%d' % (S + 2 * st, RW + 40 * st + i, S + 4))
            a.I('v_dot2c_f32_bf16 v%d, v%d, v%d' % (S + 2 * st + 1, RW + 40 * st + i, RW + 40 * st + i))
    a.I('buffer_store_dwordx4 %s, v%d, %s, %s offen' % (vr(PK, 4), X, WS, sT[8]))
    a.I('buffer_store_dwordx4 %s, v%d, %s, %s offen offset:128' % (vr(PK + 4, 4), X, WS, sT[8]))
    a.I('buffer_store_dwordx2 %s, v%d, %s, %s offen' % (vr(PK + 8, 2), X + 1, WS, sT[8]))
    for m in ('quad_perm:[1,0,3,2]', 'quad_perm:[2,3,0,1]', 'row_half_mirror'):
        for i in range(4):
            a.I('v_add_f32_dpp v%d, v%d, v%d %s row_mask:0xf bank_mask:0xf' % (S + i, S + i, S + i, m))
    a.I('v_and_b32 v1, 1, v0')
    a.I('v_cmp_eq_u32 vcc, 1, v1')
    a.I('v_and_b32 v1, 7, v0')
    a.I('v_bfe_u32 v%d, v0, 3, 1' % (S + 4))
    a.I('v_lshl_add_u32 v1, v1, 3, v%d' % (S + 4))
    a.I('v_lshlrev_b32 v1, 2, v1')
    a.I('v_cndmask_b32 v%d, v%d, v%d, vcc' % (S, S, S + 2))
    a.I('v_cndmask_b32 v%d, v%d, v%d, vcc' % (S + 1, S + 1, S + 3))
    a.I('ds_bpermute_b32 v%d, v1, v%d' % (RW + 70, S))
    a.I('ds_bpermute_b32 v%d, v1, v%d' % (RW + 71, S + 1))
    a.I('s_waitcnt lgkmcnt(0)')
    a.ext(unpack20(PK, lambda i: X + i))
    atail_main(a, X, RW + 70, RW + 71, RW)
    stamp_flush(a, 2)
    a.I('s_endpgm')

    a.label('prep_w')
    a.reset()
    stamp(a, 0, 0, (126, 127, 0))
    a.I('s_load_dwordx4 s[56:59], s[0:1], 48')
    a.I('s_load_dwordx2 s[60:61], s[0:1], 64')
    a.I('s_cmp_ge_u32 s2, 526')
    a.I('s_cbranch_scc1 prep_wd')
    a.I('s_sub_u32 %s, s2, 256' % sT[0])
    a.I('s_mul_i32 %s, %s, 205' % (sT[1], sT[0]))
    a.I('s_lshr_b32 %s, %s, 11' % (sT[1], sT[1]))
    a.I('s_mul_i32 s3, %s, 10' % sT[1])
    a.I('s_sub_u32 %s, %s, s3' % (sT[0], sT[0]))
    a.I('s_lshl_b32 %s, %s, 2' % (sT[0], sT[0]))
    a.I('s_add_u32 %s, %s, %s' % (sT[0], sT[0], sW))
    a.I('v_lshrrev_b32 v1, 3, v0')
    a.I('v_and_b32 v2, 7, v0')
    a.I('v_lshlrev_b32 v2, 4, v2')
    a.I('v_lshrrev_b32 v3, 2, v1')
    for h in range(2):
        a.I('s_lshl_b32 %s, %s, 1' % (sT[2], sT[0]))
        a.I('s_add_u32 %s, %s, %d' % (sT[2], sT[2], h))
        a.I('s_mul_i32 %s, %s, 205' % (sT[3], sT[2]))
        a.I('s_lshr_b32 %s, %s, 10' % (sT[3], sT[3]))
        a.I('s_mul_i32 s3, %s, 5' % sT[3])
        a.I('s_sub_u32 %s, %s, s3' % (sT[3], sT[2]))
        a.I('s_lshl_b32 %s, %s, 3' % (sT[2], sT[2]))
        a.I('s_cmp_ge_u32 %s, 3' % sT[3])
        a.I('s_cselect_b32 s3, 4, 0')
        a.I('s_sub_u32 %s, %s, s3' % (sT[2], sT[2]))
        a.I('s_cmp_eq_u32 %s, 2' % sT[3])
        a.I('s_cselect_b32 s3, 16, 0')
        a.I('v_mad_u32_u24 v%d, v3, s3, v1' % (4 + h))
        a.I('v_add_u32 v%d, %s, v%d' % (4 + h, sT[2], 4 + h))
        a.I('v_mul_u32_u24 v%d, 3456, v%d' % (4 + h, 4 + h))
        a.I('v_add_u32 v%d, v%d, v2' % (4 + h, 4 + h))
    a.I('s_lshl_b32 %s, %s, 7' % (sT[4], sT[1]))
    a.I('s_lshl_b32 %s, %s, 12' % (sT[5], sW))
    a.I('s_waitcnt lgkmcnt(0)')
    srd(a, 8, 56, W1B)
    srd(a, 12, 58, W1B)
    for mat in range(2):
        for h in range(2):
            a.I('s_add_u32 m0, %s, %d' % (sT[5], mat * 2048 + h * 1024))
            a.I('buffer_load_dwordx4 v%d, %s, %s offen lds' % (4 + h, (SA, SB)[mat], sT[4]), tag='d')
    a.I('v_bfe_u32 v1, v0, 4, 1')
    a.I('v_lshlrev_b32 v1, 11, v1')
    a.I('v_lshrrev_b32 v2, 5, v0')
    a.I('v_lshl_add_u32 v1, v2, 10, v1')
    a.I('v_bfe_u32 v2, v0, 2, 2')
    a.I('v_lshl_add_u32 v1, v2, 7, v1')
    a.I('v_and_b32 v2, 1, v0')
    a.I('v_lshl_add_u32 v1, v2, 4, v1')
    a.I('v_bfe_u32 v2, v0, 1, 1')
    a.I('v_lshl_add_u32 v1, v2, 3, v1')
    a.I('v_add_u32 v1, %s, v1' % sT[5])
    a.I('v_lshlrev_b32 v2, 4, v0')
    a.I('s_mul_i32 %s, %s, %d' % (sT[1], sT[1], 4 * 40960))
    a.I('s_lshl_b32 %s, %s, 10' % (sT[0], sT[0]))
    a.I('s_add_u32 %s, %s, %s' % (sT[0], sT[0], sT[1]))
    a.wait_vm('d')
    for ft in range(4):
        for rd in range(2):
            a.I('ds_read_b64_tr_b16 %s, v1 offset:%d' % (vr(8 + 4 * ft + 2 * rd, 2), rd * 512 + ft * 32))
    for ft in range(4):
        a.I('s_add_u32 %s, %s, 0x%x' % (sT[1], sT[0], W1P + ft * 40960))
        a.I('buffer_store_dwordx4 %s, v2, %s, %s offen sc1' % (vr(8 + 4 * ft, 4), WS, sT[1]))
    stamp_flush(a, 2)
    a.I('s_endpgm')

    a.label('prep_wd')
    a.reset()
    a.I('s_sub_u32 %s, s2, 526' % sT[0])
    a.I('s_and_b32 %s, %s, 1' % (sT[1], sT[0]))
    a.I('s_lshr_b32 %s, %s, 1' % (sT[0], sT[0]))
    a.I('s_mul_i32 %s, %s, 40960' % (sT[2], sT[0]))
    a.I('s_mul_i32 s3, %s, 640' % sT[1])
    a.I('s_add_u32 %s, %s, s3' % (sT[2], sT[2]))
    a.I('s_mul_i32 %s, %s, 320' % (sT[3], sW))
    a.I('v_add_u32 v1, %s, v0' % sT[3])
    a.I('s_lshl_b32 %s, %s, 4' % (sT[3], sT[3]))
    a.I('s_waitcnt lgkmcnt(0)')
    srd(a, 12, 60, W1B)
    for it in range(5):
        a.I('v_add_u32 v2, %d, v1' % (64 * it))
        a.I('v_mul_u32_u24 v3, 1639, v2')
        a.I('v_lshrrev_b32 v3, 16, v3')
        a.I('v_mul_u32_u24 v3, 640, v3')
        a.I('v_lshl_add_u32 v3, v2, 4, v3')
        a.I('s_add_u32 m0, %s, %d' % (sT[3], it * 1024))
        a.I('buffer_load_dwordx4 v3, %s, %s offen lds' % (SB, sT[2]), tag='d')
    a.I('v_lshrrev_b32 v1, 4, v0')
    a.I('v_bfe_u32 v2, v0, 2, 2')
    a.I('v_lshl_add_u32 v1, v1, 3, v2')
    a.I('v_mul_u32_u24 v1, 640, v1')
    a.I('v_and_b32 v2, 3, v0')
    a.I('v_mul_u32_u24 v2, 40, v2')
    a.I('s_mul_i32 s3, %s, 160' % sW)
    a.I('v_add3_u32 v1, v1, v2, s3')
    a.I('v_lshrrev_b32 v2, 5, v0')
    a.I('v_mul_u32_u24 v2, 2560, v2')
    a.I('v_and_b32 v3, 31, v0')
    a.I('v_lshl_add_u32 v2, v3, 4, v2')
    a.I('s_lshl_b32 %s, %s, 2' % (sT[1], sT[1]))
    a.I('s_add_u32 %s, %s, %s' % (sT[1], sT[1], sW))
    a.I('s_mul_i32 %s, %s, 276480' % (sT[1], sT[1]))
    a.I('s_mul_i32 %s, %s, 5120' % (sT[0], sT[0]))
    a.I('s_add_u32 %s, %s, %s' % (sT[0], sT[0], sT[1]))
    a.I('s_add_u32 %s, %s, 0x%x' % (sT[0], sT[0], WDP))
    a.wait_vm('d')
    a.I('s_barrier')
    for n in range(5):
        for rd in range(2):
            a.I('ds_read_b64_tr_b16 %s, v1 offset:%d' % (vr(8 + 4 * n + 2 * rd, 2), rd * 2560 + n * 8))
    for n in range(5):
        a.I('buffer_store_dwordx4 %s, v2, %s, %s offen offset:%d sc1' % (vr(8 + 4 * n, 4), WS, sT[0], n * 512))
    stamp_flush(a, 2)
    a.label('prep_end')
    a.I('s_endpgm')


def k_ka(a):
    entry(a, 'ka_kernel', 256, 1, 4, [], 'ka_end')
    stamp(a, 4, 0, (126, 127, 0))
    PK, X, RW = 18, 28, 48
    tile_xr_addr(a, X, X + 1, X + 2)
    tile_blk_soff(a, sT[8], sLB, oXA)
    a.I('buffer_load_dwordx4 %s, v%d, %s, %s offen' % (vr(PK, 4), X, WS, sT[8]))
    a.I('buffer_load_dwordx4 %s, v%d, %s, %s offen offset:128' % (vr(PK + 4, 4), X, WS, sT[8]))
    a.I('buffer_load_dwordx2 %s, v%d, %s, %s offen' % (vr(PK + 8, 2), X + 1, WS, sT[8]))
    stats_soff(a, sT[9], sLB)
    a.I('v_and_b32 v1, 15, v0')
    a.I('v_lshlrev_b32 v1, 3, v1')
    a.I('v_lshrrev_b32 v2, 4, v0')
    a.I('v_lshl_add_u32 v1, v2, 8, v1')
    a.I('buffer_load_dwordx2 %s, v1, %s, %s offen' % (vr(RW + 70, 2), WS, sT[9]))
    a.I('buffer_load_dwordx2 %s, v1, %s, %s offen offset:128' % (vr(RW + 72, 2), WS, sT[9]))
    atail_setup(a, sLB, 0)
    a.I('v_add_f32 v%d, v%d, v%d' % (RW + 70, RW + 70, RW + 72))
    a.I('v_add_f32 v%d, v%d, v%d' % (RW + 71, RW + 71, RW + 73))
    quad_reduce(a, RW + 70, RW + 71, RW + 72)
    a.ext(unpack20(PK, lambda i: X + i))
    atail_main(a, X, RW + 70, RW + 71, RW)
    stamp_flush(a, 2)
    a.label('ka_end')
    a.I('s_endpgm')


def stats_soff(a, sd, sbase):
    a.I('s_lshl_b32 %s, %s, 1' % (sd, sG))
    a.I('s_add_u32 %s, %s, %s' % (sd, sd, sHB))
    a.I('s_lshl_b32 %s, %s, 2' % (sd, sd))
    a.I('s_add_u32 %s, %s, %s' % (sd, sd, sW))
    a.I('s_lshl_b32 %s, %s, 10' % (sd, sd))
    a.I('s_add_u32 %s, %s, %s' % (sd, sd, sbase))
    a.I('s_add_u32 %s, %s, 0x%x' % (sd, sd, oST))


def quad_reduce(a, r0, r1, t):
    for op in ('v_permlane16_swap_b32', 'v_permlane32_swap_b32'):
        a.I('v_mov_b32 v%d, v%d' % (t, r0))
        a.I('v_mov_b32 v%d, v%d' % (t + 1, r1))
        a.I('%s v%d, v%d' % (op, r0, t))
        a.I('%s v%d, v%d' % (op, r1, t + 1))
        a.I('v_add_f32 v%d, v%d, v%d' % (r0, r0, t))
        a.I('v_add_f32 v%d, v%d, v%d' % (r1, r1, t + 1))


L_G, L_V, L_X, L_Z = 0, 81920, 106496, 116736
KB_LDS = 126976


def kb_body(a, launch):
    FS, TA, TB, AP, AM = 16, 24, 88, 136, 152
    WA, WD = 168, 208
    vRS = (1, 2)
    vVW = (3, 4)
    vVR = (5, 6, 7, 8)
    vA0, vA2 = 9, 10
    vZS = (11, 12, 13)
    vL16 = 14
    T = 248
    stamp(a, launch, 0)
    a.I('s_lshr_b32 %s, %s, 2' % (sT[0], sMU))
    a.I('s_lshl_b32 %s, %s, 2' % (sT[1], sG))
    a.I('s_add_u32 %s, %s, %s' % (sT[1], sT[1], sT[0]))
    a.I('s_and_b32 %s, %s, 3' % (sT[2], sMU))
    a.I('s_and_b32 s3, %s, 1' % sT[0])
    a.I('s_lshl_b32 s3, s3, 5')
    a.I('s_lshr_b32 %s, %s, 1' % (sT[0], sT[0]))
    a.I('s_lshl_b32 %s, %s, 4' % (sT[0], sT[0]))
    a.I('s_add_u32 %s, %s, s3' % (sT[0], sT[0]))
    a.I('s_add_u32 %s, %s, %s' % (sT[0], sT[0], sG))
    a.I('s_sub_u32 s3, 64, %s' % sT[0])
    a.I('s_min_u32 s3, s3, %s' % sT[0])
    a.I('s_and_b32 s3, s3, 31')
    a.I('s_mul_i32 s3, s3, 81920')
    a.I('s_add_u32 s3, s3, %s' % sLB)
    a.I('v_lshlrev_b32 v%d, 4, v0' % vL16)
    a.I('v_add_u32 v%d, s3, v%d' % (T, vL16))
    a.I('s_mul_i32 %s, %s, 10240' % (sT[3], sW))
    a.I('s_lshl_b32 %s, %s, 2' % (sT[4], sT[1]))
    a.I('s_add_u32 %s, %s, %s' % (sT[4], sT[4], sT[2]))
    a.I('s_mul_i32 %s, %s, 10240' % (sT[4], sT[4]))
    a.I('s_add_u32 %s, %s, %s' % (sT[4], sT[4], sLB))
    a.I('s_add_u32 s3, %s, 0x%x' % (sT[4], oXA - L_X))
    a.I('v_add_u32 v%d, s3, v%d' % (T + 1, vL16))
    a.I('s_mul_i32 %s, %s, 2560' % (sT[5], sW))

    def gdma(hf):
        for i in range(10):
            if i % 4 == 0:
                a.I('s_add_u32 m0, %s, %d' % (sT[3], hf * 40960 + i * 1024))
            a.I('buffer_load_dwordx4 v%d, %s, m0 offen offset:%d lds' % (T, WS, (i % 4) * 1024), tag='g%d' % hf)
    gdma(0)
    a.I('s_add_u32 m0, %s, %d' % (sT[5], L_X))
    a.I('buffer_load_dwordx4 v%d, %s, m0 offen lds' % (T + 1, WS), tag='g0')
    a.I('buffer_load_dwordx4 v%d, %s, m0 offen offset:1024 lds' % (T + 1, WS), tag='g0')
    a.I('s_mov_b32 exec_hi, 0')
    a.I('buffer_load_dwordx4 v%d, %s, m0 offen offset:2048 lds' % (T + 1, WS), tag='g0')
    a.I('s_mov_b32 exec_hi, -1')
    gdma(1)

    a.I('s_cmp_lt_u32 %s, 32' % sT[0])
    a.I('s_cselect_b32 %s, %s, %s' % (sT[6], fl(-0.25), '0'))
    a.I('s_cmp_gt_u32 %s, 32' % sT[0])
    a.I('s_cselect_b32 %s, %s, %s' % (sT[6], fl(0.25), sT[6]))
    a.I('s_cmp_eq_u32 %s, 0' % sT[0])
    a.I('s_cselect_b32 %s, 0xffff, -1' % sT[7])
    a.I('s_cmp_eq_u32 %s, 32' % sT[0])
    a.I('s_cselect_b32 %s, 0xffff0000, %s' % (sT[7], sT[7]))
    a.I('s_lshl_b32 s3, %s, 9' % sT[2])
    a.I('s_add_u32 s3, s3, %s' % sT[0])
    a.I('v_bfe_u32 v%d, v0, 1, 3' % T)
    a.I('v_lshl_add_u32 v%d, v%d, 6, s3' % (T, T))
    a.I('v_cvt_f32_u32 v%d, v%d' % (T, T))
    a.I('v_mul_f32 v%d, %s, v%d' % (T, fl(1.0 / 2048), T))
    a.I('v_lshrrev_b32 v%d, 4, v0' % (T + 1))
    a.I('v_cvt_f32_u32 v%d, v%d' % (T + 5, T + 1))
    a.I('v_add_f32 v%d, v%d, v%d' % (T + 1, T + 5, T + 5))
    a.I('v_and_b32 v%d, 1, v0' % (T + 2))
    a.I('v_cvt_f32_u32 v%d, v%d' % (T + 2, T + 2))
    a.I('v_mul_f32 v%d, %s, v%d' % (T + 2, fl(0.25), T + 2))
    a.I('v_fma_f32 v%d, v%d, v%d, v%d' % (T + 1, T, T + 1, T + 2))
    for ks in range(2):
        for p in range(4):
            k = 16 * ks + 8 * (p >> 1) + (p & 1)
            a.I('v_fmamk_f32 v%d, v%d, %s, v%d' % (T + 2, T, fl(k), T + 1))
            a.I('v_add_f32 v%d, %s, v%d' % (T + 3, sT[6], T + 2))
            a.I('v_cos_f32 v%d, v%d' % (T + 2, T + 2))
            a.I('v_cos_f32 v%d, v%d' % (T + 3, T + 3))
            a.I('v_cvt_pk_bf16_f32 v%d, v%d, v%d' % (T + 2, T + 2, T + 3))
            a.I('v_and_b32 v%d, %s, v%d' % (FS + 4 * ks + p, sT[7], T + 2))
    a.I('v_lshrrev_b32 v%d, 3, v0' % T)
    a.I('v_mul_u32_u24 v%d, 2560, v%d' % (T + 1, T))
    a.I('v_bfe_u32 v%d, v0, 2, 1' % (T + 2))
    a.I('v_lshl_add_u32 v%d, v%d, 3, v%d' % (T + 1, T + 2, T + 1))
    a.I('v_and_b32 v%d, 3, v0' % (T + 2))
    a.I('v_lshl_add_u32 v%d, v%d, 7, v%d' % (T + 1, T + 2, T + 1))
    a.I('v_and_b32 v%d, 3, v%d' % (T, T))
    a.I('v_and_b32 v%d, 2, v0' % (T + 2))
    a.I('v_lshl_or_b32 v%d, v%d, 1, v%d' % (T, T + 2, T))
    a.I('s_lshl_b32 s3, %s, 1' % sW)
    a.I('v_xor_b32 v%d, s3, v%d' % (T, T))
    a.I('v_lshl_add_u32 v%d, v%d, 4, v%d' % (vRS[0], T, T + 1))
    a.I('v_xor_b32 v%d, 16, v%d' % (vRS[1], vRS[0]))
    a.I('v_and_b32 v%d, 15, v0' % T)
    a.I('v_cvt_f32_u32 v%d, v%d' % (T, T))
    a.I('v_mul_f32 v%d, %s, v%d' % (T, fl(1.0 / 640), T))
    a.I('s_lshl_b32 s3, %s, 3' % sW)
    a.I('v_cvt_f32_u32 v%d, s3' % (T + 1))
    a.I('v_fmamk_f32 v%d, v%d, %s, v%d' % (T + 1, T + 5, fl(32), T + 1))
    a.I('v_mul_f32 v%d, v%d, v%d' % (T + 1, T, T + 1))
    for ib in range(8):
        C, Sn = TA + 8 * ib, TA + 8 * ib + 4
        for p in range(2):
            a.I('v_fmamk_f32 v%d, v%d, %s, v%d' % (T + 2, T, fl(256 * p + ib), T + 1))
            a.I('v_fmamk_f32 v%d, v%d, %s, v%d' % (T + 3, T, fl(256 * p + 128 + ib), T + 1))
            a.I('v_cos_f32 v%d, v%d' % (C + p, T + 2))
            a.I('v_cos_f32 v%d, v%d' % (T + 4, T + 3))
            a.I('v_sin_f32 v%d, v%d' % (T + 2, T + 2))
            a.I('v_sin_f32 v%d, v%d' % (T + 3, T + 3))
            a.I('v_cvt_pk_bf16_f32 v%d, v%d, v%d' % (C + p, C + p, T + 4))
            a.I('v_cvt_pk_bf16_f32 v%d, v%d, v%d' % (Sn + p, T + 2, T + 3))
        a.I('v_fmamk_f32 v%d, v%d, %s, v%d' % (T + 2, T, fl(512 + ib), T + 1))
        a.I('v_mov_b32 v%d, 0' % (C + 3))
        a.I('v_cos_f32 v%d, v%d' % (T + 3, T + 2))
        a.I('v_sin_f32 v%d, v%d' % (T + 2, T + 2))
        a.I('v_mov_b32 v%d, 0' % (Sn + 3))
        a.I('v_cvt_pk_bf16_f32 v%d, v%d, 0' % (C + 2, T + 3))
        a.I('v_cvt_pk_bf16_f32 v%d, v%d, 0' % (Sn + 2, T + 2))
    a.I('v_lshrrev_b32 v%d, 5, v0' % (T + 5))
    a.I('v_lshlrev_b32 v%d, 3, v%d' % (T + 5, T + 5))
    a.I('v_cvt_f32_u32 v%d, v%d' % (T + 5, T + 5))
    for mi in range(2):
        a.I('v_and_b32 v%d, 31, v0' % T)
        if mi:
            a.I('v_add_u32 v%d, 1, v%d' % (T, T))
        a.I('v_cvt_f32_u32 v%d, v%d' % (T, T))
        a.I('v_mul_f32 v%d, %s, v%d' % (T, fl(1.0 / 32), T))
        a.I('v_mul_f32 v%d, v%d, v%d' % (T + 1, T, T + 5))
        for wh in range(2):
            for p in range(4):
                c, s, ng = TB + 24 * mi + 4 * wh + p, TB + 24 * mi + 8 + 4 * wh + p, TB + 24 * mi + 16 + 4 * wh + p
                a.I('v_fmamk_f32 v%d, v%d, %s, v%d' % (T + 2, T, fl(16 * wh + 2 * p), T + 1))
                a.I('v_add_f32 v%d, v%d, v%d' % (T + 3, T + 2, T))
                a.I('v_cos_f32 v%d, v%d' % (c, T + 2))
                a.I('v_cos_f32 v%d, v%d' % (T + 4, T + 3))
                a.I('v_sin_f32 v%d, v%d' % (T + 2, T + 2))
                a.I('v_sin_f32 v%d, v%d' % (T + 3, T + 3))
                a.I('v_cvt_pk_bf16_f32 v%d, v%d, v%d' % (c, c, T + 4))
                a.I('v_cvt_pk_bf16_f32 v%d, v%d, v%d' % (s, T + 2, T + 3))
                a.I('v_xor_b32 v%d, 0x80008000, v%d' % (ng, c if mi else s))
    a.I('v_bfe_u32 v%d, v0, 1, 3' % T)
    a.I('v_lshrrev_b32 v%d, 4, v0' % (T + 1))
    a.I('v_mul_u32_u24 v%d, 3, v%d' % (T + 2, T))
    a.I('v_add_u32 v%d, v%d, v%d' % (T + 2, T + 2, T + 1))
    a.I('v_lshlrev_b32 v%d, 9, v%d' % (T + 2, T + 2))
    a.I('v_and_b32 v%d, 3, v%d' % (T, T))
    a.I('v_lshlrev_b32 v%d, 1, v%d' % (T + 1, T + 1))
    a.I('v_xor_b32 v%d, v%d, v%d' % (T, T, T + 1))
    a.I('v_and_b32 v%d, 1, v0' % (T + 1))
    a.I('v_lshl_or_b32 v%d, v%d, 2, %s' % (T + 1, T + 1, sW))
    a.I('v_xor_b32 v%d, v%d, v%d' % (T, T, T + 1))
    a.I('v_lshl_add_u32 v%d, v%d, 4, v%d' % (T, T, T + 2))
    a.I('v_add_u32 v%d, 0x%x, v%d' % (vVW[0], L_V, T))
    a.I('v_xor_b32 v%d, 16, v%d' % (vVW[1], vVW[0]))
    a.I('v_bfe_u32 v%d, v0, 2, 1' % T)
    a.I('s_lshl_b32 s3, %s, 1' % sW)
    a.I('v_add_u32 v%d, s3, v%d' % (T, T))
    a.I('v_bfe_u32 v%d, v0, 3, 2' % (T + 1))
    a.I('v_cmp_eq_u32 vcc, 3, v%d' % (T + 1))
    a.I('v_and_b32 v%d, 3, v0' % (T + 2))
    a.I('v_cndmask_b32_e64 v%d, v%d, 0, vcc' % (T + 1, T + 1))
    a.I('v_lshl_add_u32 v%d, v%d, 2, v%d' % (T + 1, T + 1, T + 2))
    a.I('v_mad_u32_u24 v%d, v%d, 12, v%d' % (T + 2, T, T + 1))
    a.I('v_lshlrev_b32 v%d, 7, v%d' % (T + 2, T + 2))
    a.I('v_lshrrev_b32 v%d, 1, v%d' % (T + 1, T + 1))
    a.I('v_and_b32 v%d, 3, v%d' % (T, T))
    a.I('v_xor_b32 v%d, v%d, v%d' % (T, T, T + 1))
    a.I('v_lshrrev_b32 v%d, 5, v0' % (T + 1))
    a.I('v_xor_b32 v%d, v%d, v%d' % (T, T, T + 1))
    a.I('v_lshl_add_u32 v%d, v%d, 4, v%d' % (T, T, T + 2))
    a.I('v_add_u32 v%d, 0x%x, v%d' % (vVR[0], L_V, T))
    for k in range(1, 4):
        a.I('v_xor_b32 v%d, %d, v%d' % (vVR[k], 32 * k, vVR[0]))
    a.I('v_and_b32 v%d, 31, v0' % (T + 2))
    a.I('v_lshrrev_b32 v%d, 5, v0' % (T + 3))
    a.I('v_add_u32 v%d, s3, v%d' % (T + 3, T + 3))
    xr_addr(a, vA0, vA2, T + 2, T + 3, T)
    a.I('v_add_u32 v%d, 0x%x, v%d' % (vA0, L_X, vA0))
    a.I('v_add_u32 v%d, 0x%x, v%d' % (vA2, L_X, vA2))
    a.I('s_mul_i32 s3, %s, 20' % sW)
    for it in range(3):
        a.I('v_lshrrev_b32 v%d, 3, v0' % T)
        a.I('v_add_u32 v%d, s3, v%d' % (T, T))
        if it:
            a.I('v_add_u32 v%d, %d, v%d' % (T, 8 * it, T))
        a.I('v_mul_u32_u24 v%d, 205, v%d' % (T + 1, T))
        a.I('v_lshrrev_b32 v%d, 10, v%d' % (T + 1, T + 1))
        a.I('v_mul_u32_u24 v%d, 5, v%d' % (T + 2, T + 1))
        a.I('v_sub_u32 v%d, v%d, v%d' % (T + 2, T, T + 2))
        a.I('v_add_u32 v%d, 1, v%d' % (T + 2, T + 2))
        a.I('v_lshrrev_b32 v%d, 2, v%d' % (T + 2, T + 2))
        a.I('v_lshl_add_u32 v%d, v%d, 1, v%d' % (T + 1, T + 1, T + 2))
        a.I('v_xor_b32 v%d, v%d, v0' % (T + 1, T + 1))
        a.I('v_and_b32 v%d, 7, v%d' % (T + 1, T + 1))
        a.I('v_lshlrev_b32 v%d, 9, v%d' % (T, T))
        a.I('v_lshl_add_u32 v%d, v%d, 4, v%d' % (vZS[it], T + 1, T))
    a.I('s_mul_i32 %s, %s, 40960' % (sT[8], sT[1]))
    a.I('s_lshl_b32 s3, %s, 7' % sT[2])
    a.I('s_add_u32 %s, %s, s3' % (sT[8], sT[8]))
    a.I('s_add_u32 %s, %s, %s' % (sT[8], sT[8], sLB))
    a.I('s_add_u32 %s, %s, 0x%x' % (sT[8], sT[8], oZ))
    a.I('s_add_u32 %s, %s, %s' % (sT[9], sT[4], sT[5]))
    a.I('s_add_u32 %s, %s, 0x%x' % (sT[9], sT[9], oX1))
    a.I('v_add_u32 v15, %s, v%d' % (sT[5], vL16))
    a.I('v_add_u32 v15, 0x%x, v15' % L_X)
    stamp(a, launch, 1)

    XE = lambda e: AP + e if e < 10 else AM + 20 - e
    for ks in range(2):
        a.wait_vm('g%d' % ks)
        a.I('s_barrier')
        if ks == 1:
            stamp(a, launch, 2)
        for bg in range(2):
            for t in range(5):
                for rd in range(2):
                    a.I('ds_read_b64_tr_b16 %s, v%d offset:%d' % (vr(WA + 20 * bg + 4 * t + 2 * rd, 2), vRS[bg],
                                                               (16 * ks + 8 * rd) * 2560 + 512 * t))
        for i in range(10):
            a.I('v_mfma_f32_16x16x32_bf16 %s, %s, %s, %s' % (vr(WD + 4 * i, 4), vr(WA + 4 * i, 4), vr(FS + 4 * ks, 4),
                                                          vr(WD + 4 * i, 4) if ks else '0'))
        if ks == 0:
            a.I('ds_read_b128 %s, v%d' % (vr(T, 4), vA0))
            a.I('ds_read_b128 %s, v%d offset:128' % (vr(T + 4, 4), vA0))
            a.I('ds_read_b64 %s, v%d' % (vr(AP + 12, 2), vA2))
            for i in range(10):
                src = T + i if i < 8 else AP + 12 + i - 8
                a.I('v_lshlrev_b32 v%d, 16, v%d' % (XE(2 * i), src))
                a.I('v_and_b32 v%d, 0xffff0000, v%d' % (XE(2 * i + 1), src))
    for ib in range(8):
        d = lambda t: WD + 20 * (ib >> 2) + 4 * t + (ib & 3)
        u = WA + 4 * ib
        a.I('v_cvt_pk_bf16_f32 v%d, v%d, v%d' % (u, d(0), d(1)))
        a.I('v_cvt_pk_bf16_f32 v%d, v%d, v%d' % (u + 1, d(2), d(3)))
        a.I('v_cvt_pk_bf16_f32 v%d, v%d, 0' % (u + 2, d(4)))
    PQ = [[WD + 4 * ib for ib in range(8)], [TA + 8 * ib for ib in range(8)]]
    for ib in range(8):
        a.I('v_mfma_f32_16x16x32_bf16 %s, %s, %s, 0' % (vr(PQ[0][ib], 4), vr(TA + 8 * ib, 4), vr(WA + 4 * ib, 4)))
    for ib in range(8):
        a.I('v_mfma_f32_16x16x32_bf16 %s, %s, %s, 0' % (vr(PQ[1][ib], 4), vr(TA + 8 * ib + 4, 4), vr(WA + 4 * ib, 4)))
    a.I('s_mov_b32 exec_hi, 0xffff')
    for pq in range(2):
        for r in range(4):
            t = (WA + 32, WA + 36, WD + 32, WD + 36)[r]
            for p in range(4):
                a.I('v_cvt_pk_bf16_f32 v%d, v%d, v%d' % (t + p, PQ[pq][2 * p] + r, PQ[pq][2 * p + 1] + r))
            a.I('ds_write_b128 v%d, %s offset:%d' % (vVW[r >> 1], vr(t, 4), pq * 12288 + r * 128))
    a.I('s_mov_b32 exec_hi, -1')
    a.I('s_waitcnt lgkmcnt(0)')
    a.I('s_barrier')
    for pq in range(2):
        for k in range(4):
            a.I('ds_read_b128 %s, v%d offset:%d' % (vr(WA + 16 * pq + 4 * k, 4), vVR[k], pq * 12288))
    for pq in range(2):
        for k in range(4):
            ri, wh = k >> 1, k & 1
            tp = ((0, 8), (16, 0))[pq][ri]
            tm = ((24, 32), (32, 40))[pq][ri]
            A = vr(WA + 16 * pq + 4 * k, 4)
            a.I('v_mfma_f32_32x32x16_bf16 %s, %s, %s, %s' % (vr(AP, 16), A, vr(TB + tp + 4 * wh, 4), vr(AP, 16)))
            a.I('v_mfma_f32_32x32x16_bf16 %s, %s, %s, %s' % (vr(AM, 16), A, vr(TB + tm + 4 * wh, 4), vr(AM, 16)))
    S = WD
    a.I('v_add_f32 v%d, v%d, v%d' % (S, XE(0), XE(1)))
    a.I('v_mul_f32 v%d, v%d, v%d' % (S + 1, XE(0), XE(0)))
    a.I('v_fmac_f32 v%d, v%d, v%d' % (S + 1, XE(1), XE(1)))
    for e in range(2, 20):
        a.I('v_add_f32 v%d, v%d, v%d' % (S, S, XE(e)))
        a.I('v_fmac_f32 v%d, v%d, v%d' % (S + 1, XE(e), XE(e)))
    pk = ['v_cvt_pk_bf16_f32 v%d, v%d, v%d' % (WA + i, XE(2 * i), XE(2 * i + 1)) for i in range(10)]
    red = []
    for m in ('quad_perm:[1,0,3,2]', 'quad_perm:[2,3,0,1]', 'row_half_mirror', 'row_mirror'):
        for i in range(2):
            red.append('v_add_f32_dpp v%d, v%d, v%d %s row_mask:0xf bank_mask:0xf' % (S + i, S + i, S + i, m))
    a.I(pk[0])
    a.I(pk[1])
    a.ext(weave(red, pk[2:], 0, 1.0))
    a.I('v_mov_b32 v%d, v%d' % (S + 2, S))
    a.I('v_mov_b32 v%d, v%d' % (S + 3, S + 1))
    a.I('ds_write_b128 v%d, %s' % (vA0, vr(WA, 4)))
    a.I('ds_write_b128 v%d, %s offset:128' % (vA0, vr(WA + 4, 4)))
    a.I('v_permlane16_swap_b32 v%d, v%d' % (S, S + 2))
    a.I('v_permlane16_swap_b32 v%d, v%d' % (S + 1, S + 3))
    a.I('v_add_f32 v%d, v%d, v%d' % (S, S, S + 2))
    a.I('v_add_f32 v%d, v%d, v%d' % (S + 1, S + 1, S + 3))
    a.I('ds_write_b64 v%d, %s' % (vA2, vr(WA + 8, 2)))
    ln_coef(a, S, S + 1, S + 2, S + 3, S + 4)
    ZP = WA + 12
    for i in range(10):
        a.I('v_fma_f32 v%d, v%d, v%d, v%d' % (XE(2 * i), XE(2 * i), S + 2, S + 3))
        a.I('v_fma_f32 v%d, v%d, v%d, v%d' % (XE(2 * i + 1), XE(2 * i + 1), S + 2, S + 3))
        a.I('v_cvt_pk_bf16_f32 v%d, v%d, v%d' % (ZP + i, XE(2 * i), XE(2 * i + 1)))
        if i == 3:
            a.I('ds_write_b128 v%d, %s offset:%d' % (vA0, vr(ZP, 4), L_Z - L_X))
        if i == 7:
            a.I('ds_write_b128 v%d, %s offset:%d' % (vA0, vr(ZP + 4, 4), L_Z - L_X + 128))
    a.I('ds_write_b64 v%d, %s offset:%d' % (vA2, vr(ZP + 8, 2), L_Z - L_X))
    a.I('s_waitcnt lgkmcnt(0)')
    a.I('s_barrier')
    for it in range(3):
        a.I('ds_read_b128 %s, v15 offset:%d' % (vr(WD + 4 * it, 4), L_Z - L_X + 1024 * it))
    for it in range(3):
        a.I('ds_read_b128 %s, v15 offset:%d' % (vr(WD + 12 + 4 * it, 4), 1024 * it))
    for it in range(2):
        a.I('buffer_store_dwordx4 %s, v%d, %s, %s offen sc1' % (vr(WD + 4 * it, 4), vZS[it], WS, sT[8]))
    a.I('s_mov_b32 exec_hi, 0')
    a.I('buffer_store_dwordx4 %s, v%d, %s, %s offen sc1' % (vr(WD + 8, 4), vZS[2], WS, sT[8]))
    a.I('buffer_store_dwordx4 %s, v%d, %s, %s offen offset:2048 sc1' % (vr(WD + 20, 4), vL16, WS, sT[9]))
    a.I('s_mov_b32 exec_hi, -1')
    for it in range(2):
        a.I('buffer_store_dwordx4 %s, v%d, %s, %s offen offset:%d sc1' % (vr(WD + 12 + 4 * it, 4), vL16, WS, sT[9], 1024 * it))
    stamp(a, launch, 3)
    stamp_flush(a, 5)


def g1_body(a, launch):
    ACC = [16 + 16 * i for i in range(5)]
    WB, NWB = 96, 6
    ET = 120
    vL16, vLD, vD = 1, (2, 3, 4), 5
    stamp(a, launch, 0)
    a.I('s_lshr_b32 %s, %s, 2' % (sT[0], sMU))
    a.I('s_mul_i32 %s, %s, 27' % (sT[0], sT[0]))
    a.I('s_and_b32 %s, %s, 3' % (sT[1], sMU))
    a.I('s_mul_i32 s3, %s, 7' % sT[1])
    a.I('s_add_u32 %s, %s, s3' % (sT[0], sT[0]))
    a.I('s_lshl_b32 %s, %s, 2' % (sT[2], sG))
    a.I('s_add_u32 %s, %s, %s' % (sT[2], sT[2], sW))
    a.I('s_mul_i32 %s, %s, 40960' % (sT[3], sT[2]))
    a.I('s_add_u32 %s, %s, %s' % (sT[3], sT[3], sLB))
    a.I('s_add_u32 %s, %s, 0x%x' % (sT[3], sT[3], oZ))
    a.I('s_mul_i32 %s, %s, 40960' % (sT[4], sW))
    a.I('s_mul_i32 s3, %s, 40960' % sT[0])
    a.I('v_lshlrev_b32 v%d, 4, v0' % vL16)
    a.I('v_add_u32 v%d, s3, v%d' % (vD, vL16))

    def load_k(k):
        o = []
        if k % 4 == 0:
            o.append('s_add_u32 m0, %s, %d' % (sT[4], k * 1024))
            o.append('s_add_u32 %s, %s, %d' % (sT[5], sT[3], k * 1024))
        o.append(Ins('buffer_load_dwordx4 v%d, %s, m0 offen offset:%d lds' % (vD, WS, (k % 4) * 1024), 'w%d' % (k // 5)))
        o.append('buffer_load_dwordx4 %s, v%d, %s, %s offen offset:%d' % (vr(4 * k, 4, 'a'), vL16, WS, sT[5], (k % 4) * 1024))
        return o
    PRE = 24
    for k in range(PRE):
        a.ext(load_k(k))
    for i in range(3):
        a.I('v_add_u32 v%d, 0x%x, v%d' % (vLD[i], 65536 * i, vL16))
    a.I('s_mul_i32 %s, %s, 110592' % (sT[6], sT[2]))
    a.I('s_lshl_b32 s3, %s, 10' % sT[0])
    a.I('s_add_u32 %s, %s, s3' % (sT[6], sT[6]))
    a.I('s_add_u32 %s, %s, %s' % (sT[6], sT[6], sLB))
    a.I('s_add_u32 %s, %s, 0x%x' % (sT[6], sT[6], oH))
    a.I('s_add_u32 %s, %s, 4096' % (sT[7], sT[6]))
    a.I('s_lshl_b32 s3, s2, 12')
    a.I('s_add_u32 s3, s3, 0x%x' % DUMP)
    a.I('s_cmp_eq_u32 %s, 3' % sT[1])
    a.I('s_cselect_b32 %s, s3, %s' % (sT[8], sT[7]))
    a.I('s_mul_i32 %s, %s, 30720' % (sT[9], sW))
    a.I('s_mov_b32 %s, %s' % (sT[10], fl(-1.4426950408889634)))

    def late_dma(p):
        o = []
        if p == 0:
            o.append('v_subrev_u32 v%d, %s, v%d' % (vD, sT[9], vD))
            o.append('v_add_u32 v%d, 0x%x, v%d' % (vD, 163840, vD))
        else:
            o.append('v_add_u32 v%d, 0x%x, v%d' % (vD, 30720, vD))
        for i in range(10):
            if i % 4 == 0:
                o.append('s_add_u32 m0, %s, %d' % (sT[4], p * 10240 + i * 1024))
            o.append(Ins('buffer_load_dwordx4 v%d, %s, m0 offen offset:%d lds' % (vD, WS, (i % 4) * 1024), 't%d' % (4 + p)))
        return o

    seq = [(t, k) for k in range(40) for t in range(4)] + [(t, k) for t in range(4, 7) for k in range(40)]
    accof = {0: 0, 1: 1, 2: 2, 3: 3, 4: 4, 5: 0, 6: 1}

    def ldsoff(t, k):
        return t * 40960 + k * 1024 if t < 4 else (k // 10) * 40960 + (t - 4) * 10240 + (k % 10) * 1024

    def rd(n):
        t, k = seq[n]
        o = []
        if t == 0 and k % 5 == 0:
            o += [('wait_vm', 'w%d' % (k // 5)), 's_barrier']
        if t >= 4 and k == 0:
            o += [('wait_vm', 't%d' % t), 's_barrier']
        off = ldsoff(t, k)
        o.append('ds_read_b128 %s, v%d offset:%d' % (vr(WB + 4 * (n % NWB), 4), vLD[off >> 16], off & 0xffff))
        return o

    def epi(t):
        A = ACC[accof[t]]
        o = []
        for r in range(8):
            o.append('v_mul_f32 v%d, %s, v%d' % (ET + r, sT[10], A + r))
        for r in range(8):
            o.append('v_exp_f32 v%d, v%d' % (ET + r, ET + r))
            o.append('v_mul_f32 v%d, v%d, v%d' % (A + 8 + r, A + r, A + 8 + r))
        for r in range(8):
            o.append('v_add_f32 v%d, 1.0, v%d' % (ET + r, ET + r))
        for r in range(8):
            o.append('v_rcp_f32 v%d, v%d' % (ET + r, ET + r))
        for r in range(8):
            o.append('v_mul_f32 v%d, v%d, v%d' % (A + 8 + r, A + 8 + r, ET + r))
        for p in range(4):
            o.append('v_cvt_pk_bf16_f32 v%d, v%d, v%d' % (ET + p, A + 8 + 2 * p, A + 9 + 2 * p))
        so = sT[6] if t < 4 else (sT[7] if t < 6 else sT[8])
        o.append('buffer_store_dwordx4 %s, v%d, %s, %s offen offset:%d sc1' % (vr(ET, 4), vL16, WS, so, (t % 4) * 1024))
        return o

    fill = {n: [] for n in range(len(seq))}

    def spread(lst, n0, n1):
        for i, x in enumerate(lst):
            fill[n0 + (i * (n1 - n0)) // len(lst)].append(x)
    for k in range(PRE, 40):
        spread(load_k(k), 4 * (k - PRE), 4 * (k - PRE) + 4)
    spread(late_dma(0), 66, 98)
    spread(late_dma(1), 102, 136)
    spread(late_dma(2), 142, 160)
    spread(epi(0) + epi(1), 162, 199)
    spread(epi(2) + epi(3), 200, 239)
    spread(epi(4) + epi(5), 242, 279)
    LA = 4
    for n in range(LA):
        a.ext(rd(n))
    for n, (t, k) in enumerate(seq):
        if n + LA < len(seq):
            a.ext(rd(n + LA))
        A = vr(ACC[accof[t]], 16)
        a.I('v_mfma_f32_32x32x16_bf16 %s, %s, %s, %s' % (A, vr(WB + 4 * (n % NWB), 4), vr(4 * k, 4, 'a'), A if k else '0'))
        if n in (0, 64, 160, 200, 240):
            stamp(a, launch, 1 + (0, 64, 160, 200, 240).index(n))
        a.ext(fill[n])
    stamp(a, launch, 6)
    a.ext(epi(6))
    stamp_flush(a, 8)


def g2_body(a, launch, last):
    wd_slots = [('v', 128 + 4 * i) for i in range(32)] + [('a', 160 + 4 * i) for i in range(24)] + [('a', 4 * i) for i in range(14)]
    h_slots = [('a', 56 + 4 * i) for i in range(26)] + [('v', 112 + 4 * i) for i in range(4)]
    R = lambda s: vr(s[1], 4, s[0])
    ACC = (20, 40)
    SUM, TMP, PK = 60, 80, 100
    vH = list(range(1, 9))
    vWd, vWd13, vA0, vA2, vP = 9, 10, 11, 12, (13, 14, 15)
    vPR, vO = 16, 17
    T = TMP
    st = (110, 111, 0)
    stamp(a, launch, 0, st)
    a.I('v_lshrrev_b32 v%d, 5, v0' % T)
    a.I('v_and_b32 v%d, 31, v0' % (T + 1))
    a.I('v_lshlrev_b32 v%d, 4, v%d' % (T + 1, T + 1))
    a.I('v_mul_u32_u24 v%d, 2560, v%d' % (vWd, T))
    a.I('v_add_u32 v%d, v%d, v%d' % (vWd, vWd, T + 1))
    a.I('v_lshl_add_u32 v%d, v%d, 31, v%d' % (vWd13, T, T + 1))
    a.I('s_mul_i32 %s, %s, 276480' % (sT[10], sJJ))
    a.I('s_mul_i32 s3, %s, %d' % (sW, 27 * 2560))
    a.I('s_add_u32 %s, %s, s3' % (sT[10], sT[10]))
    a.I('s_add_u32 %s, %s, 0x%x' % (sT[10], sT[10], WDP))
    for i in range(14):
        for n in range(5):
            a.I('buffer_load_dwordx4 %s, v%d, %s, %s offen offset:%d' % (R(wd_slots[5 * i + n]), vWd13 if i == 13 else vWd, WS, sT[10], 512 * n))
        if i < 13:
            a.I('s_add_u32 %s, %s, 5120' % (sT[10], sT[10]))
        if i == 0:
            tile_xr_addr(a, vA0, vA2, T + 4)
            tile_blk_soff(a, sT[11], sLB, oX1)
            a.I('buffer_load_dwordx4 %s, v%d, %s, %s offen' % (vr(PK, 4), vA0, WS, sT[11]))
            a.I('buffer_load_dwordx4 %s, v%d, %s, %s offen offset:128' % (vr(PK + 4, 4), vA0, WS, sT[11]))
            a.I('buffer_load_dwordx2 %s, v%d, %s, %s offen' % (vr(PK + 8, 2), vA2, WS, sT[11]))
        if i == 1:
            a.I('v_lshrrev_b32 v%d, 4, v0' % (T + 2))
            a.I('v_and_b32 v%d, 15, v0' % (T + 3))
            a.I('v_lshlrev_b32 v%d, 4, v%d' % (T + 3, T + 3))
            a.I('v_lshl_add_u32 v%d, v%d, 9, v%d' % (vH[0], T + 2, T + 3))
            for j in range(1, 7):
                a.I('v_add_u32 v%d, 0x%x, v%d' % (vH[j], 4096 * j, vH[0]))
            a.I('v_lshl_add_u32 v%d, v%d, 31, v%d' % (vH[7], T, vH[6]))
            a.I('s_lshl_b32 %s, %s, 1' % (sT[16], sG))
            a.I('s_add_u32 %s, %s, %s' % (sT[16], sT[16], sHB))
            a.I('s_mul_i32 %s, %s, %d' % (sT[16], sT[16], 2 * 110592))
            a.I('s_mul_i32 s3, %s, %d' % (sW, 27 * 1024))
            a.I('s_add_u32 %s, %s, s3' % (sT[16], sT[16]))
            a.I('s_add_u32 %s, %s, %s' % (sT[16], sT[16], sLB))
            a.I('s_add_u32 %s, %s, 0x%x' % (sT[16], sT[16], oH))
            a.I('v_lshlrev_b32 v%d, 4, v0' % (T + 2))
            for p in range(4):
                a.I('s_add_u32 %s, %s, %d' % (sT[17], sW, p + 1))
                a.I('s_and_b32 %s, %s, 3' % (sT[17], sT[17]))
                a.I('s_lshr_b32 s3, %s, 1' % sT[17])
                a.I('s_mul_i32 s3, s3, 110592')
                a.I('s_add_u32 %s, %s, s3' % (sT[12 + p], sT[16]))
                a.I('s_and_b32 s3, %s, 1' % sT[17])
                a.I('s_lshl_b32 s3, s3, 8')
                a.I('s_add_u32 %s, %s, s3' % (sT[12 + p], sT[12 + p]))
                a.I('s_mul_i32 s3, %s, 15360' % sT[17])
                if p < 3:
                    a.I('s_add_u32 s3, s3, %d' % (p * 5120))
                    a.I('v_add_u32 v%d, s3, v%d' % (vP[p], T + 2))
                else:
                    a.I('v_add_u32 v%d, s3, v%d' % (vPR, T + 2))

    def hload(f):
        p, i = divmod(f, 14)
        return 'buffer_load_dwordx4 %s, v%d, %s, %s offen offset:%d' % (R(h_slots[f % 30]), vH[7] if i == 13 else vH[i >> 1], WS, sT[12 + p], 2048 * (i & 1))
    for f in range(30):
        a.I(hload(f))
    if last:
        nat_lane_off(a, vO, T)
        row_nat_soff(a, sT[18])
        a.I('s_mul_i32 s3, %s, 160' % sJJ)
        a.I('s_add_u32 %s, %s, s3' % (sT[18], sT[18]))
    else:
        tile_blk_soff(a, sT[18], sLN, oXA)
        stats_soff(a, sT[19], sLN)
        a.I('s_lshl_b32 s3, %s, 7' % sJJ)
        a.I('s_add_u32 %s, %s, s3' % (sT[19], sT[19]))
        a.I('v_lshlrev_b32 v%d, 3, v0' % vO)
    a.ext(unpack20(PK, lambda i: SUM + i))

    fill = {n: [] for n in range(280)}

    def spread(lst, n0, n1):
        for i, x in enumerate(lst):
            fill[n0 + (i * (n1 - n0)) // len(lst)].append(x)
    for f in range(30, 56):
        fill[5 * (f - 30) + 5].append(hload(f))
    for p in range(3):
        spread(['ds_write_b128 v%d, %s offset:%d' % (vP[p], vr(ACC[p & 1] + 4 * n, 4), 1024 * n) for n in range(5)],
               70 * (p + 1) + 8, 70 * (p + 1) + 13)
    fill[226] += ['s_waitcnt lgkmcnt(0)', 's_barrier']
    rds = lambda p, b: ['ds_read_b128 %s, v%d offset:%d' % (vr(b + 4 * n, 4), vPR, p * 5120 + n * 1024) for n in range(5)]
    add = lambda b: ['v_add_f32 v%d, v%d, v%d' % (SUM + i, SUM + i, b + i) for i in range(20)]
    spread(rds(0, TMP) + rds(1, ACC[0]), 227, 237)
    spread(add(TMP), 238, 250)
    spread(rds(2, TMP) + add(ACC[0]), 250, 264)
    spread(add(TMP), 265, 278)
    n = 0
    for p in range(4):
        for i in range(14):
            for c in range(5):
                A = vr(ACC[p & 1] + 4 * c, 4)
                a.I('v_mfma_f32_16x16x32_bf16 %s, %s, %s, %s' % (A, R(wd_slots[5 * i + c]), R(h_slots[(14 * p + i) % 30]), A if i else '0'))
                if n in (0, 70, 140, 210):
                    stamp(a, launch, 1 + n // 70, st)
                a.ext(fill[n])
                n += 1
    stamp(a, launch, 5, st)
    a.ext(add(ACC[1]))
    for i in range(10):
        a.I('v_cvt_pk_bf16_f32 v%d, v%d, v%d' % (PK + i, SUM + 2 * i, SUM + 2 * i + 1))
    if last:
        a.I('buffer_store_dwordx4 %s, v%d, %s, %s offen' % (vr(PK, 4), vO, SA, sT[18]))
        a.I('buffer_store_dwordx4 %s, v%d, %s, %s offen offset:16' % (vr(PK + 4, 4), vO, SA, sT[18]))
        a.I('buffer_store_dwordx2 %s, v%d, %s, %s offen offset:32' % (vr(PK + 8, 2), vO, SA, sT[18]))
    else:
        a.I('buffer_store_dwordx4 %s, v%d, %s, %s offen' % (vr(PK, 4), vA0, WS, sT[18]))
        a.I('buffer_store_dwordx4 %s, v%d, %s, %s offen offset:128' % (vr(PK + 4, 4), vA0, WS, sT[18]))
        a.I('buffer_store_dwordx2 %s, v%d, %s, %s offen' % (vr(PK + 8, 2), vA2, WS, sT[18]))
        a.I('v_add_f32 v%d, v%d, v%d' % (T, SUM, SUM + 1))
        a.I('v_mul_f32 v%d, v%d, v%d' % (T + 1, SUM, SUM))
        a.I('v_fmac_f32 v%d, v%d, v%d' % (T + 1, SUM + 1, SUM + 1))
        for e in range(2, 20):
            a.I('v_add_f32 v%d, v%d, v%d' % (T, T, SUM + e))
            a.I('v_fmac_f32 v%d, v%d, v%d' % (T + 1, SUM + e, SUM + e))
        quad_reduce(a, T, T + 1, T + 2)
        a.I('s_mov_b32 exec_hi, 0')
        a.I('s_mov_b32 exec_lo, 0xffff')
        a.I('buffer_store_dwordx2 %s, v%d, %s, %s offen' % (vr(T, 2), vO, WS, sT[19]))
        a.I('s_mov_b64 exec, -1')
    stamp(a, launch, 6, st)
    stamp_flush(a, 8)


def two_entries(a, name, launches, body, ptrs=()):
    entry(a, name + '1_kernel', 256, 1, launches[1], list(ptrs), name + '_end')
    a.I('s_branch %s_body' % name)
    entry(a, name + '0_kernel', 256, 0, launches[0], list(ptrs), name + '_end')
    a.label(name + '_body')
    body(a)
    a.label(name + '_end')
    a.I('s_endpgm')


def main():
    a = Asm()
    launches = [('prep_kernel', 634, 20480), ('kb0_kernel', 256, KB_LDS), ('ga0_kernel', 256, 163840), ('gb0_kernel', 256, 61440),
                ('ka_kernel', 256, 10752), ('kb1_kernel', 256, KB_LDS), ('ga1_kernel', 256, 163840), ('gb1_kernel', 256, 61440)]
    head = ''.join('; @launch kernel=%s grid=(%d,1,1) block=(256,1,1) lds=%d\n' % l for l in launches)
    head += '.amdgcn_target "amdgcn-amd-amdhsa--gfx950"\n.text\n'
    k_prep(a)
    k_ka(a)
    two_entries(a, 'kb', (1, 5), lambda a: kb_body(a, 0))
    two_entries(a, 'ga', (2, 6), lambda a: g1_body(a, 0))
    for l in range(2):
        entry(a, 'gb%d_kernel' % l, 256, l, (3, 7)[l], [(8, 72, XB)] if l else [], 'gb%d_end' % l)
        g2_body(a, 0, l == 1)
        a.label('gb%d_end' % l)
        a.I('s_endpgm')
    tail = '.section .rodata,"a"\n'
    for n, v, ac in [('prep_kernel', 128, 128), ('ka_kernel', 128, 128), ('kb0_kernel', 256, 256), ('kb1_kernel', 256, 256),
                     ('ga0_kernel', 512, 256), ('ga1_kernel', 512, 256), ('gb0_kernel', 512, 256), ('gb1_kernel', 512, 256)]:
        tail += '.p2align 6\n' + kdesc(n, v, ac)
    sys.stdout.write(head + a.finalize() + tail)


if __name__ == '__main__':
    main()
```

```python
import re

_REG = re.compile(r'(?<![\w.])(-?)(?:abs\()?([vas])(?:(\d+)|\[(\d+):(\d+)\])')
TRANS = ('v_exp_f32', 'v_log_f32', 'v_rcp_f32', 'v_rsq_f32', 'v_sqrt_f32', 'v_sin_f32', 'v_cos_f32')


def regs_of(op):
    op = op.strip()
    out = set()
    if op in ('vcc', 'vcc_lo', 'vcc_hi'):
        return {'vcc'}
    if op in ('exec', 'exec_lo', 'exec_hi'):
        return {'exec'}
    if op == 'm0':
        return {'m0'}
    for m in _REG.finditer(op):
        k = m.group(2)
        if m.group(3) is not None:
            out.add(k + m.group(3))
        else:
            for i in range(int(m.group(4)), int(m.group(5)) + 1):
                out.add(k + str(i))
    return out


class Ins:
    __slots__ = ('text', 'op', 'ops', 'dst', 'src', 'kind', 'tag', 'passes', 'srcC', 'srcAB', 'data', 'dpp', 'dep')

    def __init__(self, text, tag=None):
        self.text = text
        self.tag = tag
        self.dep = None
        body = text.split(';')[0].strip()
        parts = body.split(None, 1)
        self.op = op = parts[0]
        rest = parts[1] if len(parts) > 1 else ''
        ops, depth, cur = [], 0, ''
        for ch in rest:
            if ch == '[':
                depth += 1
            if ch == ']':
                depth -= 1
            if ch == ',' and depth == 0:
                ops.append(cur.strip())
                cur = ''
            else:
                cur += ch
        if cur.strip():
            ops.append(cur.strip())
        mods = ''
        if ops:
            sp = ops[-1].split(None, 1)
            ops[-1] = sp[0]
            mods = sp[1] if len(sp) > 1 else ''
        self.ops = ops
        R = [regs_of(o) for o in ops]
        U = lambda l: set().union(*l) if l else set()
        self.passes = 0
        self.srcC = set()
        self.srcAB = set()
        self.data = set()
        self.dpp = ('_dpp' in op)
        ml = mods.split()
        if op.startswith('v_mfma'):
            self.kind = 'mfma'
            self.dst = R[0]
            self.srcAB = R[1] | R[2]
            self.srcC = R[3]
            self.src = self.srcAB | self.srcC
            self.passes = 8 if '32x32' in op else 4
        elif op.startswith('buffer_load') or op.startswith('global_load'):
            self.kind = 'vmem'
            if 'lds' in ml or '_lds_' in op:
                self.dst = set()
                self.src = U(R) | {'m0'}
            else:
                self.dst = R[0]
                self.src = U(R[1:])
        elif op.startswith('buffer_store') or op.startswith('buffer_atomic'):
            self.kind = 'vmem'
            self.dst = R[0] if (op.startswith('buffer_atomic') and 'sc0' in ml) else set()
            self.src = U(R)
            if 'x3' in op or 'x4' in op:
                self.data = R[0]
        elif op.startswith('global_store') or op.startswith('global_atomic'):
            self.kind = 'vmem'
            self.dst = set()
            self.src = U(R)
            if 'x3' in op or 'x4' in op:
                self.data = R[1]
        elif op.startswith('ds_'):
            self.kind = 'ds'
            if op.startswith('ds_write'):
                self.dst = set()
                self.src = U(R)
            else:
                self.dst = R[0]
                self.src = U(R[1:])
        elif op.startswith('s_load') or op.startswith('s_mem') or op.startswith('s_buffer_load'):
            self.kind = 'smem'
            self.dst = R[0]
            self.src = U(R[1:])
        elif op.startswith('s_atomic'):
            self.kind = 'smem'
            self.dst = R[0]
            self.src = U(R)
        elif op.startswith('v_'):
            self.kind = 'valu'
            if op.startswith('v_permlane') and 'swap' in op:
                self.dst = R[0] | R[1]
                self.src = R[0] | R[1]
            elif op.startswith('v_cmp'):
                self.dst = R[0]
                self.src = U(R[1:])
            elif '_co_' in op:
                self.dst = R[0] | R[1]
                self.src = U(R[2:])
            elif op == 'v_nop':
                self.dst = set()
                self.src = set()
            else:
                self.dst = R[0]
                self.src = U(R[1:])
                if op.startswith('v_fmac') or op.startswith('v_dot2c') or self.dpp or op.startswith('v_writelane'):
                    self.src = self.src | R[0]
        elif op.startswith('s_'):
            self.kind = 'salu'
            if op.startswith(('s_cmp', 's_cbranch', 's_branch', 's_waitcnt', 's_barrier', 's_nop', 's_endpgm',
                              's_sleep', 's_setprio', 's_bitcmp', 's_setpc')):
                self.dst = set()
                self.src = U(R)
            else:
                self.dst = R[0] if R else set()
                self.src = U(R[1:])
                if 'saveexec' in op:
                    self.dst = self.dst | {'exec'}
                if op.startswith(('s_addk', 's_mulk')):
                    self.src = self.src | R[0]
        else:
            raise ValueError('unknown op ' + text)


class Asm:
    def __init__(self):
        self.items = []

    def I(self, text, tag=None):
        for t in text.split('\n'):
            t = t.strip()
            if t:
                self.items.append(Ins(t, tag))

    def ext(self, lst):
        for x in lst:
            if isinstance(x, str):
                self.I(x)
            else:
                self.items.append(x)

    def raw(self, text):
        self.items.append(('raw', text))

    def label(self, name):
        self.items.append(('label', name))

    def wait_vm(self, tag):
        self.items.append(('wait_vm', tag))

    def wait_ds(self, tag):
        self.items.append(('wait_ds', tag))

    def reset(self):
        self.items.append(('reset',))

    def finalize(self):
        out = []
        hist = []
        vm, lg = [], []

        lastw = {}

        def emit(ins):
            if ins.dep is not None:
                for r in ins.dep.dst:
                    assert lastw.get(r) is ins.dep, 'stale %s for %s' % (r, ins.text)
            for r in ins.dst:
                lastw[r] = ins
            need = hazard(ins)
            while need > 0:
                n = min(need, 16)
                nop = Ins('s_nop %d' % (n - 1))
                out.append('    ' + nop.text)
                hist.append((nop, n))
                need -= n
            out.append('    ' + ins.text)
            st = 1
            if ins.op == 's_nop':
                st = int(ins.ops[0], 0) + 1
            hist.append((ins, st))
            if len(hist) > 40:
                del hist[:-30]

        def hazard(c):
            need = 0
            dist = 0
            for p, st in reversed(hist):
                if dist >= 20:
                    break
                req = 0
                if p.kind == 'valu':
                    vd = {r for r in p.dst if r[0] in 'va' and r != 'vcc'}
                    sd = p.dst - vd
                    isdot = p.op.startswith('v_dot')
                    if c.kind == 'mfma' and vd & c.src:
                        req = max(req, 3 if isdot else 2)
                    if c.kind == 'valu':
                        if c.dpp and vd & c.src:
                            req = max(req, 2)
                        if c.op.startswith('v_permlane') and vd & c.src:
                            req = max(req, 2)
                        if c.op.startswith(('v_readfirstlane', 'v_readlane')) and vd & c.src:
                            req = max(req, 1)
                        if p.op.startswith(TRANS) and vd & c.src:
                            req = max(req, 1)
                        if ('sdwa' in p.op or ('op_sel' in p.text and not p.op.startswith('v_pk_'))) and vd & (c.src | c.dst):
                            req = max(req, 1)
                        if sd & c.src or ('vcc' in sd and (c.op.startswith('v_cndmask') or 'addc' in c.op)):
                            req = max(req, 4 if c.op.startswith(('v_readlane', 'v_writelane')) else 2)
                    if isdot and vd & (c.src | c.dst) and c.kind != 'salu':
                        same = c.op == p.op
                        if not (same and vd == c.dst and not (vd & set().union(*[regs_of(o) for o in c.ops[1:3]]))):
                            req = max(req, 3)
                    if c.kind == 'vmem' and sd & c.src:
                        req = max(req, 5)
                    if c.kind in ('salu', 'smem') and sd & c.src:
                        req = max(req, 2)
                elif p.kind == 'mfma':
                    big = p.passes == 8
                    if c.kind == 'mfma':
                        if p.dst & c.srcAB:
                            req = max(req, 12 if big else 8)
                        if p.dst & c.srcC and not (p.dst == c.srcC and p.passes == c.passes):
                            req = max(req, 10 if big else 6)
                        if p.dst & c.dst and not (p.dst == c.srcC and p.passes == c.passes):
                            req = max(req, 10 if big else 6)
                    elif c.kind in ('valu', 'vmem', 'ds'):
                        if p.dst & (c.src | c.dst):
                            req = max(req, 12 if big else 8)
                        if p.srcC & c.dst:
                            req = max(req, 7 if big else 3)
                elif p.kind == 'salu':
                    if 'm0' in p.dst and c.kind == 'vmem' and 'm0' in c.src:
                        req = max(req, 1)
                elif p.kind == 'vmem':
                    if p.data & c.dst:
                        req = max(req, 2)
                need = max(need, req - dist)
                dist += st
            return need

        def do_wait(nvm, nlg):
            parts = []
            if nvm is not None:
                nvm = min(nvm, 62)
                parts.append('vmcnt(%d)' % nvm)
                del vm[:max(0, len(vm) - nvm)]
            if nlg is not None:
                nlg = min(nlg, 14)
                parts.append('lgkmcnt(%d)' % nlg)
                del lg[:max(0, len(lg) - nlg)]
            if parts:
                emit(Ins('s_waitcnt ' + ' '.join(parts)))

        def needed(q, pred):
            last = -1
            for i, e in enumerate(q):
                if pred(e):
                    last = i
            if last < 0:
                return None
            return len(q) - 1 - last

        for it in self.items:
            if isinstance(it, tuple):
                if it[0] == 'raw':
                    out.append(it[1])
                elif it[0] == 'label':
                    out.append(it[1] + ':')
                elif it[0] == 'reset':
                    vm.clear()
                    lg.clear()
                    hist.clear()
                elif it[0] == 'wait_vm':
                    do_wait(needed(vm, lambda e: e[1] == it[1]), None)
                elif it[0] == 'wait_both':
                    do_wait(needed(vm, lambda e: e[1] == it[1]), 0)
                elif it[0] == 'wait_ds':
                    n = needed(lg, lambda e: e[1] == it[1])
                    if n is not None and any(e[2] for e in lg):
                        n = 0
                    do_wait(None, n)
                continue
            ins = it
            if ins.op == 's_waitcnt':
                m = re.search(r'vmcnt\((\d+)\)', ins.text)
                if m:
                    del vm[:max(0, len(vm) - int(m.group(1)))]
                m = re.search(r'lgkmcnt\((\d+)\)', ins.text)
                if m:
                    n = int(m.group(1))
                    if n == 0 or not any(e[2] for e in lg):
                        del lg[:max(0, len(lg) - n)]
                emit(ins)
                continue
            touch = ins.src | ins.dst
            nvm = needed(vm, lambda e: e[0] & touch)
            nlg = needed(lg, lambda e: e[0] & touch)
            if nlg is not None and any(e[2] for e in lg):
                nlg = 0
            do_wait(nvm, nlg)
            emit(ins)
            if ins.kind == 'vmem':
                vm.append((ins.dst, ins.tag, False))
            elif ins.kind == 'ds':
                lg.append((ins.dst, ins.tag, False))
            elif ins.kind == 'smem':
                lg.append((ins.dst, ins.tag, True))
        return '\n'.join(out) + '\n'


def vr(b, n=1, k='v'):
    return '%s%d' % (k, b) if n == 1 else '%s[%d:%d]' % (k, b, b + n - 1)


def weave(main, fill, start=0, per=1.0):
    out = []
    fi = 0
    acc = 0.0
    for i, m in enumerate(main):
        out.append(m)
        if i >= start:
            acc += per
            while acc >= 1.0 - 1e-9 and fi < len(fill):
                out.append(fill[fi])
                fi += 1
                acc -= 1.0
    out.extend(fill[fi:])
    return out
```

```python
import struct, sys
from asmlib import Asm, Ins, vr, weave

STAMP = None
for _a in sys.argv:
    if _a.startswith('--stamp'):
        STAMP = _a.split('=')[1] if '=' in _a else 'A'


def opt(name, default):
    for x in sys.argv:
        if x.startswith('--%s=' % name):
            return type(default)(x.split('=')[1])
    return default


W1P, WDP = 0x0, 0x440000
LB0, LBS = 0x800000, 0x1400000
oG, oXA, oZ, oX1, oH, oST, oFL = 0x0, 0x280000, 0x500000, 0x780000, 0xA00000, 0x1100000, 0x1180000
STAMPS = 0x4000000
WS_BYTES = 0x10000000
XB = 2048 * 640 * 2
W1B = 640 * 1728 * 2
OOB = 0x80000000
LOG2E = 1.4426950408889634

WS, SA, SB = 's[4:7]', 's[8:11]', 's[12:15]'
sW, sG, sMU, sHB, sJJ, sLB, sLN, sLAST = 's16', 's17', 's18', 's19', 's20', 's21', 's22', 's23'
sT = ['s%d' % i for i in range(24, 50)]


def fl(x):
    return '0x%08x' % struct.unpack('<I', struct.pack('<f', x))[0]


def srd(a, base, lo, size):
    a.I('s_mov_b32 s%d, s%d' % (base, lo))
    a.I('s_and_b32 s%d, s%d, 0xffff' % (base + 1, lo + 1))
    a.I('s_mov_b32 s%d, 0x%x' % (base + 2, size))
    a.I('s_mov_b32 s%d, 0x20000' % (base + 3))


class Stamps:
    def __init__(self):
        self.n = 0

    def __call__(self, a, sets='A'):
        if not STAMP or STAMP not in sets:
            return
        i = self.n
        self.n += 1
        assert i < 8
        a.I('s_memrealtime s[%d:%d]' % (64 + 4 * i, 65 + 4 * i))
        a.I('s_memtime s[%d:%d]' % (66 + 4 * i, 67 + 4 * i))

    def flush(self, a):
        if not STAMP:
            return
        n0 = self.n
        a.I('s_waitcnt vmcnt(0)')
        self(a, STAMP)
        a.I('s_lshl_b32 s50, s2, 2')
        a.I('s_add_u32 s50, s50, %s' % sW)
        a.I('s_lshl_b32 s50, s50, 6')
        a.I('s_add_u32 s50, s50, s51')
        a.I('s_add_u32 s50, s50, 0x%x' % STAMPS)
        a.I('s_waitcnt lgkmcnt(0)')
        a.I('v_mov_b32 v1, 0')
        for i in range(self.n):
            a.I('v_mov_b32 v2, s%d' % (64 + 4 * i))
            a.I('v_mov_b32 v3, s%d' % (66 + 4 * i))
            a.I('buffer_store_dwordx2 v[2:3], v1, %s, s50 offen offset:%d' % (WS, 8 * i))
        self.n = n0


def entry(a, name, nwg, layer, launch, ptrs, end, first=None):
    a.raw('.globl %s\n.p2align 8\n.type %s,@function' % (name, name))
    a.label(name)
    a.reset()
    a.I('s_cmp_ge_u32 s2, %d' % nwg)
    a.I('s_cbranch_scc1 %s' % end)
    a.I('s_load_dwordx2 s[52:53], s[0:1], 88')
    for i, (b, off, sz) in enumerate(ptrs):
        a.I('s_load_dwordx2 s[%d:%d], s[0:1], %d' % (54 + 2 * i, 55 + 2 * i, off))
    if first:
        first(a)
    a.I('s_mov_b32 %s, 0x%x' % (sLB, LB0 + layer * LBS))
    a.I('s_mov_b32 %s, %d' % (sLAST, layer))
    if STAMP:
        a.I('s_mov_b32 s51, 0x%x' % (launch * 0x40000))


def decode(a):
    a.I('v_lshrrev_b32 v1, 6, v0')
    a.I('v_and_b32 v0, 63, v0')
    a.I('v_readfirstlane_b32 %s, v1' % sW)
    a.I('s_add_u32 %s, %s, 0x%x' % (sLN, sLB, LBS))
    arr = opt('arr', 0)
    if arr == 0:
        a.I('s_and_b32 %s, s2, 1' % sG)
        a.I('s_lshl_b32 %s, %s, 3' % (sG, sG))
        a.I('s_bfe_u32 s3, s2, 0x30003')
        a.I('s_or_b32 %s, %s, s3' % (sG, sG))
        a.I('s_bfe_u32 %s, s2, 0x20001' % sMU)
        a.I('s_lshl_b32 %s, %s, 2' % (sMU, sMU))
        a.I('s_bfe_u32 s3, s2, 0x20006')
        a.I('s_or_b32 %s, %s, s3' % (sMU, sMU))
        a.I('s_bfe_u32 %s, %s, 0x10002' % (sHB, sMU))
        a.I('s_lshr_b32 %s, %s, 3' % (sJJ, sMU))
        a.I('s_lshl_b32 %s, %s, 2' % (sJJ, sJJ))
        a.I('s_or_b32 %s, %s, s3' % (sJJ, sJJ))
    elif arr == 1:
        a.I('s_and_b32 %s, s2, 3' % sG)
        a.I('s_lshl_b32 %s, %s, 2' % (sG, sG))
        a.I('s_bfe_u32 s3, s2, 0x20003')
        a.I('s_or_b32 %s, %s, s3' % (sG, sG))
        a.I('s_bfe_u32 %s, s2, 0x10002' % sHB)
        a.I('s_bfe_u32 %s, s2, 0x30005' % sJJ)
        a.I('s_lshl_b32 %s, %s, 3' % (sMU, sHB))
        a.I('s_or_b32 %s, %s, %s' % (sMU, sMU, sJJ))
    else:
        a.I('s_and_b32 %s, s2, 15' % sG)
        a.I('s_bfe_u32 %s, s2, 0x40004' % sMU)
        a.I('s_lshr_b32 %s, %s, 3' % (sHB, sMU))
        a.I('s_and_b32 %s, %s, 7' % (sJJ, sMU))


def srds(a, ptrs):
    a.I('s_waitcnt lgkmcnt(0)')
    srd(a, 4, 52, WS_BYTES)
    for i, (b, off, sz) in enumerate(ptrs):
        srd(a, b, 54 + 2 * i, sz)


def kdesc(name, vgpr, acc):
    return '''.amdhsa_kernel %s
  .amdhsa_next_free_vgpr %d
  .amdhsa_next_free_sgpr %d
  .amdhsa_accum_offset %d
  .amdhsa_group_segment_fixed_size 0
  .amdhsa_kernarg_size 96
  .amdhsa_user_sgpr_count 2
  .amdhsa_user_sgpr_kernarg_segment_ptr 1
  .amdhsa_system_sgpr_workgroup_id_x 1
  .amdhsa_float_denorm_mode_32 3
.end_amdhsa_kernel
''' % (name, vgpr, 100 if STAMP else 64, acc)


def unpack(srcs, dst):
    o = []
    for i, s in enumerate(srcs):
        o.append('v_lshlrev_b32 v%d, 16, v%d' % (dst(2 * i), s))
        o.append('v_and_b32 v%d, 0xffff0000, v%d' % (dst(2 * i + 1), s))
    return o


def xr_addr(a, vA0, vA2, vm, vi, t):
    a.I('v_lshrrev_b32 v%d, 1, v%d' % (t, vm))
    a.I('v_mul_u32_u24 v%d, 640, v%d' % (t, t))
    a.I('v_and_b32 v%d, 1, v%d' % (t + 1, vm))
    a.I('v_and_b32 v%d, 7, v%d' % (vA0, vm))
    a.I('v_xor_b32 v%d, v%d, v%d' % (vA0, vA0, vi))
    a.I('v_lshl_add_u32 v%d, v%d, 4, v%d' % (vA0, vA0, t))
    a.I('v_and_b32 v%d, 6, v%d' % (vA2, vm))
    a.I('v_xor_b32 v%d, v%d, v%d' % (vA2, vA2, vi))
    a.I('v_lshl_add_u32 v%d, v%d, 4, v%d' % (vA2, vA2, t))
    a.I('v_lshl_add_u32 v%d, v%d, 3, v%d' % (vA2, t + 1, vA2))
    a.I('v_add_u32 v%d, 256, v%d' % (vA2, vA2))
    a.I('v_mul_u32_u24 v%d, 384, v%d' % (t + 1, t + 1))
    a.I('v_add_u32 v%d, v%d, v%d' % (vA0, vA0, t + 1))


def tile_xr_addr(a, vA0, vA2, t, st='s3'):
    a.I('v_lshrrev_b32 v%d, 4, v0' % (t + 2))
    a.I('s_lshl_b32 %s, %s, 2' % (st, sJJ))
    a.I('v_add_u32 v%d, %s, v%d' % (t + 2, st, t + 2))
    a.I('v_and_b32 v%d, 7, v0' % (t + 3))
    xr_addr(a, vA0, vA2, t + 2, t + 3, t)
    a.I('v_bfe_u32 v%d, v0, 3, 1' % t)
    a.I('v_mul_u32_u24 v%d, 10240, v%d' % (t, t))
    a.I('v_add_u32 v%d, v%d, v%d' % (vA0, vA0, t))
    a.I('v_add_u32 v%d, v%d, v%d' % (vA2, vA2, t))


def set_wave_index(a, sd):
    a.I('s_lshl_b32 %s, %s, 1' % (sd, sG))
    a.I('s_add_u32 %s, %s, %s' % (sd, sd, sHB))
    a.I('s_lshl_b32 %s, %s, 2' % (sd, sd))
    a.I('s_add_u32 %s, %s, %s' % (sd, sd, sW))


def tile_blk_soff(a, sd, sbase, off):
    set_wave_index(a, sd)
    a.I('s_mul_i32 %s, %s, 20480' % (sd, sd))
    a.I('s_add_u32 %s, %s, %s' % (sd, sd, sbase))
    a.I('s_add_u32 %s, %s, 0x%x' % (sd, sd, off))


def stats_soff(a, sd, sbase):
    set_wave_index(a, sd)
    a.I('s_lshl_b32 %s, %s, 10' % (sd, sd))
    a.I('s_add_u32 %s, %s, %s' % (sd, sd, sbase))
    a.I('s_add_u32 %s, %s, 0x%x' % (sd, sd, oST))


def row_nat_soff(a, sd, st='s3'):
    a.I('s_lshl_b32 %s, %s, 4' % (sd, sHB))
    a.I('s_add_u32 %s, %s, %s' % (sd, sd, sG))
    a.I('s_lshr_b32 %s, %s, 1' % (st, sW))
    a.I('s_lshl_b32 %s, %s, 5' % (st, st))
    a.I('s_add_u32 %s, %s, %s' % (sd, sd, st))
    a.I('s_and_b32 %s, %s, 1' % (st, sW))
    a.I('s_lshl_b32 %s, %s, 10' % (st, st))
    a.I('s_add_u32 %s, %s, %s' % (sd, sd, st))
    a.I('s_mul_i32 %s, %s, 1280' % (sd, sd))


def ln_coef(a, vS, vQ, vR, vN, t, scale=None):
    a.I('v_mul_f32 v%d, %s, v%d' % (vN, fl(-1.0 / 640), vS))
    a.I('v_mul_f32 v%d, %s, v%d' % (vR, fl(1.0 / 640), vQ))
    a.I('v_fma_f32 v%d, -v%d, v%d, v%d' % (vR, vN, vN, vR))
    a.I('v_max_f32 v%d, 0, v%d' % (vR, vR))
    a.I('v_add_f32 v%d, %s, v%d' % (vR, fl(1e-5), vR))
    a.I('v_rsq_f32 v%d, v%d' % (vR, vR))
    if scale:
        a.I('v_mul_f32 v%d, %s, v%d' % (vR, fl(scale), vR))
    a.I('v_mul_f32 v%d, v%d, v%d' % (vN, vN, vR))


def quad_reduce(a, r0, r1, t):
    for op in ('v_permlane16_swap_b32', 'v_permlane32_swap_b32'):
        a.I('v_mov_b32 v%d, v%d' % (t, r0))
        a.I('v_mov_b32 v%d, v%d' % (t + 1, r1))
        a.I('%s v%d, v%d' % (op, r0, t))
        a.I('%s v%d, v%d' % (op, r1, t + 1))
        a.I('v_add_f32 v%d, v%d, v%d' % (r0, r0, t))
        a.I('v_add_f32 v%d, v%d, v%d' % (r1, r1, t + 1))


def xa_store(a, PK, vA0, vA2, so, t):
    a.I('buffer_store_dwordx4 %s, v%d, %s, %s offen sc1' % (vr(PK, 4), vA0, WS, so))
    a.I('buffer_store_dwordx4 %s, v%d, %s, %s offen offset:128 sc1' % (vr(PK + 4, 4), vA0, WS, so))
    a.I('v_mov_b32 v%d, v%d' % (t, PK + 8))
    a.I('v_mov_b32 v%d, v%d' % (t + 1, PK + 9))
    a.I('v_mov_b32 v%d, v%d' % (t + 2, PK + 8))
    a.I('v_mov_b32 v%d, v%d' % (t + 3, PK + 9))
    a.I('v_bfe_u32 v%d, v0, 4, 1' % (t + 4))
    a.I('v_lshl_add_u32 v%d, v%d, 31, v%d' % (t + 4, t + 4, vA2))
    a.I('v_permlane16_swap_b32 v%d, v%d' % (t, t + 2))
    a.I('v_permlane16_swap_b32 v%d, v%d' % (t + 1, t + 3))
    a.I('buffer_store_dwordx4 %s, v%d, %s, %s offen sc1' % (vr(t, 4), t + 4, WS, so))


class AT:
    def __init__(self, base, lds_z, lds_b):
        self.F = base
        self.ZW, self.ZR, self.BW = base + 8, base + 9, base + 10
        self.BR = (base + 11, base + 12, base + 13)
        self.GA = (base + 14, base + 15, base + 16)
        self.T = base + 17
        self.lds_z, self.lds_b = lds_z, lds_b

    def setup(self, a, sOut, sGo):
        T = self.T
        a.I('v_and_b32 v%d, 15, v0' % T)
        a.I('v_lshrrev_b32 v%d, 1, v%d' % (T + 1, T))
        a.I('v_mul_u32_u24 v%d, 336, v%d' % (self.BW, T + 1))
        a.I('s_lshl_b32 s3, %s, 3' % sW)
        a.I('v_add_u32 v%d, s3, v%d' % (T + 1, T + 1))
        a.I('v_and_b32 v%d, 1, v0' % (T + 2))
        a.I('v_lshl_add_u32 v%d, v%d, 3, v%d' % (self.BW, T + 2, self.BW))
        a.I('v_cvt_f32_u32 v%d, v%d' % (T + 3, T + 2))
        a.I('v_mul_f32 v%d, %s, v%d' % (T + 3, fl(0.25), T + 3))
        a.I('v_cmp_eq_u32 vcc, 0, v%d' % (T + 1))
        a.I('v_lshlrev_b32 v%d, 5, v%d' % (T + 2, T + 2))
        a.I('v_lshrrev_b32 v%d, 5, v0' % (T + 4))
        a.I('v_cndmask_b32 v%d, v%d, v%d, vcc' % (T + 1, T + 1, T + 2))
        a.I('v_cndmask_b32_e64 v%d, v%d, 0, vcc' % (T + 3, T + 3))
        a.I('v_cvt_f32_u32 v%d, v%d' % (T + 1, T + 1))
        a.I('v_mul_f32 v%d, %s, v%d' % (T + 1, fl(1.0 / 64), T + 1))
        a.I('v_bfe_u32 v%d, v0, 4, 1' % (T + 2))
        a.I('v_lshlrev_b32 v%d, 5, v%d' % (T + 2, T + 2))
        a.I('v_lshl_add_u32 v%d, v%d, 1, v%d' % (T + 2, T + 4, T + 2))
        a.I('v_cvt_f32_u32 v%d, v%d' % (T + 2, T + 2))
        a.I('v_fma_f32 v%d, v%d, v%d, v%d' % (T + 3, T + 1, T + 2, T + 3))
        prev = None
        for ks in range(2):
            for p in range(4):
                d = self.F + 4 * ks + p
                tt = T + 2 + 2 * (p & 1)
                k = lambda j: 8 * (j & 3) + 4 * (j >> 2) + ks
                a.I('v_fmamk_f32 v%d, v%d, %s, v%d' % (d, T + 1, fl(k(2 * p)), T + 3))
                a.I('v_fmamk_f32 v%d, v%d, %s, v%d' % (tt, T + 1, fl(k(2 * p + 1)), T + 3))
                if prev:
                    a.I(prev)
                a.I('v_cos_f32 v%d, v%d' % (d, d))
                a.I('v_cos_f32 v%d, v%d' % (tt, tt))
                prev = 'v_cvt_pk_bf16_f32 v%d, v%d, v%d' % (d, d, tt)
        a.I('s_lshl_b32 s3, %s, 4' % sW)
        a.I(prev)
        a.I('v_add_u32 v%d, s3, v%d' % (T, T))
        a.I('v_mul_u32_u24 v%d, 168, v%d' % (self.ZW, T))
        a.I('v_lshrrev_b32 v%d, 4, v0' % T)
        a.I('v_mad_u32_u24 v%d, v%d, 40, v%d' % (self.ZW, T, self.ZW))
        a.I('v_and_b32 v%d, 28, v0' % (T + 1))
        a.I('v_lshrrev_b32 v%d, 5, v0' % (T + 2))
        a.I('v_add_u32 v%d, v%d, v%d' % (T + 1, T + 1, T + 2))
        a.I('v_mul_u32_u24 v%d, 168, v%d' % (T + 1, T + 1))
        a.I('v_and_b32 v%d, 3, v0' % (T + 2))
        a.I('v_lshl_add_u32 v%d, v%d, 3, v%d' % (self.ZR, T + 2, T + 1))
        if self.lds_z:
            a.I('v_add_u32 v%d, 0x%x, v%d' % (self.ZW, self.lds_z, self.ZW))
            a.I('v_add_u32 v%d, 0x%x, v%d' % (self.ZR, self.lds_z, self.ZR))
        a.I('s_and_b32 s3, %s, 3' % sG)
        a.I('v_xor_b32 v%d, s3, v%d' % (T, T))
        a.I('v_lshl_add_u32 v%d, v%d, 4, v%d' % (self.BW, T, self.BW))
        a.I('s_mul_i32 s3, %s, 2688' % sW)
        a.I('s_add_u32 s3, s3, 0x%x' % self.lds_b)
        a.I('v_add_u32 v%d, s3, v%d' % (self.BW, self.BW))
        a.I('s_mul_i32 %s, %s, 5' % (sGo, sJJ))
        for it in range(3):
            a.I('v_add_u32 v%d, %d, v0' % (T, 64 * it))
            a.I('v_mul_u32_u24 v%d, 205, v%d' % (T + 1, T))
            a.I('v_lshrrev_b32 v%d, 12, v%d' % (T + 1, T + 1))
            a.I('v_add_u32 v%d, v%d, v%d' % (T + 2, T, T + 1))
            a.I('v_lshl_add_u32 v%d, v%d, 4, s3' % (self.BR[it], T + 2))
            a.I('v_mul_u32_u24 v%d, 5, v%d' % (T + 2, T + 1))
            a.I('v_lshrrev_b32 v%d, 2, v%d' % (T + 3, T))
            a.I('v_sub_u32 v%d, v%d, v%d' % (T + 2, T + 3, T + 2))
            a.I('v_add_u32 v%d, %s, v%d' % (T + 2, sGo, T + 2))
            a.I('v_bfe_u32 v%d, v%d, 2, 1' % (T + 3, T + 2))
            a.I('v_xor_b32 v%d, v%d, v%d' % (T + 2, T + 2, T + 3))
            a.I('v_and_b32 v%d, 3, v0' % (T + 3))
            a.I('v_lshl_add_u32 v%d, v%d, 2, v%d' % (T + 2, T + 2, T + 3))
            a.I('v_mul_u32_u24 v%d, 81920, v%d' % (T + 1, T + 1))
            a.I('v_lshl_add_u32 v%d, v%d, 4, v%d' % (self.GA[it], T + 2, T + 1))
        a.I('v_lshrrev_b32 v%d, 5, v0' % T)
        a.I('v_lshl_add_u32 v%d, v%d, 31, v%d' % (self.GA[2], T, self.GA[2]))
        a.I('s_lshl_b32 %s, %s, 4' % (sGo, sHB))
        a.I('s_add_u32 %s, %s, %s' % (sGo, sGo, sG))
        a.I('s_mul_i32 %s, %s, 2560' % (sGo, sGo))
        a.I('s_mul_i32 s3, %s, %d' % (sW, 8 * 81920))
        a.I('s_add_u32 %s, %s, s3' % (sGo, sGo))
        a.I('s_add_u32 %s, %s, %s' % (sGo, sGo, sOut))

    def main(self, a, X, vS, vQ, W, sGo):
        T = self.T + (self.T & 1)
        ln_coef(a, vS, vQ, T, T + 2, None)
        for n in range(5):
            for i in range(2):
                x = vr(X + 4 * n + 2 * i, 2)
                a.I('v_pk_fma_f32 %s, %s, %s, %s op_sel_hi:[1,0,0]' % (x, x, vr(T, 2), vr(T + 2, 2)))
            a.I('v_cvt_pk_bf16_f32 v%d, v%d, v%d' % (W + 2 * n, X + 4 * n, X + 4 * n + 1))
            a.I('v_cvt_pk_bf16_f32 v%d, v%d, v%d' % (W + 2 * n + 1, X + 4 * n + 2, X + 4 * n + 3))
            a.I('ds_write_b64 v%d, %s offset:%d' % (self.ZW, vr(W + 2 * n, 2), 8 * n))
        a.I('s_waitcnt lgkmcnt(0)')
        a.I('s_barrier')
        rds = ['ds_read_b64_tr_b16 %s, v%d offset:%d' % (vr(W + 8 * t + 4 * ks + 2 * rd, 2), self.ZR, (32 * ks + 2 * rd) * 168 + 32 * t)
               for t in range(5) for ks in range(2) for rd in range(2)]
        D = W + 40
        a.ext(rds[:12])
        for t in range(5):
            a.I('v_mfma_f32_16x16x32_bf16 %s, %s, %s, 0' % (vr(D + 4 * t, 4), vr(W + 8 * t, 4), vr(self.F, 4)))
            a.ext(rds[12 + 4 * t:14 + 4 * t])
            a.I('v_mfma_f32_16x16x32_bf16 %s, %s, %s, %s' % (vr(D + 4 * t, 4), vr(W + 8 * t + 4, 4), vr(self.F + 4, 4), vr(D + 4 * t, 4)))
            a.ext(rds[14 + 4 * t:16 + 4 * t])
        for t in range(5):
            a.I('v_cvt_pk_bf16_f32 v%d, v%d, v%d' % (X + 2 * t, D + 4 * t, D + 4 * t + 1))
            a.I('v_cvt_pk_bf16_f32 v%d, v%d, v%d' % (X + 2 * t + 1, D + 4 * t + 2, D + 4 * t + 3))
            a.I('ds_write_b64 v%d, %s offset:%d' % (self.BW, vr(X + 2 * t, 2), 64 * t))
        for it in range(3):
            a.I('ds_read_b128 %s, v%d' % (vr(W + 4 * it, 4), self.BR[it]))
        for it in range(3):
            a.I('buffer_store_dwordx4 %s, v%d, %s, %s offen sc1' % (vr(W + 4 * it, 4), self.GA[it], WS, sGo))
```

```python
from common import *

N_KA, N_W1, N_WD = 256, 270, 112
N_PREP = N_KA + N_W1 + N_WD
PREP_LDS = 21504


def code_prefetch(a, start, end, vt, sp, lanes_shift=7):
    a.I('s_getpc_b64 s[%d:%d]' % (sp, sp + 1))
    a.raw('.Lpc_%s:' % start)
    a.I('s_add_u32 s%d, s%d, %s-.Lpc_%s' % (sp, sp, start, start))
    a.I('s_addc_u32 s%d, s%d, 0' % (sp + 1, sp + 1))
    a.I('v_lshlrev_b32 v%d, 7, v%d' % (vt, vt))
    a.I('v_min_u32 v%d, %s-%s-4, v%d' % (vt, end, start, vt))
    a.I('global_load_dword v%d, v%d, s[%d:%d]' % (vt, vt, sp, sp + 1))


def k_prep(a, ffn_start, ffn_end):
    st = Stamps()

    def first(a):
        a.I('v_and_b32 v120, 63, v0')
        code_prefetch(a, 'prep_c0', 'prep_end', 120, 62)
        a.raw('prep_c0:')
    entry(a, 'prep_kernel', N_PREP, 0, 0, [(8, 0, XB)], 'prep_end', first)
    a.I('v_mov_b32 v121, v0')
    decode(a)
    a.I('s_cmp_ge_u32 s2, %d' % N_KA)
    a.I('s_cbranch_scc1 prep_w')
    RW = 40
    PK = 26
    at = AT(4, 0, 10752)
    X = RW + 60
    row_nat_soff(a, sT[0])
    a.I('v_lshrrev_b32 v1, 3, v0')
    a.I('v_mul_u32_u24 v1, 81920, v1')
    a.I('v_and_b32 v2, 7, v0')
    a.I('v_lshl_add_u32 v1, v2, 4, v1')
    a.I('v_add_u32 v2, 0x%x, v1' % (512 * 1280))
    a.I('s_mul_i32 %s, %s, 160' % (sT[1], sJJ))
    a.I('s_and_b32 %s, %s, 0xffffff80' % (sT[2], sT[1]))
    a.I('s_add_u32 %s, %s, %s' % (sT[1], sT[1], sT[0]))
    a.I('s_add_u32 %s, %s, %s' % (sT[2], sT[2], sT[0]))
    a.I('s_add_u32 %s, %s, 1280' % (sT[3], sT[0]))
    srds(a, [(8, 0, XB)])
    st(a, 'AB')
    b = Asm()
    for i in range(10):
        for s in range(2):
            b.I('buffer_load_dwordx4 %s, v%d, %s, %s offen' % (vr(RW + 8 * i + 4 * s, 4), 1 + s, SA, sT[2]))
        if i < 9:
            b.I('s_add_u32 %s, %s, 128\ns_cmp_eq_u32 %s, %s\ns_cselect_b32 %s, %s, %s' % (sT[2], sT[2], sT[2], sT[3], sT[2], sT[0], sT[2]))
    ld = b.items
    a.ext(ld[:10])
    a.I('v_and_b32 v3, 15, v0')
    a.I('v_mul_u32_u24 v3, 81920, v3')
    a.I('v_lshrrev_b32 v38, 4, v0')
    a.I('v_mad_u32_u24 v3, v38, 40, v3')
    stats_soff(a, sT[4], sLN)
    a.I('s_lshl_b32 s3, %s, 7' % sJJ)
    a.I('s_add_u32 %s, %s, s3' % (sT[4], sT[4]))
    a.I('v_lshrrev_b32 v38, 5, v0')
    a.I('v_lshlrev_b32 v39, 2, v0')
    a.I('v_lshl_add_u32 v38, v38, 31, v39')
    a.I('v_mov_b32 v39, -1')
    a.I('buffer_store_dword v39, v38, %s, %s offen sc1' % (WS, sT[4]))
    a.I('s_lshl_b32 %s, s2, 7' % sT[4])
    a.I('s_and_b32 s3, %s, 1' % sW)
    a.I('s_mul_i32 s3, s3, 0x%x' % LBS)
    a.I('s_add_u32 %s, %s, s3' % (sT[4], sT[4]))
    a.I('s_lshr_b32 s3, %s, 1' % sW)
    a.I('s_lshl_b32 s3, s3, 15')
    a.I('s_add_u32 %s, %s, s3' % (sT[4], sT[4]))
    a.I('s_add_u32 %s, %s, 0x%x' % (sT[4], sT[4], LB0 + oFL))
    a.I('v_mov_b32 v37, 0')
    a.I('buffer_store_dword v37, v38, %s, %s offen sc1' % (WS, sT[4]))
    a.ext(ld[10:])
    a.I('buffer_load_dwordx4 %s, v3, %s, %s offen' % (vr(PK, 4), SA, sT[1]))
    a.I('buffer_load_dwordx4 %s, v3, %s, %s offen offset:16' % (vr(PK + 4, 4), SA, sT[1]))
    a.I('buffer_load_dwordx2 %s, v3, %s, %s offen offset:32' % (vr(PK + 8, 2), SA, sT[1]))
    at.setup(a, sLB, sT[5])
    tile_xr_addr(a, 1, 2, 120)
    tile_blk_soff(a, sT[6], sLB, oXA)
    S = 120
    a.I('v_mov_b32 v%d, 0x3f803f80' % (S + 4))
    for i in range(4):
        a.I('v_mov_b32 v%d, 0' % (S + i))
    st(a, 'B')
    for i in range(10):
        for r in range(4):
            for s in range(2):
                v = RW + 8 * i + 4 * s + r
                a.I('v_dot2c_f32_bf16 v%d, v%d, v%d' % (S + 2 * s, v, S + 4))
                a.I('v_dot2c_f32_bf16 v%d, v%d, v%d' % (S + 2 * s + 1, v, v))
    st(a, 'B')
    a.I('v_and_b32 v3, 1, v0')
    a.I('v_cmp_eq_u32 vcc, 1, v3')
    a.I('v_and_b32 v3, 7, v0')
    for m in ('quad_perm:[1,0,3,2]', 'quad_perm:[2,3,0,1]', 'row_half_mirror'):
        for i in range(4):
            a.I('v_add_f32_dpp v%d, v%d, v%d %s row_mask:0xf bank_mask:0xf' % (S + i, S + i, S + i, m))
    a.I('v_bfe_u32 v%d, v0, 3, 1' % (S + 4))
    a.I('v_lshl_add_u32 v3, v3, 3, v%d' % (S + 4))
    a.I('v_lshlrev_b32 v3, 2, v3')
    a.I('v_cndmask_b32 v%d, v%d, v%d, vcc' % (S, S, S + 2))
    a.I('v_cndmask_b32 v%d, v%d, v%d, vcc' % (S + 1, S + 1, S + 3))
    a.I('ds_bpermute_b32 v%d, v3, v%d' % (S + 2, S))
    a.I('ds_bpermute_b32 v%d, v3, v%d' % (S + 3, S + 1))
    a.ext(unpack(range(PK, PK + 10), lambda i: X + i))
    xa_store(a, PK, 1, 2, sT[6], RW + 48)
    at.main(a, X, S + 2, S + 3, RW, sT[5])
    st(a, 'B')
    st.flush(a)
    a.I('s_endpgm')

    st = Stamps()
    a.label('prep_w')
    a.reset()
    a.I('s_load_dwordx4 s[56:59], s[0:1], 48')
    a.I('s_load_dwordx2 s[60:61], s[0:1], 64')
    a.I('s_cmp_ge_u32 s2, %d' % (N_KA + N_W1))
    a.I('s_cbranch_scc1 prep_wd')
    a.I('s_sub_u32 %s, s2, %d' % (sT[0], N_KA))
    a.I('s_mul_i32 %s, %s, 205' % (sT[1], sT[0]))
    a.I('s_lshr_b32 %s, %s, 11' % (sT[1], sT[1]))
    a.I('s_mul_i32 s3, %s, 10' % sT[1])
    a.I('s_sub_u32 %s, %s, s3' % (sT[0], sT[0]))
    a.I('s_lshl_b32 %s, %s, 1' % (sT[0], sT[0]))
    a.I('s_lshr_b32 s3, %s, 1' % sW)
    a.I('s_add_u32 %s, %s, s3' % (sT[0], sT[0]))
    a.I('v_lshrrev_b32 v1, 3, v0')
    a.I('v_and_b32 v2, 7, v0')
    a.I('v_lshlrev_b32 v2, 4, v2')
    a.I('v_lshrrev_b32 v3, 2, v1')
    a.I('s_lshl_b32 %s, %s, 7' % (sT[4], sT[1]))
    a.I('s_lshl_b32 %s, %s, 12' % (sT[5], sW))
    a.I('s_waitcnt lgkmcnt(0)')
    srd(a, 4, 52, WS_BYTES)
    a.I('s_bitcmp1_b32 %s, 0' % sW)
    a.I('s_cselect_b32 s56, s58, s56')
    a.I('s_cselect_b32 s57, s59, s57')
    srd(a, 8, 56, W1B)
    st(a, 'AB')
    for kq in range(4):
        a.I('s_lshl_b32 %s, %s, 2' % (sT[2], sT[0]))
        a.I('s_add_u32 %s, %s, %d' % (sT[2], sT[2], kq))
        a.I('s_mul_i32 %s, %s, 205' % (sT[3], sT[2]))
        a.I('s_lshr_b32 %s, %s, 10' % (sT[3], sT[3]))
        a.I('s_mul_i32 s3, %s, 5' % sT[3])
        a.I('s_sub_u32 %s, %s, s3' % (sT[3], sT[2]))
        a.I('s_lshl_b32 %s, %s, 3' % (sT[2], sT[2]))
        a.I('s_cmp_ge_u32 %s, 3' % sT[3])
        a.I('s_cselect_b32 s3, 4, 0')
        a.I('s_sub_u32 %s, %s, s3' % (sT[2], sT[2]))
        a.I('s_cmp_eq_u32 %s, 2' % sT[3])
        a.I('s_cselect_b32 s3, 16, 0')
        a.I('v_mad_u32_u24 v4, v3, s3, v1')
        a.I('v_add_u32 v4, %s, v4' % sT[2])
        a.I('v_mul_u32_u24 v4, 3456, v4')
        a.I('s_add_u32 m0, %s, %d' % (sT[5], kq * 1024))
        a.I('v_add_u32 v4, v4, v2')
        a.I('buffer_load_dwordx4 v4, %s, %s offen lds' % (SA, sT[4]), tag='d')
    a.I('v_lshrrev_b32 v1, 4, v0')
    a.I('v_lshlrev_b32 v1, 10, v1')
    a.I('v_bfe_u32 v2, v0, 2, 2')
    a.I('v_lshl_add_u32 v1, v2, 7, v1')
    a.I('v_and_b32 v2, 3, v0')
    a.I('v_lshl_add_u32 v1, v2, 3, v1')
    a.I('v_add_u32 v1, %s, v1' % sT[5])
    a.I('v_lshlrev_b32 v2, 4, v0')
    a.I('s_mul_i32 %s, %s, %d' % (sT[1], sT[1], 4 * 40960))
    a.I('s_mul_i32 s3, %s, 205' % sT[0])
    a.I('s_lshr_b32 s3, s3, 10')
    a.I('s_and_b32 %s, %s, 1' % (sT[2], sW))
    a.I('s_add_u32 s3, s3, %s' % sT[2])
    a.I('s_mul_i32 s3, s3, 5120')
    a.I('s_lshl_b32 %s, %s, 10' % (sT[0], sT[0]))
    a.I('s_add_u32 %s, %s, s3' % (sT[0], sT[0]))
    a.I('s_add_u32 %s, %s, %s' % (sT[0], sT[0], sT[1]))
    a.wait_vm('d')
    st(a, 'B')
    for ft in range(4):
        for rd in range(2):
            a.I('ds_read_b64_tr_b16 %s, v1 offset:%d' % (vr(8 + 4 * ft + 2 * rd, 2), rd * 512 + ft * 32))
    for ft in range(4):
        a.I('s_add_u32 %s, %s, 0x%x' % (sT[1], sT[0], W1P + ft * 40960))
        a.I('buffer_store_dwordx4 %s, v2, %s, %s offen sc1' % (vr(8 + 4 * ft, 4), WS, sT[1]))
    a.I('s_cmp_ge_u32 s2, %d' % (N_KA + 16))
    a.I('s_cbranch_scc1 prep_nopf')
    code_prefetch(a, ffn_start, ffn_end, 121, 62)
    a.label('prep_nopf')
    st.flush(a)
    a.I('s_endpgm')

    st = Stamps()
    a.label('prep_wd')
    a.reset()
    a.I('s_sub_u32 %s, s2, %d' % (sT[0], N_KA + N_W1))
    a.I('s_and_b32 %s, %s, 1' % (sT[1], sT[0]))
    a.I('s_bfe_u32 %s, %s, 0x20001' % (sT[4], sT[0]))
    a.I('s_lshr_b32 %s, %s, 3' % (sT[0], sT[0]))
    a.I('s_lshr_b32 %s, %s, 1' % (sT[5], sW))
    a.I('s_and_b32 s3, %s, 3' % sT[0])
    a.I('s_mul_i32 %s, s3, 7' % sT[2])
    a.I('s_lshr_b32 s3, %s, 2' % sT[0])
    a.I('s_lshl_b32 s3, s3, 1')
    a.I('s_add_u32 %s, %s, s3' % (sT[2], sT[2]))
    a.I('s_add_u32 %s, %s, %s' % (sT[2], sT[2], sT[5]))
    a.I('s_mul_i32 s3, %s, 7' % sT[5])
    a.I('s_add_u32 s3, s3, 6')
    a.I('s_cmp_eq_u32 %s, 12' % sT[0])
    a.I('s_cselect_b32 %s, s3, %s' % (sT[2], sT[2]))
    a.I('s_cmp_eq_u32 %s, 13' % sT[0])
    a.I('s_cselect_b32 %s, 20, %s' % (sT[2], sT[2]))
    a.I('s_mul_i32 s3, %s, 27' % sT[4])
    a.I('s_add_u32 %s, %s, s3' % (sT[2], sT[2]))
    a.I('s_lshl_b32 %s, %s, 1' % (sT[2], sT[2]))
    a.I('s_and_b32 s3, %s, 1' % sW)
    a.I('s_add_u32 %s, %s, s3' % (sT[2], sT[2]))
    a.I('s_mul_i32 %s, %s, 10240' % (sT[2], sT[2]))
    a.I('s_mul_i32 s3, %s, 640' % sT[1])
    a.I('s_add_u32 %s, %s, s3' % (sT[2], sT[2]))
    a.I('s_mul_i32 %s, %s, 5120' % (sT[3], sW))
    a.I('s_waitcnt lgkmcnt(0)')
    srd(a, 4, 52, WS_BYTES)
    srd(a, 12, 60, W1B)
    st(a, 'AB')
    for it in range(5):
        a.I('v_add_u32 v2, %d, v0' % (64 * it))
        a.I('v_mul_u32_u24 v3, 1639, v2')
        a.I('v_lshrrev_b32 v3, 16, v3')
        a.I('v_mul_u32_u24 v3, 640, v3')
        a.I('s_add_u32 m0, %s, %d' % (sT[3], it * 1024))
        a.I('v_lshl_add_u32 v3, v2, 4, v3')
        a.I('buffer_load_dwordx4 v3, %s, %s offen lds' % (SB, sT[2]), tag='d')
    a.I('v_lshrrev_b32 v1, 2, v0')
    a.I('v_mul_u32_u24 v1, 640, v1')
    a.I('v_and_b32 v2, 3, v0')
    a.I('v_mul_u32_u24 v2, 40, v2')
    a.I('s_mul_i32 s3, %s, 160' % sW)
    a.I('v_add3_u32 v1, v1, v2, s3')
    a.I('v_lshlrev_b32 v2, 4, v0')
    a.I('v_lshlrev_b32 v3, 3, v0')
    a.I('s_lshl_b32 %s, %s, 2' % (sT[1], sT[1]))
    a.I('s_add_u32 %s, %s, %s' % (sT[1], sT[1], sW))
    a.I('s_lshl_b32 %s, %s, 2' % (sT[1], sT[1]))
    a.I('s_add_u32 %s, %s, %s' % (sT[1], sT[1], sT[4]))
    a.I('s_mul_i32 %s, %s, 69120' % (sT[1], sT[1]))
    a.I('s_mul_i32 s3, %s, 5120' % sT[0])
    a.I('s_add_u32 %s, %s, s3' % (sT[1], sT[1]))
    a.I('s_add_u32 %s, %s, 0x%x' % (sT[1], sT[1], WDP))
    a.I('s_add_u32 %s, %s, 4096' % (sT[2], sT[1]))
    a.wait_vm('d')
    a.I('s_barrier')
    st(a, 'B')
    for n in range(5):
        for rd in range(2):
            a.I('ds_read_b64_tr_b16 %s, v1 offset:%d' % (vr(8 + 4 * n + 2 * rd, 2), rd * 10240 + n * 8))
    a.I('s_cmp_eq_u32 %s, 13' % sT[0])
    a.I('s_cbranch_scc1 prep_wd13')
    for n in range(5):
        a.I('buffer_store_dwordx4 %s, v2, %s, %s offen offset:%d sc1' % (vr(8 + 4 * n, 4), WS, sT[2] if n == 4 else sT[1], (n % 4) * 1024))
    st.flush(a)
    a.I('s_endpgm')
    a.label('prep_wd13')
    a.reset()
    a.I('s_waitcnt lgkmcnt(0)')
    for n in range(5):
        a.I('buffer_store_dwordx2 %s, v3, %s, %s offen offset:%d sc1' % (vr(8 + 4 * n, 2), WS, sT[1], n * 512))
    st.flush(a)
    a.label('prep_end')
    a.I('s_endpgm')
```

```python
from asmlib import Ins, TRANS


class Item:
    __slots__ = ('parts', 'at', 'by', 'seq', 'src', 'dst', 'cost', 'scalar', 'vmem', 'salu', 'gap', 'vs', 'mem', 'valu')

    def __init__(self, parts, at, by, seq):
        self.parts = [Ins(p) if isinstance(p, str) else p for p in parts]
        self.at, self.by, self.seq = at, by, seq
        self.src, self.dst = set(), set()
        self.cost, self.scalar, self.vmem, self.salu, self.vs = 0, False, False, False, False
        self.mem = self.valu = False
        first = True
        for p in self.parts:
            if isinstance(p, tuple):
                if p[0] == 'label':
                    continue
                sc, c = True, 1
                self.src |= {'tag:%s' % p[1]}
                if p[0] == 'wait_both':
                    self.dst |= {'dsq'}
            else:
                self.src |= p.src
                self.dst |= p.dst
                sc = p.kind == 'salu'
                c = 1
                if p.kind == 'vmem':
                    self.dst |= {'vmq', 'tag:%s' % p.tag}
                    self.vmem = self.vmem or first
                    if p.op.startswith('buffer') and p.ops[-1][0] in 'sm':
                        c = 2
                    self.mem = True
                    if 'store' in p.op:
                        c = 2
                elif p.kind == 'ds':
                    self.dst |= {'dsq'}
                    self.mem = True
                    if 'write' in p.op:
                        c = 2
                elif p.kind == 'valu':
                    self.valu = True
                    if p.op.startswith(TRANS):
                        c = 2
                    if any(r[0] == 's' for r in p.dst):
                        self.vs = True
                elif p.op in ('s_barrier', 's_waitcnt'):
                    self.dst |= {'dsq'}
                elif p.op.startswith('s_cbranch'):
                    self.dst |= {'vmq'}
                if sc and p.op not in ('s_barrier', 's_waitcnt'):
                    self.salu = True
            if first and sc:
                self.scalar = True
            else:
                self.cost += c
            first = False

    def conflicts(self, later):
        return bool(self.dst & (later.src | later.dst) or self.src & later.dst)


class Sched:
    def __init__(self):
        self.items = []

    def add(self, parts, at, by=None):
        if not isinstance(parts, list):
            parts = [parts]
        self.items.append(Item(parts, at, by if by is not None else 10 ** 9, len(self.items)))

    def asap(self, lst, at, by):
        for x in lst:
            self.add(x, at, by)

    def paced(self, groups, n0, n1, by=None):
        for i, g in enumerate(groups):
            n = n0 + (i * (n1 - n0)) // len(groups)
            if not isinstance(g, list):
                g = [g]
            for x in g:
                self.add(x, n, by if by is not None else n + 12)

    def run(self, a, mf, hook=None):
        pend = sorted(self.items, key=lambda it: (it.at, it.seq))
        done_vs = {}
        over = 0
        for n, m in enumerate(mf):
            a.ext([m])
            if hook:
                hook(n)

            def ready_list():
                out, blocked = [], []
                for it in pend:
                    if it.at > n:
                        break
                    ok = not any(b.conflicts(it) for b in blocked)
                    if ok and any(done_vs.get(r, -9) > n - 2 for r in it.src):
                        ok = False
                    if ok:
                        out.append(it)
                    blocked.append(it)
                return out

            def emit(it):
                a.ext(it.parts)
                pend.remove(it)
                if it.vs:
                    for r in it.dst:
                        done_vs[r] = n
            free = 2
            rl = ready_list()
            key = lambda it: (it.by, it.at, it.seq)
            sc = sorted([it for it in rl if it.scalar and it.cost <= 2], key=key)
            vec = sorted([it for it in rl if not it.scalar], key=key)
            last_salu = had_valu = False
            if sc:
                it = sc[0]
                vm1 = [v for v in vec if v.vmem]
                ds1 = [v for v in vec if v.mem and not v.vmem and v.cost == 1]
                if not (it.salu and vm1 and not ds1 and key(vm1[0]) < key(it)):
                    emit(it)
                    free -= it.cost
                    last_salu = it.salu
                    had_valu = it.valu
            while free > 0:
                rl = sorted(ready_list(), key=key)
                cand = [it for it in rl if not it.scalar and it.cost <= free and not (last_salu and it.vmem) and not (had_valu and it.mem)]
                mem = [it for it in cand if it.mem]
                if mem:
                    cand = mem
                elif free == 2 and cand and cand[0].cost == 1:
                    ones = [it for it in cand if it.cost == 1]
                    twos = [it for it in cand if it.cost == 2]
                    if twos and len(ones) < 2 and cand[0].by > n + 1:
                        cand = twos
                if not cand:
                    cand = [it for it in rl if it.scalar and it.cost + 1 <= free and not (had_valu and it.mem)]
                    if not cand:
                        break
                    emit(cand[0])
                    free -= cand[0].cost + 1
                    last_salu = cand[0].salu
                    continue
                emit(cand[0])
                free -= cand[0].cost
                last_salu = False
                had_valu = had_valu or cand[0].valu
            while True:
                late = [it for it in pend if it.by <= n]
                if not late:
                    break
                it = late[0]
                while True:
                    blk = [b for b in pend[:pend.index(it)] if b.conflicts(it)]
                    if not blk:
                        break
                    it = blk[0]
                assert it.at <= n, (n, it.parts[0].text if hasattr(it.parts[0], 'text') else it.parts[0])
                emit(it)
                over += it.cost + it.scalar
        for it in list(pend):
            a.ext(it.parts)
        return over, len(pend)
```

```python
from common import *
from prep import *
from sched import Sched

M16 = 'v_mfma_f32_16x16x32_bf16'
M32 = 'v_mfma_f32_32x32x16_bf16'
L_V, L_X, L_Z = 118784, 143360, 153600
SPIN = 20000

vL16, vD0, vFl, vDt, vWa = 14, 11, 12, 13, 15
sWD, sZF, sHF, sHC = sT[20], sT[21], sT[22], sT[23]
sCK, sSP = sT[24], sT[25]
slow = []


def lst(f, *args):
    b = Asm()
    f(b, *args)
    return b.items


def dma(vbase, sbase, lds, n, tag):
    o = []
    for i in range(n):
        g = []
        if i % 4 == 0:
            g.append(Ins('s_add_u32 m0, %s, %d' % (sbase, lds + i * 1024)))
            g.append(Ins('v_add_u32 v%d, m0, v%d' % (vDt, vbase)))
        g.append(Ins('buffer_load_dwordx4 v%d, %s, 0 offen offset:%d lds' % (vDt, WS, (i % 4) * 1024), tag))
        o.append(g)
    return link(o)


def wda_loads():
    o = []
    for i in range(40):
        g = []
        if i and i % 4 == 0:
            g.append(Ins('v_add_u32 v%d, 4096, v%d' % (vWa, vWa)))
        g.append(Ins('buffer_load_dwordx4 %s, v%d, %s, 0 offen offset:%d' % (vr(4 * i, 4, 'a'), vWa, WS, (i % 4) * 1024), 'wda'))
        o.append(g)
    return o


def est(x):
    if isinstance(x, tuple):
        return 0 if x[0] in ('label', 'raw') else 30
    if x.kind == 'mfma':
        return 4 * x.passes
    if x.op == 's_barrier':
        return 40
    if x.op == 's_waitcnt':
        return 40
    if x.op.startswith(('v_sin', 'v_cos', 'v_exp', 'v_r', 'v_pk', 'ds_write')):
        return 8
    return 4


def timed(items, q, period, t=0):
    out = []
    for x in items:
        x = Ins(x) if isinstance(x, str) else x
        out.append(x)
        t += est(x)
        if t >= period and q:
            g = q.pop(0)
            out += g
            t += 4 * len(g) - period
    return out


def link(groups):
    last = {}
    for g in groups:
        for x in g:
            if isinstance(x, Ins):
                if x.kind == 'vmem':
                    for r in ('m0',):
                        if r in x.src and r in last:
                            x.dep = last[r]
                for r in x.dst:
                    last[r] = x
    return groups


def weave_groups(main, groups, every, start=0):
    out, gi = [], 0
    for i, m in enumerate(main):
        out.append(m)
        if i >= start and (i - start) % every == every - 1 and gi < len(groups):
            out += groups[gi]
            gi += 1
    return out, groups[gi:]


def check_issue(vC, so):
    return [Ins('v_mov_b32 v%d, 0' % vC), Ins('buffer_atomic_add v%d, v%d, %s, %s offen sc0 sc1' % (vC, vFl, WS, so), 'ck')]


def check_test(vC, so, bit, name):
    slow.append((vC, so, bit, name))
    return [Ins('v_readfirstlane_b32 %s, v%d' % (sCK, vC)),
            [Ins('s_bitcmp1_b32 %s, %d' % (sCK, bit)), Ins('s_cbranch_scc0 %s_slow' % name), ('label', name + '_ok')]]


def emit_slow(a):
    for vC, so, bit, name in slow:
        a.label(name + '_slow')
        a.reset()
        a.I('s_mov_b32 %s, 0' % sSP)
        a.label(name + '_spin')
        a.ext(check_issue(vC, so))
        a.I('s_add_u32 %s, %s, 1' % (sSP, sSP))
        a.I('s_waitcnt vmcnt(0)')
        a.I('v_readfirstlane_b32 %s, v%d' % (sCK, vC))
        a.I('s_bitcmp1_b32 %s, %d' % (sCK, bit))
        a.I('s_cbranch_scc1 %s_ok' % name)
        a.I('s_cmp_lt_u32 %s, %d' % (sSP, SPIN))
        a.I('s_cbranch_scc1 %s_spin' % name)
        a.I('s_branch %s_ok' % name)


def kb(a, st):
    FS, TA, TB, AP, AM, WA, WD = 16, 24, 88, 136, 152, 168, 208
    vRS, vVW, vVR, vA0, vA2 = (1, 2), (3, 4), (5, 6, 7, 8), 9, 10
    vZS, vRB, vGs, vXs = (248, 249, 250), 251, 252, 253
    T, R0 = AP + 20, AP
    sT1, sCLS, sQ, sW10, sBLK, sW25 = sT[0], sT[1], sT[2], sT[3], sT[4], sT[5]
    PER = opt('per', 80)
    a.I('s_lshr_b32 %s, %s, 2' % (sT1, sMU))
    a.I('s_lshl_b32 %s, %s, 2' % (sCLS, sG))
    a.I('s_add_u32 %s, %s, %s' % (sCLS, sCLS, sT1))
    a.I('s_and_b32 %s, %s, 3' % (sQ, sMU))
    a.I('s_and_b32 s3, %s, 1' % sT1)
    a.I('s_lshl_b32 s3, s3, 5')
    a.I('s_lshr_b32 %s, %s, 1' % (sT1, sT1))
    a.I('s_lshl_b32 %s, %s, 4' % (sT1, sT1))
    a.I('s_add_u32 %s, %s, s3' % (sT1, sT1))
    a.I('s_add_u32 %s, %s, %s' % (sT1, sT1, sG))
    a.I('s_sub_u32 s3, 64, %s' % sT1)
    a.I('s_min_u32 s3, s3, %s' % sT1)
    a.I('s_and_b32 s3, s3, 31')
    a.I('s_mul_i32 s3, s3, 81920')
    a.I('s_add_u32 s3, s3, %s' % sLB)
    a.I('v_lshlrev_b32 v%d, 4, v0' % vL16)
    a.I('v_add_u32 v%d, s3, v%d' % (vGs, vL16))
    a.I('s_mul_i32 %s, %s, 10240' % (sW10, sW))
    a.I('s_lshl_b32 %s, %s, 2' % (sBLK, sCLS))
    a.I('s_add_u32 %s, %s, %s' % (sBLK, sBLK, sQ))
    a.I('s_mul_i32 %s, %s, 10240' % (sBLK, sBLK))
    a.I('s_add_u32 %s, %s, %s' % (sBLK, sBLK, sLB))
    a.I('s_add_u32 s3, %s, 0x%x' % (sBLK, oXA - L_X))
    a.I('v_add_u32 v%d, s3, v%d' % (vXs, vL16))
    a.I('s_mul_i32 %s, %s, 2560' % (sW25, sW))
    sSig, sAmp = sT[6], sT[7]
    a.I('s_cmp_lt_u32 %s, 32' % sT1)
    a.I('s_cselect_b32 %s, %s, 0' % (sSig, fl(-0.25)))
    a.I('s_cmp_gt_u32 %s, 32' % sT1)
    a.I('s_cselect_b32 %s, %s, %s' % (sSig, fl(0.25), sSig))
    a.I('s_cmp_eq_u32 %s, 0' % sT1)
    a.I('s_cselect_b32 %s, 0xffff, -1' % sAmp)
    a.I('s_cmp_eq_u32 %s, 32' % sT1)
    a.I('s_cselect_b32 %s, 0xffff0000, %s' % (sAmp, sAmp))
    a.I('s_waitcnt lgkmcnt(0)')
    srd(a, 4, 52, WS_BYTES)
    st(a, 'ABCD')
    g0 = dma(vGs, sW10, 0, 10, 'g0')
    g1 = dma(vGs, sW10, 40960, 10, 'g1')
    NB = opt('nb', 7)
    for g in g0[:NB]:
        a.ext(g)
    sW9, sW20, sW11 = sT[10], sT[11], sT[12]
    xd = dma(vXs, sW25, L_X, 3, 'g0')
    xd[2] = [Ins('s_mov_b32 exec_hi, 0')] + xd[2] + [Ins('s_mov_b32 exec_hi, -1')]
    q = g0[NB:] + xd + g1 + dma(vD0, sW9, 81920, 9, 'w') + wda_loads()

    b = Asm()
    srd(b, 8, 54, XB)
    b.I('s_lshr_b32 s3, %s, 2' % sMU)
    b.I('s_mul_i32 s3, s3, 27')
    b.I('s_mul_i32 %s, %s, 7' % (sW9, sQ))
    b.I('s_add_u32 s3, s3, %s' % sW9)
    b.I('s_mul_i32 s3, s3, 40960')
    b.I('v_add_u32 v%d, s3, v%d' % (vD0, vL16))
    b.I('s_lshl_b32 s3, %s, 2' % sJJ)
    b.I('s_add_u32 s3, s3, %s' % sW)
    b.I('s_mul_i32 s3, s3, 69120')
    b.I('s_add_u32 s3, s3, 0x%x' % WDP)
    b.I('v_add_u32 v%d, s3, v%d' % (vWa, vL16))
    b.I('s_mul_i32 %s, %s, 9216' % (sW9, sW))
    b.I('v_and_b32 v%d, 31, v0' % T)
    b.I('s_lshr_b32 s3, %s, 1' % sW)
    b.I('v_add_u32 v%d, s3, v%d' % (T, T))
    b.I('v_cvt_f32_u32 v%d, v%d' % (T, T))
    b.I('v_mul_f32 v%d, %s, v%d' % (T, fl(1.0 / 32), T))
    b.I('s_and_b32 s3, %s, 1' % sW)
    b.I('s_lshl_b32 s3, s3, 4')
    b.I('v_cos_f32 v%d, v%d' % (T + 2, T))
    b.I('v_lshrrev_b32 v%d, 5, v0' % (T + 1))
    b.I('v_lshl_add_u32 v%d, v%d, 3, s3' % (T + 1, T + 1))
    b.I('v_cvt_f32_u32 v%d, v%d' % (T + 1, T + 1))
    b.I('v_mul_f32 v%d, v%d, v%d' % (R0 + 1, T, T + 1))
    b.I('v_add_f32 v%d, v%d, v%d' % (R0 + 3, R0 + 1, T))
    b.I('v_add_f32 v%d, v%d, v%d' % (T + 2, T + 2, T + 2))
    for j in range(2):
        b.I('v_cos_f32 v%d, v%d' % (R0 + 2 * j, R0 + 2 * j + 1))
        b.I('v_sin_f32 v%d, v%d' % (R0 + 2 * j + 1, R0 + 2 * j + 1))
    b.I('s_lshl_b32 s3, %s, 11' % sW)
    b.I('s_add_u32 s3, s3, 0x%x' % L_Z)
    b.I('v_add_u32 v%d, s3, v%d' % (T + 1, vL16))
    for j in range(2, 8):
        b.I('v_pk_fma_f32 %s, %s, %s, %s op_sel_hi:[0,1,1] neg_lo:[0,0,1] neg_hi:[0,0,1]' % (vr(R0 + 2 * j, 2), vr(T + 2, 2), vr(R0 + 2 * j - 2, 2), vr(R0 + 2 * j - 4, 2)))
    for e in range(2):
        for p in range(4):
            b.I('v_cvt_pk_bf16_f32 v%d, v%d, v%d' % (TB + 4 * e + p, R0 + 4 * p + e, R0 + 4 * p + 2 + e))
        b.I('ds_write_b128 v%d, %s offset:%d' % (T + 1, vr(TB + 4 * e, 4), 1024 * e))
    b.I('s_lshl_b32 s3, %s, 9' % sQ)
    b.I('s_add_u32 s3, s3, %s' % sT1)
    b.I('v_bfe_u32 v%d, v0, 1, 3' % T)
    b.I('v_lshl_add_u32 v%d, v%d, 6, s3' % (T, T))
    b.I('v_cvt_f32_u32 v%d, v%d' % (T, T))
    b.I('v_mul_f32 v%d, %s, v%d' % (T, fl(1.0 / 2048), T))
    b.I('v_lshrrev_b32 v%d, 4, v0' % (T + 1))
    b.I('v_cvt_f32_u32 v%d, v%d' % (T + 5, T + 1))
    b.I('v_add_f32 v%d, v%d, v%d' % (T + 1, T + 5, T + 5))
    b.I('v_and_b32 v%d, 1, v0' % (T + 2))
    b.I('v_cvt_f32_u32 v%d, v%d' % (T + 2, T + 2))
    b.I('v_mul_f32 v%d, %s, v%d' % (T + 2, fl(0.25), T + 2))
    b.I('v_fma_f32 v%d, v%d, v%d, v%d' % (T + 1, T, T + 1, T + 2))
    for i in range(8):
        k = 16 * (i >> 2) + 8 * ((i >> 1) & 1) + (i & 1)
        b.I('v_fmamk_f32 v%d, v%d, %s, v%d' % (FS + i, T, fl(k), T + 1))
        b.I('v_add_f32 v%d, %s, v%d' % (R0 + i, sSig, FS + i))
        b.I('v_cos_f32 v%d, v%d' % (FS + i, FS + i))
        b.I('v_cos_f32 v%d, v%d' % (R0 + i, R0 + i))
    for i in range(8):
        b.I('v_cvt_pk_bf16_f32 v%d, v%d, v%d' % (FS + i, FS + i, R0 + i))
        b.I('v_and_b32 v%d, %s, v%d' % (FS + i, sAmp, FS + i))
    b.I('v_lshrrev_b32 v%d, 3, v0' % T)
    b.I('v_mul_u32_u24 v%d, 2560, v%d' % (T + 1, T))
    b.I('v_bfe_u32 v%d, v0, 2, 1' % (T + 2))
    b.I('v_lshl_add_u32 v%d, v%d, 3, v%d' % (T + 1, T + 2, T + 1))
    b.I('v_and_b32 v%d, 3, v0' % (T + 2))
    b.I('v_lshl_add_u32 v%d, v%d, 7, v%d' % (T + 1, T + 2, T + 1))
    b.I('v_and_b32 v%d, 3, v%d' % (T, T))
    b.I('v_and_b32 v%d, 2, v0' % (T + 2))
    b.I('v_lshl_or_b32 v%d, v%d, 1, v%d' % (T, T + 2, T))
    b.I('s_lshl_b32 s3, %s, 1' % sW)
    b.I('v_xor_b32 v%d, s3, v%d' % (T, T))
    b.I('v_lshl_add_u32 v%d, v%d, 4, v%d' % (vRS[0], T, T + 1))
    b.I('v_xor_b32 v%d, 16, v%d' % (vRS[1], vRS[0]))
    K = T + 2
    b.I('v_and_b32 v%d, 15, v0' % T)
    b.I('v_cvt_f32_u32 v%d, v%d' % (T, T))
    b.I('v_mul_f32 v%d, %s, v%d' % (T, fl(1.0 / 640), T))
    b.I('s_lshl_b32 s3, %s, 3' % sW)
    b.I('v_cos_f32 v%d, v%d' % (K, T))
    b.I('v_cvt_f32_u32 v%d, s3' % (T + 1))
    b.I('v_fmamk_f32 v%d, v%d, %s, v%d' % (T + 1, T + 5, fl(32), T + 1))
    b.I('v_mul_f32 v%d, v%d, v%d' % (T + 1, T, T + 1))
    b.I('v_add_f32 v%d, v%d, v%d' % (K, K, K))
    for ib in range(8):
        C, Sn = TA + 8 * ib, TA + 8 * ib + 4
        cur, oth = R0 + 10 * (ib & 1), R0 + 10 * ((ib + 1) & 1)
        for j in range(5):
            r = cur + 2 * j
            if ib < 2:
                b.I('v_fmamk_f32 v%d, v%d, %s, v%d' % (r + 1, T, fl(128 * j + ib), T + 1))
                b.I('v_cos_f32 v%d, v%d' % (r, r + 1))
                b.I('v_sin_f32 v%d, v%d' % (r + 1, r + 1))
            else:
                b.I('v_pk_fma_f32 %s, %s, %s, %s op_sel_hi:[0,1,1] neg_lo:[0,0,1] neg_hi:[0,0,1]' % (vr(r, 2), vr(K, 2), vr(oth + 2 * j, 2), vr(r, 2)))
        for e, d in ((0, C), (1, Sn)):
            b.I('v_cvt_pk_bf16_f32 v%d, v%d, v%d' % (d, cur + e, cur + 2 + e))
            b.I('v_cvt_pk_bf16_f32 v%d, v%d, v%d' % (d + 1, cur + 4 + e, cur + 6 + e))
            b.I('v_cvt_pk_bf16_f32 v%d, v%d, 0' % (d + 2, cur + 8 + e))
    a.ext(timed(b.items, q, opt('per0', 68)))
    assert not any(g[-1].tag in ('g0', 'g1') for g in q)
    st(a, 'B')

    b = Asm()
    b.I('s_lshl_b32 s3, %s, 1' % sW)
    b.I('v_and_b32 v%d, 31, v0' % (T + 2))
    b.I('v_lshrrev_b32 v%d, 5, v0' % (T + 4))
    b.I('v_add_u32 v%d, s3, v%d' % (T + 3, T + 4))
    xr_addr(b, vA0, vA2, T + 2, T + 3, T)
    b.I('v_add_u32 v%d, 0x%x, v%d' % (vA0, L_X, vA0))
    b.I('v_add_u32 v%d, 0x%x, v%d' % (vA2, L_X, vA2))
    b.I('v_bfe_u32 v%d, v0, 3, 2' % (T + 1))
    b.I('v_cmp_eq_u32 vcc, 3, v%d' % (T + 1))
    b.I('v_bfe_u32 v%d, v0, 2, 1' % T)
    b.I('v_add_u32 v%d, s3, v%d' % (T, T))
    b.I('v_and_b32 v%d, 3, v0' % (T + 2))
    b.I('v_cndmask_b32_e64 v%d, v%d, 0, vcc' % (T + 1, T + 1))
    b.I('v_lshl_add_u32 v%d, v%d, 2, v%d' % (T + 1, T + 1, T + 2))
    b.I('v_mad_u32_u24 v%d, v%d, 12, v%d' % (T + 2, T, T + 1))
    b.I('v_lshlrev_b32 v%d, 7, v%d' % (T + 2, T + 2))
    b.I('v_lshrrev_b32 v%d, 1, v%d' % (T + 1, T + 1))
    b.I('v_and_b32 v%d, 3, v%d' % (T, T))
    b.I('v_xor_b32 v%d, v%d, v%d' % (T, T, T + 1))
    b.I('v_xor_b32 v%d, v%d, v%d' % (T, T, T + 4))
    b.I('v_lshl_add_u32 v%d, v%d, 4, v%d' % (T, T, T + 2))
    b.I('v_add_u32 v%d, 0x%x, v%d' % (vVR[0], L_V, T))
    for k in range(1, 4):
        b.I('v_xor_b32 v%d, %d, v%d' % (vVR[k], 32 * k, vVR[0]))
    b.I('v_bfe_u32 v%d, v0, 1, 3' % T)
    b.I('v_lshrrev_b32 v%d, 4, v0' % (T + 1))
    b.I('v_mad_u32_u24 v%d, v%d, 3, v%d' % (T + 2, T, T + 1))
    b.I('v_lshlrev_b32 v%d, 9, v%d' % (T + 2, T + 2))
    b.I('v_add_u32 v%d, 1, v%d' % (T + 3, T + 1))
    b.I('v_lshrrev_b32 v%d, 2, v%d' % (T + 3, T + 3))
    b.I('v_lshl_add_u32 v%d, v%d, 16, v%d' % (T + 2, T + 3, T + 2))
    b.I('v_and_b32 v%d, 3, v%d' % (T, T))
    b.I('v_lshlrev_b32 v%d, 1, v%d' % (T + 1, T + 1))
    b.I('v_xor_b32 v%d, v%d, v%d' % (T, T, T + 1))
    b.I('v_and_b32 v%d, 1, v0' % (T + 1))
    b.I('v_lshl_or_b32 v%d, v%d, 2, %s' % (T + 1, T + 1, sW))
    b.I('v_xor_b32 v%d, v%d, v%d' % (T, T, T + 1))
    b.I('v_lshl_add_u32 v%d, v%d, 4, v%d' % (T, T, T + 2))
    b.I('v_add_u32 v%d, 0x%x, v%d' % (vVW[0], L_V, T))
    b.I('v_xor_b32 v%d, 16, v%d' % (vVW[1], vVW[0]))
    b.I('v_add_u32 v%d, 0x%x, v%d' % (vRB, L_Z, vL16))
    addr = b.items

    b = Asm()
    U = FS
    b.I('s_mul_i32 s3, %s, 20' % sW)
    b.I('v_lshrrev_b32 v%d, 3, v0' % U)
    b.I('v_add_u32 v%d, s3, v%d' % (U, U))
    for it in range(3):
        if it:
            b.I('v_add_u32 v%d, 8, v%d' % (U, U))
        b.I('v_mul_u32_u24 v%d, 205, v%d' % (U + 1, U))
        b.I('v_lshrrev_b32 v%d, 9, v%d' % (U + 1, U + 1))
        b.I('v_xor_b32 v%d, v%d, v0' % (U + 1, U + 1))
        b.I('v_and_b32 v%d, 7, v%d' % (U + 1, U + 1))
        b.I('v_lshlrev_b32 v%d, 9, v%d' % (U + 2, U))
        b.I('v_lshl_add_u32 v%d, v%d, 4, v%d' % (vZS[it], U + 1, U + 2))
    b.I('v_lshrrev_b32 v%d, 5, v0' % U)
    b.I('v_lshl_add_u32 v%d, v%d, 31, v%d' % (vZS[2], U, vZS[2]))
    b.I('v_lshl_add_u32 v254, v%d, 31, v%d' % (U, vL16))
    sZS, sXS = sT[8], sT[9]
    b.I('s_mul_i32 %s, %s, 40960' % (sZS, sCLS))
    b.I('s_lshl_b32 s3, %s, 7' % sQ)
    b.I('s_add_u32 %s, %s, s3' % (sZS, sZS))
    b.I('s_add_u32 %s, %s, %s' % (sZS, sZS, sLB))
    b.I('s_add_u32 %s, %s, 0x%x' % (sZS, sZS, oZ))
    b.I('s_add_u32 s3, %s, 0x%x' % (sW25, L_X))
    b.I('v_add_u32 v%d, s3, v%d' % (vRB, vL16))
    late = b.items

    XE = lambda e: AP + e if e < 10 else AM + 20 - e
    rds = lambda ks: ['ds_read_b64_tr_b16 %s, v%d offset:%d' % (vr(WA + 20 * bg + 4 * t + 2 * rd, 2), vRS[bg], (16 * ks + 8 * rd) * 2560 + 512 * t)
                      for bg in range(2) for t in range(5) for rd in range(2)]
    mf = lambda ks: ['%s %s, %s, %s, %s' % (M16, vr(WD + 4 * i, 4), vr(WA + 4 * i, 4), vr(FS + 4 * ks, 4), vr(WD + 4 * i, 4) if ks else '0') for i in range(10)]
    b = Asm()
    b.items.append(('wait_both', 'g0'))
    b.I('s_barrier')
    b.ext(rds(0)[:14])
    b.ext(addr[:14])
    b.ext(rds(0)[14:])
    b.ext(addr[14:34])
    b.I('s_waitcnt lgkmcnt(0)')
    b.ext(weave(mf(0), addr[34:], 0, 2))
    for w in range(4):
        for e in range(2):
            b.I('ds_read_b128 %s, v%d offset:%d' % (vr(TB + 24 * (w >> 1) + 8 * e + 4 * (w & 1), 4), vRB, 2048 * w + 1024 * e))
    b.I('ds_read_b128 %s, v%d' % (vr(AP + 12, 4), vA0))
    b.I('ds_read_b128 %s, v%d offset:128' % (vr(AM + 12, 4), vA0))
    b.I('ds_read_b64 %s, v%d' % (vr(FS, 2), vA2))
    for ib in range(8):
        b.I('v_mov_b32 v%d, 0' % (TA + 8 * ib + 3))
        b.I('v_mov_b32 v%d, 0' % (TA + 8 * ib + 7))
    b.I('s_mul_i32 %s, %s, 20480' % (sW20, sW))
    b.I('s_mul_i32 %s, %s, 11264' % (sW11, sW))
    b.I('s_waitcnt lgkmcnt(0)')
    b.ext(unpack([AP + 12, AP + 13, AP + 14, AP + 15, AM + 12, AM + 13, AM + 14, AM + 15, FS, FS + 1], XE))
    neg = ['v_xor_b32 v%d, 0x80008000, v%d' % (TB + 16 + i, TB + 8 + i) for i in range(8)] + \
          ['v_xor_b32 v%d, 0x80008000, v%d' % (TB + 40 + i, TB + 24 + i) for i in range(8)]
    a.ext(timed(b.items, q, PER))
    a.wait_vm('g1')
    a.I('s_barrier')
    st(a, 'AB')
    b = Asm()
    b.ext(rds(1)[:12])
    b.ext(neg[:6])
    b.ext(weave(mf(1), rds(1)[12:] + neg[6:], 0, 2))

    def ub(ib):
        d = lambda t: WD + 20 * (ib >> 2) + 4 * t + (ib & 3)
        u = WA + 4 * ib
        return ['v_cvt_pk_bf16_f32 v%d, v%d, v%d' % (u, d(0), d(1)), 'v_cvt_pk_bf16_f32 v%d, v%d, v%d' % (u + 1, d(2), d(3)),
                'v_cvt_pk_bf16_f32 v%d, v%d, 0' % (u + 2, d(4))]
    PQ = [[WD + 4 * ib for ib in range(8)], [TA + 8 * ib for ib in range(8)]]
    mP = ['%s %s, %s, %s, 0' % (M16, vr(PQ[0][ib], 4), vr(TA + 8 * ib, 4), vr(WA + 4 * ib, 4)) for ib in range(8)]
    mQ = ['%s %s, %s, %s, 0' % (M16, vr(PQ[1][ib], 4), vr(TA + 8 * ib + 4, 4), vr(WA + 4 * ib, 4)) for ib in range(8)]

    def vout(pq):
        o = []
        for r in range(4):
            t = (WA + 32, WA + 36, WD + 32, WD + 36)[r]
            for p in range(4):
                o.append('v_cvt_pk_bf16_f32 v%d, v%d, v%d' % (t + p, PQ[pq][2 * p] + r, PQ[pq][2 * p + 1] + r))
            o.append('ds_write_b128 v%d, %s offset:%d' % (vVW[r >> 1], vr(t, 4), pq * 12288 + r * 128))
        return o
    b.ext(ub(0) + ub(1) + ub(2) + ub(3))
    b.ext(weave(mP[:4] + mQ[:2], ub(4) + ub(5) + ub(6) + ub(7), 0, 2))
    b.ext(mP[4:])
    b.ext(weave(mQ[2:], vout(0), 1, 2))
    b.I('s_waitcnt lgkmcnt(0)')
    b.I('s_barrier')
    a.ext(timed(b.items, q, PER))
    st(a, 'B')
    assert not any(g[-1].tag == 'w' for g in q)
    q[:0] = dma(vD0, sW20, 0, 20, 'w')

    def mb(pq, pm):
        o = []
        for k in range(4):
            ri, wh = k >> 1, k & 1
            tb = (((0, 8), (16, 0)), ((24, 32), (32, 40)))[pm][pq][ri]
            acc = vr((AP, AM)[pm], 16)
            o.append('%s %s, %s, %s, %s' % (M32, acc, vr(WA + 16 * pq + 4 * k, 4), vr(TB + tb + 4 * wh, 4), acc))
        return o
    vrd = lambda pq: ['ds_read_b128 %s, v%d offset:%d' % (vr(WA + 16 * pq + 4 * k, 4), vVR[k], pq * 12288) for k in range(4)]
    vq = vout(1)
    S = WD

    def stat(es, first):
        o = []
        for e in es:
            if first:
                o.append('v_add_f32 v%d, v%d, v%d' % (S, XE(e), XE(e + 1)))
                o.append('v_mul_f32 v%d, v%d, v%d' % (S + 1, XE(e), XE(e)))
                first = False
            else:
                o.append('v_add_f32 v%d, v%d, v%d' % (S, S, XE(e)))
                o.append('v_fmac_f32 v%d, v%d, v%d' % (S + 1, XE(e), XE(e)))
                o.append('v_add_f32 v%d, v%d, v%d' % (S, S, XE(e + 1)))
            o.append('v_fmac_f32 v%d, v%d, v%d' % (S + 1, XE(e + 1), XE(e + 1)))
        return o
    pk = ['v_cvt_pk_bf16_f32 v%d, v%d, v%d' % (WD + 8 + i, XE(2 * i), XE(2 * i + 1)) for i in range(10)]

    def take(n):
        r = []
        for g in q[:n]:
            r += g
        del q[:n]
        return r
    a.ext(vrd(0))
    a.ext(vq[:10])
    a.ext(take(1))
    mm = mb(0, 0)
    a.ext([mm[0]] + vq[10:15] + [mm[1]] + vq[15:] + [mm[2]] + take(1) + late[:3] + [mm[3]])
    a.I('s_waitcnt lgkmcnt(0)')
    a.I('s_barrier')
    mm = mb(0, 1) + mb(1, 0) + mb(1, 1)
    a.I(mm[0])
    a.ext(vrd(1))
    li = 3
    for i in range(1, 10):
        a.I(mm[i])
        if i % 2:
            a.ext(take(1))
            a.ext(late[li:li + 3])
            li += 3
        else:
            a.ext(late[li:li + 5])
            li += 5
    a.ext(late[li:])
    s0 = stat(range(0, 10, 2), True) + pk[:5]
    a.I(mm[10])
    a.ext(s0[:6])
    a.I(mm[11])
    b = Asm()
    b.ext(s0[6:])
    st(b, 'B')
    b.ext(stat(range(10, 20, 2), False))
    red = []
    for m in ('quad_perm:[1,0,3,2]', 'quad_perm:[2,3,0,1]', 'row_half_mirror', 'row_mirror'):
        for i in range(2):
            red.append('v_add_f32_dpp v%d, v%d, v%d %s row_mask:0xf bank_mask:0xf' % (S + i, S + i, S + i, m))
    b.I(pk[5])
    b.ext(weave(red, pk[6:] + ['ds_write_b128 v%d, %s' % (vA0, vr(WD + 8, 4))], 1, 0.75))
    b.I('v_mov_b32 v%d, v%d' % (S + 2, S))
    b.I('v_mov_b32 v%d, v%d' % (S + 3, S + 1))
    b.I('ds_write_b128 v%d, %s offset:128' % (vA0, vr(WD + 12, 4)))
    b.I('v_permlane16_swap_b32 v%d, v%d' % (S, S + 2))
    b.I('v_permlane16_swap_b32 v%d, v%d' % (S + 1, S + 3))
    b.I('v_add_f32 v%d, v%d, v%d' % (S, S, S + 2))
    b.I('v_add_f32 v%d, v%d, v%d' % (S + 1, S + 1, S + 3))
    b.I('ds_write_b64 v%d, %s' % (vA2, vr(WD + 16, 2)))
    ln_coef(b, S, S + 1, S + 2, S + 4, None, LOG2E)
    a.ext(timed(b.items, q, PER))
    ZP = WA
    pkf = lambda r: 'v_pk_fma_f32 %s, %s, %s, %s op_sel_hi:[1,0,0]' % (vr(r, 2), vr(r, 2), vr(S + 2, 2), vr(S + 4, 2))
    cz = lambda i: 'v_cvt_pk_bf16_f32 v%d, v%d, v%d' % (ZP + i, XE(2 * i), XE(2 * i + 1))
    for i in range(4):
        a.I(pkf(AP + 2 * i))
    for i in range(4):
        a.I(cz(i))
    a.I('ds_write_b128 v%d, %s offset:%d' % (vA0, vr(ZP, 4), L_Z - L_X))
    for r in (AP + 8, AM + 10, AM + 8, AM + 6, AM + 4):
        a.I(pkf(r))
    for i in range(4, 8):
        a.I(cz(i))
    a.I('ds_write_b128 v%d, %s offset:%d' % (vA0, vr(ZP + 4, 4), L_Z - L_X + 128))
    a.I(pkf(AM + 2))
    a.I(pkf(AM))
    a.I(cz(8))
    a.I(cz(9))
    a.I('ds_write_b64 v%d, %s offset:%d' % (vA2, vr(ZP + 8, 2), L_Z - L_X))
    a.I('s_waitcnt lgkmcnt(0)')
    a.I('s_barrier')
    for it in range(3):
        a.I('ds_read_b128 %s, v%d offset:%d' % (vr(WD + 4 * it, 4), vRB, L_Z - L_X + 1024 * it))
    for it in range(3):
        a.I('ds_read_b128 %s, v%d offset:%d' % (vr(WD + 12 + 4 * it, 4), vRB, 1024 * it))
    for it in range(3):
        a.I('buffer_store_dwordx4 %s, v%d, %s, %s offen sc1' % (vr(WD + 4 * it, 4), vZS[it], WS, sZS), tag='zs')
    a.I('s_waitcnt lgkmcnt(0)')
    a.I('s_barrier')
    st(a, 'AB')
    a.I('s_add_u32 %s, %s, %s' % (sXS, sBLK, sW25))
    a.I('s_add_u32 %s, %s, 0x%x' % (sXS, sXS, oX1))
    a.I('v_min_u32 v%d, 1, v0' % vFl)
    a.I('v_lshlrev_b32 v%d, 31, v%d' % (vFl, vFl))
    a.I('s_lshl_b32 %s, %s, 7' % (sZF, sCLS))
    a.I('s_add_u32 %s, %s, %s' % (sZF, sZF, sLB))
    a.I('s_add_u32 %s, %s, 0x%x' % (sZF, sZF, oFL))
    x1st = ['buffer_store_dwordx4 %s, v%d, %s, %s offen offset:%d sc1' % (vr(WD + 12 + 4 * it, 4), 254 if it == 2 else vL16, WS, sXS, 1024 * it) for it in range(3)]
    w1 = [g for g in q if g[-1].tag == 'w']
    rest = [g for g in q if g[-1].tag != 'w']
    sys.stderr.write('after KB: w1 left %d, wda left %d\n' % (len(w1), len(rest)))
    return w1 + dma(vD0, sW11, L_V, 11, 'w') + rest, x1st


def gemms(a, st, q, x1st):
    vLD, vZ, vL8, vC, vSg, vH = (vL16, 1, 2), 3, 4, 5, 6, 7
    vS0, vS1 = 8, 9
    HP, ACC, ET, Z = 16, [24, 40, 56, 72], 88, 96
    WB = 160
    sZ, sZc, sHS, sH6, sW5, sT6, sC2 = sT[0], sT[1], sT[3], sT[4], sT[5], sT[6], sT[7]
    sQ = sT[2]

    def take(n):
        r = []
        for g in q[:n]:
            r += g
        del q[:n]
        return r
    b = Asm()
    b.I('v_mov_b32 v%d, 1' % vSg)
    b.I('s_lshl_b32 %s, %s, 2' % (sZ, sG))
    b.I('s_add_u32 %s, %s, %s' % (sZ, sZ, sW))
    b.I('s_lshl_b32 %s, %s, 7' % (sZc, sZ))
    b.I('s_add_u32 %s, %s, %s' % (sZc, sZc, sLB))
    b.I('s_add_u32 %s, %s, 0x%x' % (sZc, sZc, oFL))
    b.I('s_mul_i32 %s, %s, 110592' % (sHS, sZ))
    b.I('s_mul_i32 %s, %s, 40960' % (sZ, sZ))
    b.I('s_add_u32 %s, %s, %s' % (sZ, sZ, sLB))
    b.I('s_add_u32 %s, %s, 0x%x' % (sZ, sZ, oZ))
    b.I('v_lshrrev_b32 v%d, 4, v0' % vZ)
    b.I('v_and_b32 v%d, 15, v0' % vL8)
    b.I('v_lshlrev_b32 v%d, 4, v%d' % (vL8, vL8))
    b.I('v_lshl_add_u32 v%d, v%d, 9, v%d' % (vZ, vZ, vL8))
    b.I('v_add_u32 v%d, %s, v%d' % (vZ, sZ, vZ))
    b.I('v_add_u32 v%d, 4096, v%d' % (vS0, vZ))
    b.I('v_add_u32 v%d, 8192, v%d' % (vS1, vZ))
    b.I('v_lshlrev_b32 v%d, 3, v0' % vL8)
    b.I('v_add_u32 v%d, 0x10000, v%d' % (vLD[1], vL16))
    b.I('v_add_u32 v%d, 0x20000, v%d' % (vLD[2], vL16))
    b.I('s_lshr_b32 s3, %s, 2' % sMU)
    b.I('s_mul_i32 s3, s3, 27648')
    b.I('s_add_u32 %s, %s, s3' % (sHS, sHS))
    b.I('s_add_u32 %s, %s, %s' % (sHS, sHS, sLB))
    b.I('s_add_u32 %s, %s, 0x%x' % (sHS, sHS, oH))
    b.I('s_lshl_b32 s3, %s, 10' % sQ)
    b.I('s_add_u32 %s, %s, s3' % (sHS, sHS))
    b.I('s_add_u32 %s, %s, 24576' % (sH6, sHS))
    b.I('s_add_u32 %s, %s, s3' % (sHS, sHS))
    b.I('s_mul_i32 %s, %s, 5120' % (sW5, sW))
    b.I('s_add_u32 %s, %s, 1' % (sT6, sQ))
    b.I('s_lshr_b32 %s, %s, 2' % (sT6, sT6))
    b.I('s_lshl_b32 %s, %s, 31' % (sT6, sT6))
    b.I('s_mov_b32 %s, %s' % (sC2, fl(LOG2E * LOG2E)))
    b.I('s_lshl_b32 %s, %s, 2' % (sHF, sG))
    b.I('s_lshr_b32 s3, %s, 2' % sMU)
    b.I('s_add_u32 %s, %s, s3' % (sHF, sHF))
    b.I('s_lshl_b32 %s, %s, 1' % (sHF, sHF))
    b.I('s_lshr_b32 s3, %s, 1' % sW)
    b.I('s_add_u32 %s, %s, s3' % (sHF, sHF))
    b.I('s_lshl_b32 %s, %s, 7' % (sHF, sHF))
    b.I('s_add_u32 %s, %s, %s' % (sHF, sHF, sLB))
    b.I('s_add_u32 %s, %s, 0x%x' % (sHF, sHF, oFL + 8192))
    b.I('s_lshl_b32 %s, %s, 2' % (sHC, sG))
    b.I('s_add_u32 %s, %s, %s' % (sHC, sHC, sW))
    b.I('s_lshl_b32 %s, %s, 1' % (sHC, sHC))
    b.I('s_add_u32 %s, %s, %s' % (sHC, sHC, sHB))
    b.I('s_lshl_b32 %s, %s, 7' % (sHC, sHC))
    b.I('s_add_u32 %s, %s, %s' % (sHC, sHC, sLB))
    b.I('s_add_u32 %s, %s, 0x%x' % (sHC, sHC, oFL + 8192))
    sHP = sT[13:17]
    b.I('s_lshl_b32 %s, %s, 1' % (sT[17], sG))
    b.I('s_add_u32 %s, %s, %s' % (sT[17], sT[17], sHB))
    b.I('s_mul_i32 %s, %s, %d' % (sT[17], sT[17], 2 * 110592))
    b.I('s_mul_i32 s3, %s, 27648' % sW)
    b.I('s_add_u32 %s, %s, s3' % (sT[17], sT[17]))
    b.I('s_add_u32 %s, %s, %s' % (sT[17], sT[17], sLB))
    b.I('s_add_u32 %s, %s, 0x%x' % (sT[17], sT[17], oH))
    for p in range(4):
        b.I('s_add_u32 %s, %s, %d' % (sT[18], sW, p + 1))
        b.I('s_bfe_u32 s3, %s, 0x10001' % sT[18])
        b.I('s_mul_i32 s3, s3, 110592')
        b.I('s_add_u32 %s, %s, s3' % (sHP[p], sT[17]))
        b.I('s_and_b32 s3, %s, 1' % sT[18])
        b.I('s_lshl_b32 s3, s3, 10')
        b.I('s_add_u32 %s, %s, s3' % (sHP[p], sHP[p]))
    nA, nB, nC = opt('nA', 10), opt('nB', 10), opt('nC', 4)
    qa = q[:nA]
    del q[:nA]
    a.ext(timed(b.items, qa, 4 * len(b.items) // max(nA, 1)))
    for g in qa:
        a.ext(g)
    a.wait_vm('zs')
    a.I('buffer_atomic_add v%d, v%d, %s, %s offen sc1' % (vSg, vFl, WS, sZF))
    st(a, 'B')
    a.ext(x1st)
    a.ext(take(max(nB, len([g for g in q if g[-1].tag == 'w']))))
    a.ext(check_issue(vC, sZc))
    a.ext(take(nC))
    sys.stderr.write('into GEMM1: wda left %d\n' % len(q))

    groups = [(t, kg, m) for kg in range(4) for t in range(3) for m in range(2)] + [(t, kg, m) for t in range(3, 7) for kg in range(4) for m in range(2)]
    DST = [0, 40960, 81920, 20480, 61440, 102400]
    accof = [0, 1, 2, 3, 0, 1, 2]

    def grp_reads(n):
        t, kg, m = groups[n]
        off = t * 40960 + kg * 10240 if t < 4 else DST[2 * (t - 4) + (kg >> 1)] + (kg & 1) * 10240
        off += m * 5120
        return ['ds_read_b128 %s, v%d offset:%d' % (vr(WB + 20 * (n & 1) + 4 * i, 4, 'a'), vLD[(off + 1024 * i) >> 16], (off + 1024 * i) & 0xffff) for i in range(5)]
    a.wait_vm('w')
    a.I('s_barrier')
    a.ext(grp_reads(0))
    ct = check_test(vC, sZc, 4, 'zf')
    a.ext([ct[0]] + ct[1])
    st(a, 'AC')
    zl = lambda ks, rt, va: Ins('buffer_load_dwordx4 %s, v%d, %s, 0 offen offset:%d sc1' % (vr(Z + 8 * ks + 4 * rt, 4), va, WS, (ks & 1) * 2048 + rt * 256), 'z%d' % (ks // 5))
    for rt in range(2):
        for ks in range(5):
            a.ext([zl(ks, rt, (vZ, vS0, vS1)[ks >> 1])])
    zq = []
    for ks in range(5, 20):
        for rt in range(2):
            zq.append(([Ins('v_add_u32 v%d, 4096, v%d' % (vS1, vS1))] if (ks % 2 == 0 and rt == 0) else []) + [zl(ks, rt, vS1)])
    NZ = opt('nz', 4)
    for g in zq[:NZ]:
        a.ext(g)

    prevd = [0]

    def half_dma(h):
        g = dma(vD0, sW5, DST[h], 5, 't%d' % (4 + h // 2))
        d = (8 + h) * 20480 - DST[h]
        pre = [Ins('v_add_u32 v%d, 0x%x, v%d' % (vD0, (d - prevd[0]) & 0xffffffff, vD0))]
        prevd[0] = d
        if h == 4:
            pre.append(Ins('v_add_u32 v%d, %s, v%d' % (vD0, sT6, vD0)))
        g[0] = pre + g[0]
        return g

    def epi(t):
        A = ACC[accof[t]]
        o = []
        for r in range(8):
            o.append('v_exp_f32_e64 v%d, -v%d' % (ET + r, A + r))
            o.append('v_mul_f32 v%d, v%d, v%d' % (A + 8 + r, A + r, A + 8 + r))
            o.append('v_fma_f32 v%d, v%d, %s, %s' % (A + r, ET + r, sC2, sC2))
        for p in range(4):
            for r in (2 * p, 2 * p + 1):
                o.append('v_rcp_f32 v%d, v%d' % (A + r, A + r))
                o.append('v_mul_f32 v%d, v%d, v%d' % (A + 8 + r, A + 8 + r, A + r))
            o.append('v_cvt_pk_bf16_f32 v%d, v%d, v%d' % (HP + 4 * (p >> 1) + 2 * (t & 1) + (p & 1), A + 8 + 2 * p, A + 9 + 2 * p))
        return o

    def hstore(e):
        if opt('nost', 0):
            return []
        if e < 3:
            return [Ins('buffer_store_dwordx4 %s, v%d, %s, %s offen offset:%d sc1' % (vr(HP + 4 * rt, 4), vL16, WS, sHS, 1024 * rt), 'hs%d' % e) for rt in range(2)] + \
                   [Ins('s_add_u32 %s, %s, 8192' % (sHS, sHS))]
        return [Ins('v_add_u32 v%d, %s, v%d' % (vDt, sT6, vL8))] + \
               [Ins('buffer_store_dwordx2 %s, v%d, %s, %s offen offset:%d sc1' % (vr(HP + 4 * rt, 2), vDt, WS, sH6, 512 * rt), 'hs3') for rt in range(2)]

    def signal(e):
        if opt('nosig', 0):
            return []
        return [Ins('v_mov_b32 v%d, 0x%x' % (vSg, 1 << (8 * e))),
                [('wait_vm', 'hs%d' % e), Ins('buffer_atomic_add v%d, v%d, %s, %s offen sc1' % (vSg, vFl, WS, sHF))]]

    sSt = sT[19]

    def stage(part):
        o = []
        for i in range(10):
            g = []
            if i == 0:
                if part == 0:
                    g += [Ins('s_mul_i32 %s, %s, 10240' % (sSt, sW)), Ins('s_add_u32 %s, %s, 122880' % (sSt, sSt)),
                          Ins('v_add_u32 v%d, %s, v%d' % (vS0, sSt, vL16))]
                else:
                    g += [Ins('s_lshr_b32 %s, %s, 1' % (sSt, sW)), Ins('s_mul_i32 %s, %s, 20480' % (sSt, sSt)),
                          Ins('s_mul_i32 s3, %s, 10240' % sW), Ins('s_add_u32 %s, %s, s3' % (sSt, sSt)),
                          Ins('v_add_u32 v%d, %s, v%d' % (vS1, sSt, vL16))]
            if i % 4 == 0:
                g += [Ins('s_add_u32 m0, %s, %d' % (sSt, i * 1024)), Ins('v_add_u32 v%d, %d, v%d' % (vWa, 2048 if (part, i) == (1, 0) else 4096, vWa))]
            g.append(Ins('buffer_load_dwordx4 v%d, %s, 0 offen offset:%d lds' % (vWa, WS, (i % 4) * 1024), 'stg'))
            o.append(g)
        return link(o)

    hs = [[('a', 200 + 4 * i) for i in range(14)] + [('v', ACC[3]), ('v', ACC[3] + 4)],
          [('v', ACC[0] + 4 * i) for i in range(4)] + [('v', ACC[1] + 4 * i) for i in range(4)] +
          [('v', ACC[3] + 8), ('v', ACC[3] + 12), ('a', 200), ('a', 204)] + [('v', ACC[2] + 4 * i) for i in range(4)],
          [('a', 4 * i) for i in range(16)],
          [('a', 208 + 4 * i) for i in range(8)]]
    wd = lambda ps, i, n: ('a', 80 * ps + 20 * i + 4 * n) if ps < 2 else (('v', 176 + 20 * i + 4 * n) if ps == 2 else ('a', 160 + 20 * i + 4 * n))
    R = lambda s, n=4, o=0: vr(s[1] + o, n, s[0])

    def hload(ps, p):
        o = []
        tag = 'h%d%d' % (ps, p)
        if opt('nohl', 0):
            return [[Ins('s_nop 0')]]
        if ps < 3:
            for i in range(4):
                g = []
                if i % 2 == 0:
                    g += [Ins('v_add_u32 v%d, %s, v%d' % (vH, sHP[p], vL16)), Ins('s_add_u32 %s, %s, 4096' % (sHP[p], sHP[p]))]
                g.append(Ins('buffer_load_dwordx4 %s, v%d, %s, 0 offen offset:%d sc1' % (R(hs[ps][4 * p + i]), vH, WS, (i & 1) * 2048), tag))
                o.append(g)
        else:
            for i in range(3):
                g = []
                if i == 0:
                    g += [Ins('s_add_u32 s3, %s, %d' % (sW, p + 1)), Ins('s_and_b32 s3, s3, 1'), Ins('s_lshl_b32 s3, s3, 9'),
                          Ins('s_sub_u32 s3, %s, s3' % sHP[p]), Ins('v_add_u32 v%d, s3, v%d' % (vH, vL8))]
                g.append(Ins('buffer_load_dwordx2 %s, v%d, %s, 0 offen offset:%d sc1' % (R(hs[3][2 * p + (i >> 1)], 2, 2 * (i & 1)), vH, WS, i * 1024), tag))
                o.append(g)
        return o

    sc = Sched()
    G = 560
    bar = {11: None, 23: None, 31: 't4', 39: 't5', 47: 't6'}
    for gi in range(1, len(groups)):
        n = 10 * gi - 1
        t, kg, m = groups[gi]
        if gi in bar:
            sc.add([('wait_both', bar[gi]), 's_barrier'], n, n)
        elif gi in (6, 12, 18):
            sc.add([('wait_both', 'z%d' % kg)], n, n)
        else:
            sc.add('s_waitcnt lgkmcnt(0)', n, n)
        for i, x in enumerate(grp_reads(gi)):
            sc.add(x, n - 9, n - 9 + opt('rl', 1) + (i * opt('rs', 3)) // 4)

    def check(e, n0, n1):
        if opt('nock', 0):
            return n1 + 3
        sc.asap(check_issue(vC, sHC), n0, n0 + 4)
        ct = check_test(vC, sHC, 8 * e + 3, 'h%d' % e)
        sc.add([('wait_vm', 'ck'), ct[0]], n1, n1 + 2)
        sc.add(ct[1], n1 + 2, n1 + 4)
        return n1 + 3
    sc.paced(zq[NZ:], 0, opt('zend', 112))
    sc.paced(half_dma(0) + half_dma(1) + half_dma(2) + q, 114, 230)
    sc.paced(half_dma(3), 232, 300)
    sc.asap(epi(0), 205, 300)
    sc.asap(epi(1), 225, 318)
    e0 = opt('e0', 293)
    sc.asap(hstore(0), e0, e0 + 6)
    sc.paced(half_dma(4) + half_dma(5), 300, 380)
    sc.asap(epi(2), e0 + 2, 380)
    sc.asap(epi(3), 325, 400)
    e1 = opt('e1', 390)
    sc.asap(hstore(1), e1, e1 + 6)
    sc.asap(signal(0), e0 + 56, e0 + 60)
    sc.paced(stage(0) + stage(1), 382, 468)
    sc.asap(epi(4), 405, 470)
    sc.asap(signal(1), e1 + 56, e1 + 60)
    n = check(0, opt('ck0', 420), opt('ct0', 464))
    sc.paced(hload(0, 0) + hload(0, 1) + hload(0, 2) + hload(0, 3), max(n, 470), 540)
    sc.asap(epi(5), 485, 540)
    e2 = opt('e2', 534)
    sc.asap(hstore(2), e2, e2 + 6)
    n = check(1, opt('ck1', 495), opt('ct1', 538))
    sc.paced(hload(1, 0) + hload(1, 1), max(n, 542), G + 20)
    sc.asap(epi(6), G + 5, G + 42)
    e3 = G + opt('e3', 40)
    sc.asap(hstore(3), e3, e3 + 4)
    sc.asap(signal(2), e2 + 54, e2 + 58)
    sc.paced(hload(1, 2), G + 21, G + 42)
    sc.paced(hload(1, 3), G + 45, G + 60)
    ws = []
    for n in range(5):
        g = [Ins('v_add_u32 v%d, %d, v%d' % (vWa, 2048 if n == 0 else 4096, vWa))] if n % 4 == 0 else []
        ws.append(g + [Ins('buffer_load_dwordx4 %s, v%d, %s, 0 offen offset:%d' % (R(wd(3, 0, n)), vWa, WS, (n % 4) * 1024))])
    for n in range(5):
        g = [Ins('v_sub_u32 v%d, v%d, v%d' % (vWa, vWa, vL8))] if n == 0 else []
        ws.append(g + [Ins('buffer_load_dwordx2 %s, v%d, %s, 0 offen offset:%d' % (R(wd(3, 1, n), 2), vWa, WS, 1024 + n * 512))])
        sc.asap(['v_accvgpr_write_b32 a%d, 0' % (wd(3, 1, n)[1] + 2), 'v_accvgpr_write_b32 a%d, 0' % (wd(3, 1, n)[1] + 3)], G + 50, G + 200)
    sc.paced(ws, G + 66, G + 100)
    sc.add([('wait_vm', 'stg')], G + 44, G + 45)
    sc.paced(['ds_read_b128 %s, v%d offset:%d' % (vr(176 + 4 * i, 4), vS0 if i < 10 else vS1, (i % 10) * 1024) for i in range(20)], G + 46, G + 120)
    n = check(2, G + opt('ck2', 62), G + opt('ct2', 100))
    sc.asap(signal(3), e3 + 54, e3 + 58)
    sc.paced(hload(2, 0) + hload(2, 1), n, G + 134)
    sc.paced(hload(2, 2) + hload(2, 3), G + 138, G + 168)
    sc.add(['s_waitcnt lgkmcnt(0)', 's_barrier'], G + 140, G + 140)
    n = check(3, G + opt('ck3', 134), G + opt('ct3', 172))
    sc.paced(hload(3, 0) + hload(3, 1) + hload(3, 2) + hload(3, 3), n, G + 204)
    SUM, TMP, PK, vA0, vA2 = 24, 44, 64, 1, 2
    vP, vPR = (3, 10, 11), 23
    sX1, sO = sT[0], sT[1]
    b = Asm()
    tile_xr_addr(b, vA0, vA2, ET, sT[3])
    tile_blk_soff(b, sX1, sLB, oX1)
    for p in range(4):
        b.I('s_add_u32 %s, %s, %d' % (sT[3], sW, p + 1))
        b.I('s_and_b32 %s, %s, 3' % (sT[3], sT[3]))
        b.I('s_mul_i32 %s, %s, 15360' % (sT[3], sT[3]))
        if 0 < p < 3:
            b.I('s_add_u32 %s, %s, %d' % (sT[3], sT[3], p * 5120))
        b.I('v_add_u32 v%d, %s, v%d' % (vP[p] if p < 3 else vPR, sT[3], vL16))
    vOW, vOR, vOG = 16, (17, 18, 19), (20, 21, 22)
    L_O = 61440
    row_nat_soff(b, sO, sT[3])
    b.I('s_mul_i32 %s, %s, 160' % (sT[3], sJJ))
    b.I('s_add_u32 %s, %s, %s' % (sO, sO, sT[3]))
    b.I('s_mul_i32 %s, %s, 2816' % (sT[3], sW))
    b.I('s_add_u32 %s, %s, %d' % (sT[3], sT[3], L_O))
    b.I('v_and_b32 v%d, 15, v0' % ET)
    b.I('v_mul_u32_u24 v%d, 176, v%d' % (vOW, ET))
    b.I('v_lshrrev_b32 v%d, 4, v0' % ET)
    b.I('v_mad_u32_u24 v%d, v%d, 40, v%d' % (vOW, ET, vOW))
    b.I('v_add_u32 v%d, %s, v%d' % (vOW, sT[3], vOW))
    for it in range(3):
        b.I('v_add_u32 v%d, %d, v0' % (ET, 64 * it))
        b.I('v_mul_u32_u24 v%d, 205, v%d' % (ET + 1, ET))
        b.I('v_lshrrev_b32 v%d, 11, v%d' % (ET + 1, ET + 1))
        b.I('v_add_u32 v%d, v%d, v%d' % (ET + 2, ET, ET + 1))
        b.I('v_lshl_add_u32 v%d, v%d, 4, %s' % (vOR[it], ET + 2, sT[3]))
        b.I('v_mul_u32_u24 v%d, %d, v%d' % (ET + 1, 81920 - 160, ET + 1))
        b.I('v_lshl_add_u32 v%d, v%d, 4, v%d' % (vOG[it], ET, ET + 1))
    b.I('v_lshrrev_b32 v%d, 5, v0' % ET)
    b.I('v_lshl_add_u32 v%d, v%d, 31, v%d' % (vOG[2], ET, vOG[2]))
    sc.asap(b.items, G + 52, G + 160)
    sc.paced([Ins('buffer_load_dwordx4 %s, v%d, %s, %s offen sc1' % (vr(PK, 4), vA0, WS, sX1), 'x1'),
              Ins('buffer_load_dwordx4 %s, v%d, %s, %s offen offset:128 sc1' % (vr(PK + 4, 4), vA0, WS, sX1), 'x1'),
              Ins('buffer_load_dwordx2 %s, v%d, %s, %s offen sc1' % (vr(PK + 8, 2), vA2, WS, sX1), 'x1')], G + 168, G + 172)
    sc.asap(unpack(range(PK, PK + 10), lambda i: SUM + i), G + 221, G + 260)
    A2 = lambda p: Z + 20 * p
    for p in range(3):
        for n in range(5):
            sc.add('ds_write_b128 v%d, %s offset:%d' % (vP[p], vr(A2(p) + 4 * n, 4), 1024 * n), G + 228 + 10 * p + 2 * n, G + 229 + 10 * p + 2 * n)
    nb = G + opt('rb', 261)
    sc.add(['s_waitcnt lgkmcnt(0)', 's_barrier'], nb, nb)
    rds = lambda p, r: ['ds_read_b128 %s, v%d offset:%d' % (vr(r + 4 * n, 4), vPR, p * 5120 + n * 1024) for n in range(5)]
    add = lambda r: ['v_pk_add_f32 %s, %s, %s' % (vr(SUM + 2 * i, 2), vr(SUM + 2 * i, 2), vr(r + 2 * i, 2)) for i in range(10)]
    sc.asap(rds(0, TMP) + rds(1, A2(0)) + rds(2, A2(1)), nb + 1, nb + 9)
    sc.add('s_waitcnt lgkmcnt(10)', nb + 9, nb + 9)
    sc.asap(['v_add_f32 v%d, v%d, v%d' % (SUM + i, SUM + i, TMP + i) for i in range(20)], nb + 10, 10 ** 6)

    mf = []
    for gi, (t, kg, m) in enumerate(groups):
        for rt in range(2):
            for i in range(5):
                A = vr(ACC[accof[t]] + 8 * m + 4 * rt, 4)
                mf.append('%s %s, %s, %s, %s' % (M16, A, vr(WB + 20 * (gi & 1) + 4 * i, 4, 'a'), vr(Z + 8 * (5 * kg + i) + 4 * rt, 4), A if (kg or i) else '0'))
    order = [(0, p) for p in range(4)] + [(1, p) for p in range(4)] + [(2, p) for p in range(3)] + [(3, p) for p in range(3)] + [(2, 3), (3, 3)]
    for ps, p in order:
        L = 4 if ps < 3 else 2
        sc.add([('wait_vm', 'h%d%d' % (ps, p))], len(mf) - 1, len(mf) - 1)
        for c in range(5):
            for i in range(L):
                A = vr(A2(p) + 4 * c, 4)
                mf.append('%s %s, %s, %s, %s' % (M16, A, R(wd(ps, i, c)), R(hs[ps][L * p + i]), A if (ps or i) else '0'))

    def hook(n):
        for s, pts in (('A', (0, 559)), ('C', (0, 240, 400, 559)), ('D', (559, 639, 719, 779)), ('E', (0, 60, 120, 180, 240, 320, 400)), ('F', (400, 480, 559, 639, 719, 779, 809))):
            if n in pts:
                st(a, s)
    r = sc.run(a, mf, hook)
    sys.stderr.write('sched overflow slots %d, left %d\n' % r)
    st(a, 'ACD')
    a.ext(add(A2(0)) + add(A2(1)) + add(A2(3)))
    a.I('s_cmp_eq_u32 %s, 0' % sLAST)
    a.I('s_cbranch_scc1 ffn_tail')
    for nn in range(5):
        a.I('v_cvt_pk_bf16_f32 v%d, v%d, v%d' % (PK + 2 * nn, SUM + 4 * nn, SUM + 4 * nn + 1))
        a.I('v_cvt_pk_bf16_f32 v%d, v%d, v%d' % (PK + 2 * nn + 1, SUM + 4 * nn + 2, SUM + 4 * nn + 3))
        a.I('ds_write_b64 v%d, %s offset:%d' % (vOW, vr(PK + 2 * nn, 2), 8 * nn))
    for it in range(3):
        a.I('ds_read_b128 %s, v%d' % (vr(TMP + 4 * it, 4), vOR[it]))
    for it in range(3):
        a.I('buffer_store_dwordx4 %s, v%d, %s, %s offen%s' % (vr(TMP + 4 * it, 4), vOG[it], SA, sO, ' sc1' if opt('osc', 1) else ''))
    st.flush(a)
    a.I('s_endpgm')

    a.label('ffn_tail')
    a.reset()
    T = TMP
    a.I('v_pk_add_f32 %s, %s, %s' % (vr(T, 2), vr(SUM, 2), vr(SUM + 2, 2)))
    a.I('v_pk_mul_f32 %s, %s, %s' % (vr(T + 2, 2), vr(SUM, 2), vr(SUM, 2)))
    a.I('v_pk_fma_f32 %s, %s, %s, %s' % (vr(T + 2, 2), vr(SUM + 2, 2), vr(SUM + 2, 2), vr(T + 2, 2)))
    for e in range(4, 20, 2):
        a.I('v_pk_add_f32 %s, %s, %s' % (vr(T, 2), vr(T, 2), vr(SUM + e, 2)))
        a.I('v_pk_fma_f32 %s, %s, %s, %s' % (vr(T + 2, 2), vr(SUM + e, 2), vr(SUM + e, 2), vr(T + 2, 2)))
    sS = sT[3]
    a.I('v_add_f32 v%d, v%d, v%d' % (T, T, T + 1))
    a.I('v_add_f32 v%d, v%d, v%d' % (T + 1, T + 2, T + 3))
    b = Asm()
    stats_soff(b, sS, sLN)
    b.I('s_lshl_b32 s3, %s, 7' % sJJ)
    b.I('s_add_u32 s3, s3, %s' % sS)
    b.I('v_lshrrev_b32 v%d, 4, v0' % (T + 4))
    b.I('v_min_u32 v%d, 1, v%d' % (T + 4, T + 4))
    b.I('v_lshl_add_u32 v%d, v%d, 31, v%d' % (T + 4, T + 4, vL8))
    a.ext(weave(lst(quad_reduce, T, T + 1, T + 2), b.items, 0, 1))
    a.I('v_min_u32 v%d, -2, v%d' % (T, T))
    a.I('v_min_u32 v%d, -2, v%d' % (T + 1, T + 1))
    a.I('buffer_store_dwordx2 %s, v%d, %s, s3 offen sc1' % (vr(T, 2), T + 4, WS), tag='ss')
    for i in range(10):
        a.I('v_cvt_pk_bf16_f32 v%d, v%d, v%d' % (PK + i, SUM + 2 * i, SUM + 2 * i + 1))
    tile_blk_soff(a, sT[4], sLN, oXA)
    xa_store(a, PK, vA0, vA2, sT[4], T + 8)
    at = AT(96, 61440, 73728)
    at.setup(a, sLN, sT[5])
    a.I('v_and_b32 v%d, 15, v0' % (T + 4))
    a.I('v_lshlrev_b32 v%d, 3, v%d' % (T + 4, T + 4))
    a.I('v_lshrrev_b32 v%d, 4, v0' % (T + 5))
    a.I('v_lshl_add_u32 v%d, v%d, 8, v%d' % (T + 4, T + 5, T + 4))
    a.I('s_mov_b32 %s, 0' % sSP)
    a.wait_vm('ss')
    st(a, 'D')
    a.label('st_spin')
    a.I('buffer_load_dwordx2 %s, v%d, %s, %s offen sc1' % (vr(T, 2), T + 4, WS, sS))
    a.I('buffer_load_dwordx2 %s, v%d, %s, %s offen offset:128 sc1' % (vr(T + 2, 2), T + 4, WS, sS))
    a.I('s_add_u32 %s, %s, 1' % (sSP, sSP))
    a.I('s_cmp_ge_u32 %s, %d' % (sSP, SPIN))
    a.I('s_waitcnt vmcnt(0)')
    a.I('s_cbranch_scc1 st_ok')
    a.I('v_max3_u32 v%d, v%d, v%d, v%d' % (T + 5, T, T + 1, T + 2))
    a.I('v_max_u32 v%d, v%d, v%d' % (T + 5, T + 5, T + 3))
    a.I('v_cmp_eq_u32 vcc, -1, v%d' % (T + 5))
    a.I('s_nop 4')
    a.I('s_cbranch_vccnz st_spin')
    a.label('st_ok')
    a.I('v_pk_add_f32 %s, %s, %s' % (vr(T, 2), vr(T, 2), vr(T + 2, 2)))
    quad_reduce(a, T, T + 1, T + 2)
    at.main(a, SUM, T, T + 1, 176, sT[5])
    st.flush(a)
    a.I('s_endpgm')


def main():
    a = Asm()
    launches = [('prep_kernel', N_PREP, PREP_LDS), ('ffn0_kernel', 256, 163840), ('ffn1_kernel', 256, 163840)]
    head = ''.join('; @launch kernel=%s grid=(%d,1,1) block=(256,1,1) lds=%d\n' % l for l in launches)
    head += '.amdgcn_target "amdgcn-amd-amdhsa--gfx950"\n.text\n'
    k_prep(a, 'ffn_c0', 'ffn_end')
    st = Stamps()
    a.raw('ffn_c0:')
    entry(a, 'ffn1_kernel', 256, 1, 2, [(8, 72, XB)], 'ffn_end')
    a.I('s_branch ffn_body')
    entry(a, 'ffn0_kernel', 256, 0, 1, [(8, 72, XB)], 'ffn_end')
    a.label('ffn_body')
    decode(a)
    q, x1st = kb(a, st)
    gemms(a, st, q, x1st)
    emit_slow(a)
    a.label('ffn_end')
    a.I('s_endpgm')
    tail = '.section .rodata,"a"\n'
    for n, v, ac in [('prep_kernel', 128, 128), ('ffn0_kernel', 512, 256), ('ffn1_kernel', 512, 256)]:
        tail += '.p2align 6\n' + kdesc(n, v, ac)
    sys.stdout.write(head + a.finalize() + tail)


if __name__ == '__main__':
    main()
```

```python
import struct, sys
from asmlib import Asm, Ins, vr, weave

STAMP = None
for _a in sys.argv:
    if _a.startswith('--stamp'):
        STAMP = _a.split('=')[1] if '=' in _a else 'A'


def opt(name, default):
    for x in sys.argv:
        if x.startswith('--%s=' % name):
            return type(default)(x.split('=')[1])
    return default


W1P, WDP = 0x0, 0x440000
LB0, LBS = 0x800000, 0x1400000
oG, oXA, oZ, oX1, oH, oST, oFL = 0x0, 0x280000, 0x500000, 0x780000, 0xA00000, 0x1100000, 0x1180000
oRS = oX1
STAMPS = 0x4000000
WS_BYTES = 0x10000000
XB = 2048 * 640 * 2
W1B = 640 * 1728 * 2
OOB = 0x80000000
LOG2E = 1.4426950408889634

WS, SA, SB = 's[4:7]', 's[8:11]', 's[12:15]'
sW, sG, sMU, sHB, sJJ, sLB, sLN, sLAST = 's16', 's17', 's18', 's19', 's20', 's21', 's22', 's23'
sT = ['s%d' % i for i in range(24, 50)]


def fl(x):
    return '0x%08x' % struct.unpack('<I', struct.pack('<f', x))[0]


def srd(a, base, lo, size):
    a.I('s_mov_b32 s%d, s%d' % (base, lo))
    a.I('s_and_b32 s%d, s%d, 0xffff' % (base + 1, lo + 1))
    a.I('s_mov_b32 s%d, 0x%x' % (base + 2, size))
    a.I('s_mov_b32 s%d, 0x20000' % (base + 3))


class Stamps:
    def __init__(self):
        self.n = 0

    on = True

    def __call__(self, a, sets='A'):
        if not STAMP or STAMP not in sets or not self.on:
            return
        i = self.n
        self.n += 1
        if STAMP == 'X':
            assert i < 16
            a.I('s_memtime s[%d:%d]' % (64 + 2 * i, 65 + 2 * i))
            return
        assert i < 8
        a.I('s_memrealtime s[%d:%d]' % (64 + 4 * i, 65 + 4 * i))
        a.I('s_memtime s[%d:%d]' % (66 + 4 * i, 67 + 4 * i))

    def flush(self, a):
        if not STAMP:
            return
        n0 = self.n
        self.on = True
        a.I('s_waitcnt vmcnt(0)')
        self(a, STAMP)
        a.I('s_lshl_b32 s50, s2, 2')
        a.I('s_add_u32 s50, s50, %s' % sW)
        a.I('s_lshl_b32 s50, s50, 7')
        a.I('s_add_u32 s50, s50, s51')
        a.I('s_add_u32 s50, s50, 0x%x' % STAMPS)
        a.I('s_waitcnt lgkmcnt(0)')
        a.I('v_mov_b32 v1, 0')
        for i in range(8 if STAMP == 'X' else self.n):
            a.I('v_mov_b32 v2, s%d' % (64 + 4 * i))
            a.I('v_mov_b32 v3, s%d' % (66 + 4 * i))
            a.I('buffer_store_dwordx2 v[2:3], v1, %s, s50 offen offset:%d' % (WS, 8 * i))
        a.I('v_mov_b32 v2, s96\nv_mov_b32 v3, s97')
        a.I('buffer_store_dwordx2 v[2:3], v1, %s, s50 offen offset:64' % WS)
        self.n = n0


def entry(a, name, nwg, layer, launch, ptrs, end, first=None):
    a.raw('.globl %s\n.p2align 8\n.type %s,@function' % (name, name))
    a.label(name)
    a.reset()
    a.I('s_cmp_ge_u32 s2, %d' % nwg)
    a.I('s_cbranch_scc1 %s' % end)
    a.I('s_load_dwordx2 s[52:53], s[0:1], 88')
    for i, (b, off, sz) in enumerate(ptrs):
        a.I('s_load_dwordx2 s[%d:%d], s[0:1], %d' % (54 + 2 * i, 55 + 2 * i, off))
    if first:
        first(a)
    a.I('s_mov_b32 %s, 0x%x' % (sLB, LB0 + layer * LBS))
    a.I('s_mov_b32 %s, %d' % (sLAST, layer))
    if STAMP:
        a.I('s_mov_b32 s51, 0x%x' % (launch * 0x80000))
        a.I('s_mov_b32 s96, 0\ns_mov_b32 s97, 0')


def decode(a):
    a.I('v_lshrrev_b32 v1, 6, v0')
    a.I('v_and_b32 v0, 63, v0')
    a.I('v_readfirstlane_b32 %s, v1' % sW)
    a.I('s_add_u32 %s, %s, 0x%x' % (sLN, sLB, LBS))
    a.I('s_and_b32 %s, s2, 1' % sG)
    a.I('s_lshl_b32 %s, %s, 2' % (sG, sG))
    a.I('s_bfe_u32 s3, s2, 0x20004')
    a.I('s_add_u32 %s, %s, s3' % (sG, sG))
    a.I('s_add_u32 %s, %s, 1' % (sG, sG))
    a.I('s_sub_u32 s3, 16, %s' % sG)
    a.I('s_cmp_eq_u32 s3, 8')
    a.I('s_cselect_b32 s3, 0, s3')
    a.I('s_bitcmp1_b32 s2, 3')
    a.I('s_cselect_b32 %s, s3, %s' % (sG, sG))
    a.I('s_bfe_u32 %s, s2, 0x20001' % sMU)
    a.I('s_lshl_b32 %s, %s, 2' % (sMU, sMU))
    a.I('s_bfe_u32 s3, s2, 0x20006')
    a.I('s_or_b32 %s, %s, s3' % (sMU, sMU))
    a.I('s_bfe_u32 %s, %s, 0x10002' % (sHB, sMU))
    a.I('s_lshr_b32 %s, %s, 3' % (sJJ, sMU))
    a.I('s_lshl_b32 %s, %s, 2' % (sJJ, sJJ))
    a.I('s_or_b32 %s, %s, s3' % (sJJ, sJJ))


def srds(a, ptrs):
    a.I('s_waitcnt lgkmcnt(0)')
    srd(a, 4, 52, WS_BYTES)
    for i, (b, off, sz) in enumerate(ptrs):
        srd(a, b, 54 + 2 * i, sz)


def kdesc(name, vgpr, acc):
    return '''.amdhsa_kernel %s
  .amdhsa_next_free_vgpr %d
  .amdhsa_next_free_sgpr %d
  .amdhsa_accum_offset %d
  .amdhsa_group_segment_fixed_size 0
  .amdhsa_kernarg_size 96
  .amdhsa_user_sgpr_count 2
  .amdhsa_user_sgpr_kernarg_segment_ptr 1
  .amdhsa_system_sgpr_workgroup_id_x 1
  .amdhsa_float_denorm_mode_32 3
.end_amdhsa_kernel
''' % (name, vgpr, 100 if STAMP else 64, acc)


def unpack(srcs, dst):
    o = []
    for i, s in enumerate(srcs):
        o.append('v_lshlrev_b32 v%d, 16, v%d' % (dst(2 * i), s))
        o.append('v_and_b32 v%d, 0xffff0000, v%d' % (dst(2 * i + 1), s))
    return o


def xr_addr(a, vA0, vA2, vm, vi, t):
    a.I('v_lshrrev_b32 v%d, 1, v%d' % (t, vm))
    a.I('v_mul_u32_u24 v%d, 640, v%d' % (t, t))
    a.I('v_and_b32 v%d, 1, v%d' % (t + 1, vm))
    a.I('v_and_b32 v%d, 7, v%d' % (vA0, vm))
    a.I('v_xor_b32 v%d, v%d, v%d' % (vA0, vA0, vi))
    a.I('v_lshl_add_u32 v%d, v%d, 4, v%d' % (vA0, vA0, t))
    a.I('v_and_b32 v%d, 6, v%d' % (vA2, vm))
    a.I('v_xor_b32 v%d, v%d, v%d' % (vA2, vA2, vi))
    a.I('v_lshl_add_u32 v%d, v%d, 4, v%d' % (vA2, vA2, t))
    a.I('v_lshl_add_u32 v%d, v%d, 3, v%d' % (vA2, t + 1, vA2))
    a.I('v_add_u32 v%d, 256, v%d' % (vA2, vA2))
    a.I('v_mul_u32_u24 v%d, 384, v%d' % (t + 1, t + 1))
    a.I('v_add_u32 v%d, v%d, v%d' % (vA0, vA0, t + 1))


def tile_xr_addr(a, vA0, vA2, t, st='s3'):
    a.I('v_lshrrev_b32 v%d, 4, v0' % (t + 2))
    a.I('s_lshl_b32 %s, %s, 2' % (st, sJJ))
    a.I('v_add_u32 v%d, %s, v%d' % (t + 2, st, t + 2))
    a.I('v_and_b32 v%d, 7, v0' % (t + 3))
    xr_addr(a, vA0, vA2, t + 2, t + 3, t)
    a.I('v_bfe_u32 v%d, v0, 3, 1' % t)
    a.I('v_mul_u32_u24 v%d, 10240, v%d' % (t, t))
    a.I('v_add_u32 v%d, v%d, v%d' % (vA0, vA0, t))
    a.I('v_add_u32 v%d, v%d, v%d' % (vA2, vA2, t))


def set_wave_index(a, sd):
    a.I('s_lshl_b32 %s, %s, 1' % (sd, sG))
    a.I('s_add_u32 %s, %s, %s' % (sd, sd, sHB))
    a.I('s_lshl_b32 %s, %s, 2' % (sd, sd))
    a.I('s_add_u32 %s, %s, %s' % (sd, sd, sW))


def tile_blk_soff(a, sd, sbase, off):
    set_wave_index(a, sd)
    a.I('s_mul_i32 %s, %s, 20480' % (sd, sd))
    a.I('s_add_u32 %s, %s, %s' % (sd, sd, sbase))
    a.I('s_add_u32 %s, %s, 0x%x' % (sd, sd, off))


def stats_soff(a, sd, sbase):
    set_wave_index(a, sd)
    a.I('s_lshl_b32 %s, %s, 10' % (sd, sd))
    a.I('s_add_u32 %s, %s, %s' % (sd, sd, sbase))
    a.I('s_add_u32 %s, %s, 0x%x' % (sd, sd, oST))


def row_nat_soff(a, sd, st='s3'):
    a.I('s_lshl_b32 %s, %s, 4' % (sd, sHB))
    a.I('s_add_u32 %s, %s, %s' % (sd, sd, sG))
    a.I('s_lshr_b32 %s, %s, 1' % (st, sW))
    a.I('s_lshl_b32 %s, %s, 5' % (st, st))
    a.I('s_add_u32 %s, %s, %s' % (sd, sd, st))
    a.I('s_and_b32 %s, %s, 1' % (st, sW))
    a.I('s_lshl_b32 %s, %s, 10' % (st, st))
    a.I('s_add_u32 %s, %s, %s' % (sd, sd, st))
    a.I('s_mul_i32 %s, %s, 1280' % (sd, sd))


def ln_coef(a, vS, vQ, vR, vN, t, scale=None):
    a.I('v_mul_f32 v%d, %s, v%d' % (vN, fl(-1.0 / 640), vS))
    a.I('v_mul_f32 v%d, %s, v%d' % (vR, fl(1.0 / 640), vQ))
    a.I('v_fma_f32 v%d, -v%d, v%d, v%d' % (vR, vN, vN, vR))
    a.I('v_max_f32 v%d, 0, v%d' % (vR, vR))
    a.I('v_add_f32 v%d, %s, v%d' % (vR, fl(1e-5), vR))
    a.I('v_rsq_f32 v%d, v%d' % (vR, vR))
    if scale:
        a.I('v_mul_f32 v%d, %s, v%d' % (vR, fl(scale), vR))
    a.I('v_mul_f32 v%d, v%d, v%d' % (vN, vN, vR))


def quad_reduce(a, r0, r1, t):
    for op in ('v_permlane16_swap_b32', 'v_permlane32_swap_b32'):
        a.I('v_mov_b32 v%d, v%d' % (t, r0))
        a.I('v_mov_b32 v%d, v%d' % (t + 1, r1))
        a.I('%s v%d, v%d' % (op, r0, t))
        a.I('%s v%d, v%d' % (op, r1, t + 1))
        a.I('v_add_f32 v%d, v%d, v%d' % (r0, r0, t))
        a.I('v_add_f32 v%d, v%d, v%d' % (r1, r1, t + 1))


def xa_store(a, PK, vA0, vA2, so, t):
    a.I('buffer_store_dwordx4 %s, v%d, %s, %s offen sc1' % (vr(PK, 4), vA0, WS, so))
    a.I('buffer_store_dwordx4 %s, v%d, %s, %s offen offset:128 sc1' % (vr(PK + 4, 4), vA0, WS, so))
    a.I('v_mov_b32 v%d, v%d' % (t, PK + 8))
    a.I('v_mov_b32 v%d, v%d' % (t + 1, PK + 9))
    a.I('v_mov_b32 v%d, v%d' % (t + 2, PK + 8))
    a.I('v_mov_b32 v%d, v%d' % (t + 3, PK + 9))
    a.I('v_bfe_u32 v%d, v0, 4, 1' % (t + 4))
    a.I('v_lshl_add_u32 v%d, v%d, 31, v%d' % (t + 4, t + 4, vA2))
    a.I('v_permlane16_swap_b32 v%d, v%d' % (t, t + 2))
    a.I('v_permlane16_swap_b32 v%d, v%d' % (t + 1, t + 3))
    a.I('buffer_store_dwordx4 %s, v%d, %s, %s offen sc1' % (vr(t, 4), t + 4, WS, so))


class AT:
    def __init__(self, base, lds_z, lds_b):
        self.F = base
        self.ZW, self.ZR, self.BW = base + 8, base + 9, base + 10
        self.BR = (base + 11, base + 12, base + 13)
        self.GA = (base + 14, base + 15, base + 16)
        self.T = base + 17
        self.lds_z, self.lds_b = lds_z, lds_b

    def setup(self, a, sOut, sGo):
        T = self.T
        a.I('v_and_b32 v%d, 15, v0' % T)
        a.I('v_lshrrev_b32 v%d, 1, v%d' % (T + 1, T))
        a.I('v_mul_u32_u24 v%d, 336, v%d' % (self.BW, T + 1))
        a.I('s_lshl_b32 s3, %s, 3' % sW)
        a.I('v_add_u32 v%d, s3, v%d' % (T + 1, T + 1))
        a.I('v_and_b32 v%d, 1, v0' % (T + 2))
        a.I('v_lshl_add_u32 v%d, v%d, 3, v%d' % (self.BW, T + 2, self.BW))
        a.I('v_cvt_f32_u32 v%d, v%d' % (T + 3, T + 2))
        a.I('v_mul_f32 v%d, %s, v%d' % (T + 3, fl(0.25), T + 3))
        a.I('v_cmp_eq_u32 vcc, 0, v%d' % (T + 1))
        a.I('v_lshlrev_b32 v%d, 5, v%d' % (T + 2, T + 2))
        a.I('v_lshrrev_b32 v%d, 5, v0' % (T + 4))
        a.I('v_cndmask_b32 v%d, v%d, v%d, vcc' % (T + 1, T + 1, T + 2))
        a.I('v_cndmask_b32_e64 v%d, v%d, 0, vcc' % (T + 3, T + 3))
        a.I('v_cvt_f32_u32 v%d, v%d' % (T + 1, T + 1))
        a.I('v_mul_f32 v%d, %s, v%d' % (T + 1, fl(1.0 / 64), T + 1))
        a.I('v_bfe_u32 v%d, v0, 4, 1' % (T + 2))
        a.I('v_lshlrev_b32 v%d, 5, v%d' % (T + 2, T + 2))
        a.I('v_lshl_add_u32 v%d, v%d, 1, v%d' % (T + 2, T + 4, T + 2))
        a.I('v_cvt_f32_u32 v%d, v%d' % (T + 2, T + 2))
        a.I('v_fma_f32 v%d, v%d, v%d, v%d' % (T + 3, T + 1, T + 2, T + 3))
        prev = None
        for ks in range(2):
            for p in range(4):
                d = self.F + 4 * ks + p
                tt = T + 2 + 2 * (p & 1)
                k = lambda j: 8 * (j & 3) + 4 * (j >> 2) + ks
                a.I('v_fmamk_f32 v%d, v%d, %s, v%d' % (d, T + 1, fl(k(2 * p)), T + 3))
                a.I('v_fmamk_f32 v%d, v%d, %s, v%d' % (tt, T + 1, fl(k(2 * p + 1)), T + 3))
                if prev:
                    a.I(prev)
                a.I('v_cos_f32 v%d, v%d' % (d, d))
                a.I('v_cos_f32 v%d, v%d' % (tt, tt))
                prev = 'v_cvt_pk_bf16_f32 v%d, v%d, v%d' % (d, d, tt)
        a.I('s_lshl_b32 s3, %s, 4' % sW)
        a.I(prev)
        a.I('v_add_u32 v%d, s3, v%d' % (T, T))
        a.I('v_mul_u32_u24 v%d, 168, v%d' % (self.ZW, T))
        a.I('v_lshrrev_b32 v%d, 4, v0' % T)
        a.I('v_mad_u32_u24 v%d, v%d, 40, v%d' % (self.ZW, T, self.ZW))
        a.I('v_and_b32 v%d, 28, v0' % (T + 1))
        a.I('v_lshrrev_b32 v%d, 5, v0' % (T + 2))
        a.I('v_add_u32 v%d, v%d, v%d' % (T + 1, T + 1, T + 2))
        a.I('v_mul_u32_u24 v%d, 168, v%d' % (T + 1, T + 1))
        a.I('v_and_b32 v%d, 3, v0' % (T + 2))
        a.I('v_lshl_add_u32 v%d, v%d, 3, v%d' % (self.ZR, T + 2, T + 1))
        if self.lds_z:
            a.I('v_add_u32 v%d, 0x%x, v%d' % (self.ZW, self.lds_z, self.ZW))
            a.I('v_add_u32 v%d, 0x%x, v%d' % (self.ZR, self.lds_z, self.ZR))
        a.I('s_and_b32 s3, %s, 3' % sG)
        a.I('v_xor_b32 v%d, s3, v%d' % (T, T))
        a.I('v_lshl_add_u32 v%d, v%d, 4, v%d' % (self.BW, T, self.BW))
        a.I('s_mul_i32 s3, %s, 2688' % sW)
        a.I('s_add_u32 s3, s3, 0x%x' % self.lds_b)
        a.I('v_add_u32 v%d, s3, v%d' % (self.BW, self.BW))
        a.I('s_mul_i32 %s, %s, 5' % (sGo, sJJ))
        for it in range(3):
            a.I('v_add_u32 v%d, %d, v0' % (T, 64 * it))
            a.I('v_mul_u32_u24 v%d, 205, v%d' % (T + 1, T))
            a.I('v_lshrrev_b32 v%d, 12, v%d' % (T + 1, T + 1))
            a.I('v_add_u32 v%d, v%d, v%d' % (T + 2, T, T + 1))
            a.I('v_lshl_add_u32 v%d, v%d, 4, s3' % (self.BR[it], T + 2))
            a.I('v_mul_u32_u24 v%d, 5, v%d' % (T + 2, T + 1))
            a.I('v_lshrrev_b32 v%d, 2, v%d' % (T + 3, T))
            a.I('v_sub_u32 v%d, v%d, v%d' % (T + 2, T + 3, T + 2))
            a.I('v_add_u32 v%d, %s, v%d' % (T + 2, sGo, T + 2))
            a.I('v_bfe_u32 v%d, v%d, 2, 1' % (T + 3, T + 2))
            a.I('v_xor_b32 v%d, v%d, v%d' % (T + 2, T + 2, T + 3))
            a.I('v_and_b32 v%d, 3, v0' % (T + 3))
            a.I('v_lshl_add_u32 v%d, v%d, 2, v%d' % (T + 2, T + 2, T + 3))
            a.I('v_mul_u32_u24 v%d, 81920, v%d' % (T + 1, T + 1))
            a.I('v_lshl_add_u32 v%d, v%d, 4, v%d' % (self.GA[it], T + 2, T + 1))
        a.I('v_lshrrev_b32 v%d, 5, v0' % T)
        a.I('v_lshl_add_u32 v%d, v%d, 31, v%d' % (self.GA[2], T, self.GA[2]))
        a.I('s_lshl_b32 %s, %s, 4' % (sGo, sHB))
        a.I('s_add_u32 %s, %s, %s' % (sGo, sGo, sG))
        a.I('s_mul_i32 %s, %s, 2560' % (sGo, sGo))
        a.I('s_mul_i32 s3, %s, %d' % (sW, 8 * 81920))
        a.I('s_add_u32 %s, %s, s3' % (sGo, sGo))
        a.I('s_add_u32 %s, %s, %s' % (sGo, sGo, sOut))

    def main(self, a, X, vS, vQ, W, sGo, tag=None):
        T = self.T + (self.T & 1)
        ln_coef(a, vS, vQ, T, T + 2, None)
        for n in range(5):
            for i in range(2):
                x = vr(X + 4 * n + 2 * i, 2)
                a.I('v_pk_fma_f32 %s, %s, %s, %s op_sel_hi:[1,0,0]' % (x, x, vr(T, 2), vr(T + 2, 2)))
            a.I('v_cvt_pk_bf16_f32 v%d, v%d, v%d' % (W + 2 * n, X + 4 * n, X + 4 * n + 1))
            a.I('v_cvt_pk_bf16_f32 v%d, v%d, v%d' % (W + 2 * n + 1, X + 4 * n + 2, X + 4 * n + 3))
            a.I('ds_write_b64 v%d, %s offset:%d' % (self.ZW, vr(W + 2 * n, 2), 8 * n))
        a.I('s_waitcnt lgkmcnt(0)')
        a.I('s_barrier')
        rds = ['ds_read_b64_tr_b16 %s, v%d offset:%d' % (vr(W + 8 * t + 4 * ks + 2 * rd, 2), self.ZR, (32 * ks + 2 * rd) * 168 + 32 * t)
               for t in range(5) for ks in range(2) for rd in range(2)]
        D = W + 40
        a.ext(rds[:12])
        for t in range(5):
            a.I('v_mfma_f32_16x16x32_bf16 %s, %s, %s, 0' % (vr(D + 4 * t, 4), vr(W + 8 * t, 4), vr(self.F, 4)))
            a.ext(rds[12 + 4 * t:14 + 4 * t])
            a.I('v_mfma_f32_16x16x32_bf16 %s, %s, %s, %s' % (vr(D + 4 * t, 4), vr(W + 8 * t + 4, 4), vr(self.F + 4, 4), vr(D + 4 * t, 4)))
            a.ext(rds[14 + 4 * t:16 + 4 * t])
        for t in range(5):
            a.I('v_cvt_pk_bf16_f32 v%d, v%d, v%d' % (X + 2 * t, D + 4 * t, D + 4 * t + 1))
            a.I('v_cvt_pk_bf16_f32 v%d, v%d, v%d' % (X + 2 * t + 1, D + 4 * t + 2, D + 4 * t + 3))
            a.I('ds_write_b64 v%d, %s offset:%d' % (self.BW, vr(X + 2 * t, 2), 64 * t))
        for it in range(3):
            a.I('ds_read_b128 %s, v%d' % (vr(W + 4 * it, 4), self.BR[it]))
        for it in range(3):
            a.I('buffer_store_dwordx4 %s, v%d, %s, %s offen sc1' % (vr(W + 4 * it, 4), self.GA[it], WS, sGo), tag)
```

```python
from common4 import *

N_KA, N_W1, N_WD = 256, 270, 108
N_PREP = N_KA + N_W1 + N_WD
PREP_LDS = 21504


def code_prefetch(a, start, end, vt, sp, lanes_shift=7):
    a.I('s_getpc_b64 s[%d:%d]' % (sp, sp + 1))
    a.raw('.Lpc_%s:' % start)
    a.I('s_add_u32 s%d, s%d, %s-.Lpc_%s' % (sp, sp, start, start))
    a.I('s_addc_u32 s%d, s%d, 0' % (sp + 1, sp + 1))
    a.I('v_lshlrev_b32 v%d, 7, v%d' % (vt, vt))
    a.I('v_min_u32 v%d, %s-%s-4, v%d' % (vt, end, start, vt))
    a.I('global_load_dword v%d, v%d, s[%d:%d]' % (vt, vt, sp, sp + 1))


def k_prep(a, ffn_start, ffn_end):
    st = Stamps()

    def first(a):
        a.I('v_and_b32 v120, 63, v0')
        code_prefetch(a, 'prep_c0', 'prep_end', 120, 62)
        a.raw('prep_c0:')
    entry(a, 'prep_kernel', N_PREP, 0, 0, [(8, 0, XB)], 'prep_end', first)
    a.I('v_mov_b32 v121, v0')
    decode(a)
    a.I('s_cmp_ge_u32 s2, %d' % N_KA)
    a.I('s_cbranch_scc1 prep_w')
    RW = 40
    PK = 26
    at = AT(4, 0, 10752)
    X = RW + 60
    row_nat_soff(a, sT[0])
    a.I('v_lshrrev_b32 v1, 3, v0')
    a.I('v_mul_u32_u24 v1, 81920, v1')
    a.I('v_and_b32 v2, 7, v0')
    a.I('v_lshl_add_u32 v1, v2, 4, v1')
    a.I('v_add_u32 v2, 0x%x, v1' % (512 * 1280))
    a.I('s_mul_i32 %s, %s, 160' % (sT[1], sJJ))
    a.I('s_and_b32 %s, %s, 0xffffff80' % (sT[2], sT[1]))
    a.I('s_add_u32 %s, %s, %s' % (sT[1], sT[1], sT[0]))
    a.I('s_add_u32 %s, %s, %s' % (sT[2], sT[2], sT[0]))
    a.I('s_add_u32 %s, %s, 1280' % (sT[3], sT[0]))
    srds(a, [(8, 0, XB)])
    st(a, 'AB')
    b = Asm()
    for i in range(10):
        for s in range(2):
            b.I('buffer_load_dwordx4 %s, v%d, %s, %s offen' % (vr(RW + 8 * i + 4 * s, 4), 1 + s, SA, sT[2]))
        if i < 9:
            b.I('s_add_u32 %s, %s, 128\ns_cmp_eq_u32 %s, %s\ns_cselect_b32 %s, %s, %s' % (sT[2], sT[2], sT[2], sT[3], sT[2], sT[0], sT[2]))
    ld = b.items
    a.ext(ld[:10])
    a.I('v_and_b32 v3, 15, v0')
    a.I('v_mul_u32_u24 v3, 81920, v3')
    a.I('v_lshrrev_b32 v38, 4, v0')
    a.I('v_mad_u32_u24 v3, v38, 40, v3')
    stats_soff(a, sT[4], sLN)
    a.I('s_lshl_b32 s3, %s, 7' % sJJ)
    a.I('s_add_u32 %s, %s, s3' % (sT[4], sT[4]))
    a.I('v_lshrrev_b32 v38, 5, v0')
    a.I('v_lshlrev_b32 v39, 2, v0')
    a.I('v_lshl_add_u32 v38, v38, 31, v39')
    a.I('v_mov_b32 v39, -1')
    a.I('buffer_store_dword v39, v38, %s, %s offen sc1' % (WS, sT[4]))
    a.I('s_lshl_b32 %s, s2, 7' % sT[4])
    a.I('s_and_b32 s3, %s, 1' % sW)
    a.I('s_mul_i32 s3, s3, 0x%x' % LBS)
    a.I('s_add_u32 %s, %s, s3' % (sT[4], sT[4]))
    a.I('s_lshr_b32 s3, %s, 1' % sW)
    a.I('s_lshl_b32 s3, s3, 15')
    a.I('s_add_u32 %s, %s, s3' % (sT[4], sT[4]))
    a.I('s_add_u32 %s, %s, 0x%x' % (sT[4], sT[4], LB0 + oFL))
    a.I('v_mov_b32 v37, 0')
    a.I('buffer_store_dword v37, v38, %s, %s offen sc1' % (WS, sT[4]))
    a.ext(ld[10:])
    a.I('buffer_load_dwordx4 %s, v3, %s, %s offen' % (vr(PK, 4), SA, sT[1]))
    a.I('buffer_load_dwordx4 %s, v3, %s, %s offen offset:16' % (vr(PK + 4, 4), SA, sT[1]))
    a.I('buffer_load_dwordx2 %s, v3, %s, %s offen offset:32' % (vr(PK + 8, 2), SA, sT[1]))
    at.setup(a, sLB, sT[5])
    tile_xr_addr(a, 1, 2, 120)
    tile_blk_soff(a, sT[6], sLB, oXA)
    S = 120
    a.I('v_mov_b32 v%d, 0x3f803f80' % (S + 4))
    for i in range(4):
        a.I('v_mov_b32 v%d, 0' % (S + i))
    st(a, 'B')
    for i in range(10):
        for r in range(4):
            for s in range(2):
                v = RW + 8 * i + 4 * s + r
                a.I('v_dot2c_f32_bf16 v%d, v%d, v%d' % (S + 2 * s, v, S + 4))
                a.I('v_dot2c_f32_bf16 v%d, v%d, v%d' % (S + 2 * s + 1, v, v))
    st(a, 'B')
    a.I('v_and_b32 v3, 1, v0')
    a.I('v_cmp_eq_u32 vcc, 1, v3')
    a.I('v_and_b32 v3, 7, v0')
    for m in ('quad_perm:[1,0,3,2]', 'quad_perm:[2,3,0,1]', 'row_half_mirror'):
        for i in range(4):
            a.I('v_add_f32_dpp v%d, v%d, v%d %s row_mask:0xf bank_mask:0xf' % (S + i, S + i, S + i, m))
    a.I('v_bfe_u32 v%d, v0, 3, 1' % (S + 4))
    a.I('v_lshl_add_u32 v3, v3, 3, v%d' % (S + 4))
    a.I('v_lshlrev_b32 v3, 2, v3')
    a.I('v_cndmask_b32 v%d, v%d, v%d, vcc' % (S, S, S + 2))
    a.I('v_cndmask_b32 v%d, v%d, v%d, vcc' % (S + 1, S + 1, S + 3))
    a.I('ds_bpermute_b32 v%d, v3, v%d' % (S + 2, S))
    a.I('ds_bpermute_b32 v%d, v3, v%d' % (S + 3, S + 1))
    a.ext(unpack(range(PK, PK + 10), lambda i: X + i))
    xa_store(a, PK, 1, 2, sT[6], RW + 48)
    at.main(a, X, S + 2, S + 3, RW, sT[5])
    st(a, 'B')
    st.flush(a)
    a.I('s_branch prep_exit')

    st = Stamps()
    a.label('prep_w')
    a.reset()
    a.I('s_load_dwordx4 s[56:59], s[0:1], 48')
    a.I('s_load_dwordx2 s[60:61], s[0:1], 64')
    a.I('s_cmp_ge_u32 s2, %d' % (N_KA + N_W1))
    a.I('s_cbranch_scc1 prep_wd')
    a.I('s_cmp_ge_u32 s2, %d' % (N_KA + 16))
    a.I('s_cbranch_scc1 prep_nopf')
    a.I('s_bfe_u32 s3, s2, 0x10003')
    a.I('v_lshl_add_u32 v121, s3, 8, v121')
    code_prefetch(a, ffn_start, ffn_end, 121, 62)
    a.label('prep_nopf')
    a.I('s_sub_u32 %s, s2, %d' % (sT[0], N_KA))
    a.I('s_mul_i32 %s, %s, 205' % (sT[1], sT[0]))
    a.I('s_lshr_b32 %s, %s, 11' % (sT[1], sT[1]))
    a.I('s_mul_i32 s3, %s, 10' % sT[1])
    a.I('s_sub_u32 %s, %s, s3' % (sT[0], sT[0]))
    a.I('s_lshl_b32 %s, %s, 1' % (sT[0], sT[0]))
    a.I('s_lshr_b32 s3, %s, 1' % sW)
    a.I('s_add_u32 %s, %s, s3' % (sT[0], sT[0]))
    a.I('v_lshrrev_b32 v1, 3, v0')
    a.I('v_and_b32 v2, 7, v0')
    a.I('v_lshlrev_b32 v2, 4, v2')
    a.I('v_lshrrev_b32 v3, 2, v1')
    a.I('s_lshl_b32 %s, %s, 7' % (sT[4], sT[1]))
    a.I('s_lshl_b32 %s, %s, 12' % (sT[5], sW))
    a.I('s_waitcnt lgkmcnt(0)')
    srd(a, 4, 52, WS_BYTES)
    a.I('s_bitcmp1_b32 %s, 0' % sW)
    a.I('s_cselect_b32 s56, s58, s56')
    a.I('s_cselect_b32 s57, s59, s57')
    srd(a, 8, 56, W1B)
    st(a, 'AB')
    for kq in range(4):
        a.I('s_lshl_b32 %s, %s, 2' % (sT[2], sT[0]))
        a.I('s_add_u32 %s, %s, %d' % (sT[2], sT[2], kq))
        a.I('s_mul_i32 %s, %s, 205' % (sT[3], sT[2]))
        a.I('s_lshr_b32 %s, %s, 10' % (sT[3], sT[3]))
        a.I('s_mul_i32 s3, %s, 5' % sT[3])
        a.I('s_sub_u32 %s, %s, s3' % (sT[3], sT[2]))
        a.I('s_lshl_b32 %s, %s, 3' % (sT[2], sT[2]))
        a.I('s_cmp_ge_u32 %s, 3' % sT[3])
        a.I('s_cselect_b32 s3, 4, 0')
        a.I('s_sub_u32 %s, %s, s3' % (sT[2], sT[2]))
        a.I('s_cmp_eq_u32 %s, 2' % sT[3])
        a.I('s_cselect_b32 s3, 16, 0')
        a.I('v_mad_u32_u24 v4, v3, s3, v1')
        a.I('v_add_u32 v4, %s, v4' % sT[2])
        a.I('v_mul_u32_u24 v4, 3456, v4')
        a.I('s_add_u32 m0, %s, %d' % (sT[5], kq * 1024))
        a.I('v_add_u32 v4, v4, v2')
        a.I('buffer_load_dwordx4 v4, %s, %s offen lds' % (SA, sT[4]), tag='d')
    a.I('v_lshrrev_b32 v1, 4, v0')
    a.I('v_lshlrev_b32 v1, 10, v1')
    a.I('v_bfe_u32 v2, v0, 2, 2')
    a.I('v_lshl_add_u32 v1, v2, 7, v1')
    a.I('v_and_b32 v2, 3, v0')
    a.I('v_lshl_add_u32 v1, v2, 3, v1')
    a.I('v_add_u32 v1, %s, v1' % sT[5])
    a.I('v_lshlrev_b32 v2, 4, v0')
    a.I('s_mul_i32 %s, %s, %d' % (sT[1], sT[1], 4 * 40960))
    a.I('s_mul_i32 s3, %s, 205' % sT[0])
    a.I('s_lshr_b32 s3, s3, 10')
    a.I('s_and_b32 %s, %s, 1' % (sT[2], sW))
    a.I('s_add_u32 s3, s3, %s' % sT[2])
    a.I('s_mul_i32 s3, s3, 5120')
    a.I('s_lshl_b32 %s, %s, 10' % (sT[0], sT[0]))
    a.I('s_add_u32 %s, %s, s3' % (sT[0], sT[0]))
    a.I('s_add_u32 %s, %s, %s' % (sT[0], sT[0], sT[1]))
    a.wait_vm('d')
    st(a, 'B')
    for ft in range(4):
        for rd in range(2):
            a.I('ds_read_b64_tr_b16 %s, v1 offset:%d' % (vr(8 + 4 * ft + 2 * rd, 2), rd * 512 + ft * 32))
    for ft in range(4):
        a.I('s_add_u32 %s, %s, 0x%x' % (sT[1], sT[0], W1P + ft * 40960))
        a.I('buffer_store_dwordx4 %s, v2, %s, %s offen sc1' % (vr(8 + 4 * ft, 4), WS, sT[1]))
    st.flush(a)
    a.I('s_branch prep_exit')

    st = Stamps()
    a.label('prep_wd')
    a.reset()
    a.I('s_sub_u32 %s, s2, %d' % (sT[0], N_KA + N_W1))
    a.I('s_and_b32 %s, %s, 1' % (sT[1], sT[0]))
    a.I('s_lshr_b32 %s, %s, 1' % (sT[0], sT[0]))
    a.I('s_lshr_b32 %s, %s, 1' % (sT[5], sW))
    a.I('s_mul_i32 %s, %s, 43' % (sT[4], sT[0]))
    a.I('s_lshr_b32 %s, %s, 9' % (sT[4], sT[4]))
    a.I('s_and_b32 s3, %s, 3' % sT[0])
    a.I('s_mul_i32 %s, s3, 7' % sT[2])
    a.I('s_lshr_b32 s3, %s, 2' % sT[0])
    a.I('s_lshl_b32 s3, s3, 1')
    a.I('s_add_u32 %s, %s, s3' % (sT[2], sT[2]))
    a.I('s_mul_i32 s3, %s, 21' % sT[4])
    a.I('s_add_u32 %s, %s, s3' % (sT[2], sT[2]))
    a.I('s_add_u32 %s, %s, %s' % (sT[2], sT[2], sT[5]))
    a.I('s_lshl_b32 %s, %s, 1' % (sT[4], sT[0]))
    a.I('s_add_u32 %s, %s, %s' % (sT[4], sT[4], sT[5]))
    a.I('s_sub_u32 %s, %s, 96' % (sT[4], sT[4]))
    a.I('s_mul_i32 s3, %s, 86' % sT[4])
    a.I('s_lshr_b32 s3, s3, 8')
    a.I('s_mul_i32 s3, s3, 6')
    a.I('s_mul_i32 %s, %s, 7' % (sT[4], sT[4]))
    a.I('s_add_u32 %s, %s, s3' % (sT[4], sT[4]))
    a.I('s_add_u32 %s, %s, 6' % (sT[4], sT[4]))
    a.I('s_cmp_ge_u32 %s, 48' % sT[0])
    a.I('s_cselect_b32 %s, %s, %s' % (sT[2], sT[4], sT[2]))
    a.I('s_lshl_b32 %s, %s, 1' % (sT[2], sT[2]))
    a.I('s_and_b32 s3, %s, 1' % sW)
    a.I('s_add_u32 %s, %s, s3' % (sT[2], sT[2]))
    a.I('s_mul_i32 %s, %s, 10240' % (sT[2], sT[2]))
    a.I('s_mul_i32 s3, %s, 640' % sT[1])
    a.I('s_add_u32 %s, %s, s3' % (sT[2], sT[2]))
    a.I('s_mul_i32 %s, %s, 5120' % (sT[3], sW))
    a.I('s_waitcnt lgkmcnt(0)')
    srd(a, 4, 52, WS_BYTES)
    srd(a, 12, 60, W1B)
    st(a, 'AB')
    for it in range(5):
        a.I('v_add_u32 v2, %d, v0' % (64 * it))
        a.I('v_mul_u32_u24 v3, 1639, v2')
        a.I('v_lshrrev_b32 v3, 16, v3')
        a.I('v_mul_u32_u24 v3, 640, v3')
        a.I('s_add_u32 m0, %s, %d' % (sT[3], it * 1024))
        a.I('v_lshl_add_u32 v3, v2, 4, v3')
        a.I('buffer_load_dwordx4 v3, %s, %s offen lds' % (SB, sT[2]), tag='d')
    a.I('v_lshrrev_b32 v1, 2, v0')
    a.I('v_mul_u32_u24 v1, 640, v1')
    a.I('v_and_b32 v2, 3, v0')
    a.I('v_mul_u32_u24 v2, 40, v2')
    a.I('s_mul_i32 s3, %s, 160' % sW)
    a.I('v_add3_u32 v1, v1, v2, s3')
    a.I('v_lshlrev_b32 v2, 4, v0')
    a.I('s_lshl_b32 %s, %s, 2' % (sT[1], sT[1]))
    a.I('s_add_u32 %s, %s, %s' % (sT[1], sT[1], sW))
    a.I('s_mul_i32 %s, %s, 276480' % (sT[1], sT[1]))
    a.I('s_mul_i32 s3, %s, 5120' % sT[0])
    a.I('s_add_u32 %s, %s, s3' % (sT[1], sT[1]))
    a.I('s_add_u32 %s, %s, 0x%x' % (sT[1], sT[1], WDP))
    a.I('s_add_u32 %s, %s, 4096' % (sT[2], sT[1]))
    a.wait_vm('d')
    a.I('s_barrier')
    st(a, 'B')
    for n in range(5):
        for rd in range(2):
            a.I('ds_read_b64_tr_b16 %s, v1 offset:%d' % (vr(8 + 4 * n + 2 * rd, 2), rd * 10240 + n * 8))
    for n in range(5):
        a.I('buffer_store_dwordx4 %s, v2, %s, %s offen offset:%d sc1' % (vr(8 + 4 * n, 4), WS, sT[2] if n == 4 else sT[1], (n % 4) * 1024))
    st.flush(a)
    a.label('prep_exit')
    if opt('hop', 1):
        for w in range(3):
            a.I('s_cmp_eq_u32 %s, %d' % (sW, w))
            a.I('s_cbranch_scc1 ffn_pad%d' % w)
        a.I('s_branch ffn_pad3')
    a.label('prep_end')
    a.I('s_endpgm')
```

```python
from asmlib import Ins, TRANS


class Item:
    __slots__ = ('parts', 'at', 'by', 'seq', 'src', 'dst', 'cost', 'scalar', 'vmem', 'salu', 'gap', 'vs', 'mem', 'valu', 'soft')

    def __init__(self, parts, at, by, seq):
        self.parts = [Ins(p) if isinstance(p, str) else p for p in parts]
        self.at, self.by, self.seq, self.soft = at, by, seq, by
        self.src, self.dst = set(), set()
        self.cost, self.scalar, self.vmem, self.salu, self.vs = 0, False, False, False, False
        self.mem = self.valu = False
        first = True
        for p in self.parts:
            if isinstance(p, tuple):
                if p[0] == 'label':
                    continue
                sc, c = True, 1
                self.src |= {'tag:%s' % p[1]}
                if p[0] == 'wait_both':
                    self.dst |= {'dsq'}
            else:
                self.src |= p.src
                self.dst |= p.dst
                sc = p.kind in ('salu', 'smem')
                c = 1
                if p.kind == 'vmem':
                    self.dst |= {'vmq', 'tag:%s' % p.tag}
                    self.vmem = self.vmem or first
                    if p.op.startswith('buffer') and p.ops[-1][0] in 'sm':
                        c = 2
                    self.mem = True
                    if 'store' in p.op:
                        c = 2
                elif p.kind == 'ds':
                    self.dst |= {'dsq'}
                    self.mem = True
                    if 'write' in p.op:
                        c = 2
                elif p.kind == 'valu':
                    self.valu = True
                    if p.op.startswith(TRANS):
                        c = 2
                    if any(r[0] == 's' for r in p.dst):
                        self.vs = True
                elif p.op in ('s_barrier', 's_waitcnt'):
                    self.dst |= {'dsq'}
                elif p.op.startswith('s_cbranch'):
                    self.dst |= {'vmq'}
                if sc and p.op not in ('s_barrier', 's_waitcnt'):
                    self.salu = True
            if first and sc:
                self.scalar = True
            else:
                self.cost += c
            first = False

    def conflicts(self, later):
        return bool(self.dst & (later.src | later.dst) or self.src & later.dst)


class Sched:
    def __init__(self):
        self.items = []

    def add(self, parts, at, by=None):
        if not isinstance(parts, list):
            parts = [parts]
        self.items.append(Item(parts, at, by if by is not None else 10 ** 9, len(self.items)))

    def asap(self, lst, at, by):
        k = len(self.items)
        for x in lst:
            self.add(x, at, by)
        rem = 0.0
        for it in reversed(self.items[k:]):
            it.soft = max(at, by - int(rem))
            rem += max(it.cost, 0.5) / 1.4

    def paced(self, groups, n0, n1, by=None):
        for i, g in enumerate(groups):
            n = n0 + (i * (n1 - n0)) // len(groups)
            if not isinstance(g, list):
                g = [g]
            for x in g:
                self.add(x, n, by if by is not None else n + 12)
                self.items[-1].soft = min(self.items[-1].by, n + 1)

    def run(self, a, mf, hook=None):
        pend = sorted(self.items, key=lambda it: (it.at, it.seq))
        done_vs = {}
        over = 0
        for n, m in enumerate(mf):
            a.ext([m])
            if hook:
                hook(n)

            def ready_list():
                out, blocked = [], []
                for it in pend:
                    if it.at > n:
                        break
                    ok = not any(b.conflicts(it) for b in blocked)
                    if ok and any(done_vs.get(r, -9) > n - 2 for r in it.src):
                        ok = False
                    if ok:
                        out.append(it)
                    blocked.append(it)
                return out

            def emit(it):
                a.ext(it.parts)
                pend.remove(it)
                if it.vs:
                    for r in it.dst:
                        done_vs[r] = n
            free = 2
            rl = ready_list()
            key = lambda it: (it.soft, it.at, it.seq)
            sc = sorted([it for it in rl if it.scalar and it.cost <= 2], key=key)
            vec = sorted([it for it in rl if not it.scalar], key=key)
            last_salu = had_valu = False
            if sc:
                it = sc[0]
                vm1 = [v for v in vec if v.vmem]
                ds1 = [v for v in vec if v.mem and not v.vmem and v.cost == 1]
                if not (it.salu and vm1 and not ds1 and key(vm1[0]) < key(it)):
                    emit(it)
                    free -= it.cost
                    last_salu = it.salu
                    had_valu = it.valu
            while free > 0:
                rl = sorted(ready_list(), key=key)
                cand = [it for it in rl if not it.scalar and it.cost <= free and not (last_salu and it.vmem) and not (had_valu and it.mem)]
                mem = [it for it in cand if it.mem]
                ones = [it for it in cand if it.cost == 1]
                twos = [it for it in cand if it.cost == 2 and not it.mem]
                if mem:
                    if free == 2 and mem[0].cost == 1 and len(ones) < 2 and twos and mem[0].by > n + 4 and mem[0].soft > n - 2:
                        cand = twos
                    else:
                        cand = mem
                elif free == 2 and twos and cand[0].cost == 1:
                    if cand[0].soft > n + 2 and (len(ones) < 2 or twos[0].soft <= cand[0].soft + 40):
                        cand = twos
                if not cand:
                    cand = [it for it in rl if it.scalar and it.cost + 1 <= free and not (had_valu and it.mem)]
                    if not cand:
                        break
                    emit(cand[0])
                    free -= cand[0].cost + 1
                    last_salu = cand[0].salu
                    continue
                emit(cand[0])
                free -= cand[0].cost
                last_salu = False
                had_valu = had_valu or cand[0].valu
            while True:
                late = [it for it in pend if it.by <= n]
                if not late:
                    break
                it = late[0]
                while True:
                    blk = [b for b in pend[:pend.index(it)] if b.conflicts(it)]
                    if not blk:
                        break
                    it = blk[0]
                assert it.at <= n, (n, it.parts[0].text if hasattr(it.parts[0], 'text') else it.parts[0])
                emit(it)
                over += it.cost + it.scalar
        for it in list(pend):
            a.ext(it.parts)
        return over, len(pend)
```

```python
from common4 import *
from prep5 import *
from sched import Sched

M16 = 'v_mfma_f32_16x16x32_bf16'
M32 = 'v_mfma_f32_32x32x16_bf16'
L_V, L_X = 126976, 151552
L_P = 0
PERS = opt('pers', 1)
SPIN = 20000

vL16, vD0, vFl, vDt, vWa = 14, 11, 12, 13, 15
sZF, sHF, sHC = sT[21], sT[22], sT[23]
sCK, sSP = sT[24], sT[25]
slow = []


def lst(f, *args):
    b = Asm()
    f(b, *args)
    return b.items


def dma(vbase, sbase, lds, n, tag):
    o = []
    for i in range(n):
        g = []
        if i % 4 == 0:
            g.append(Ins('s_add_u32 m0, %s, %d' % (sbase, lds + i * 1024)))
            g.append(Ins('v_add_u32 v%d, m0, v%d' % (vDt, vbase)))
        g.append(Ins('buffer_load_dwordx4 v%d, %s, 0 offen offset:%d lds' % (vDt, WS, (i % 4) * 1024), tag))
        o.append(g)
    return link(o)


def wda_loads():
    o = []
    for i in range(54):
        g = []
        if i and i % 4 == 0:
            g.append(Ins('v_add_u32 v%d, 4096, v%d' % (vWa, vWa)))
        g.append(Ins('buffer_load_dwordx4 %s, v%d, %s, 0 offen offset:%d' % (vr(4 * i + (40 if i >= 40 else 0), 4, 'a'), vWa, WS, (i % 4) * 1024), 'wda'))
        o.append(g)
    return o


def est(x):
    if isinstance(x, tuple):
        return 0 if x[0] in ('label', 'raw') else 30
    if x.kind == 'mfma':
        return 4 * x.passes
    if x.op == 's_barrier':
        return 40
    if x.op == 's_waitcnt':
        return 40
    if x.op.startswith(('v_sin', 'v_cos', 'v_exp', 'v_r', 'v_pk', 'ds_write')):
        return 8
    return 4


def timed(items, q, period, t=0):
    out = []
    for x in items:
        x = Ins(x) if isinstance(x, str) else x
        if isinstance(x, list):
            out += x
            t += 4 * len(x)
        else:
            out.append(x)
            t += est(x)
        if t >= period and q:
            g = q.pop(0)
            out += g
            t += 4 * len(g) - period
    return out


def link(groups):
    last = {}
    for g in groups:
        for x in g:
            if isinstance(x, Ins):
                if x.kind == 'vmem':
                    for r in ('m0',):
                        if r in x.src and r in last:
                            x.dep = last[r]
                for r in x.dst:
                    last[r] = x
    return groups


def weave_groups(main, groups, every, start=0):
    out, gi = [], 0
    for i, m in enumerate(main):
        out.append(m)
        if i >= start and (i - start) % every == every - 1 and gi < len(groups):
            out += groups[gi]
            gi += 1
    return out, groups[gi:]


def check_issue(vC, so):
    return [Ins('v_mov_b32 v%d, 0' % vC), Ins('buffer_atomic_add v%d, v%d, %s, %s offen sc0 sc1' % (vC, vFl, WS, so), 'ck')]


def check_test(vC, so, bit, name):
    slow.append((vC, so, bit, name))
    return [Ins('v_readfirstlane_b32 %s, v%d' % (sCK, vC)),
            [Ins('s_bitcmp1_b32 %s, %d' % (sCK, bit)), Ins('s_cbranch_scc0 %s_slow' % name), ('label', name + '_ok')]]


polls = []


def poll_test(regs, so, bit, name):
    polls.append((regs, so, bit, name))
    return [Ins('v_readfirstlane_b32 %s, v%d' % (sCK, regs[0])), Ins('s_bitcmp1_b32 %s, %d' % (sCK, bit)),
            Ins('s_cbranch_scc0 %s_slow' % name), ('label', name + '_ok')]


def emit_polls(a):
    for k, (regs, so, bit, name) in enumerate(polls):
        a.label(name + '_slow')
        a.reset()
        a.I('s_mov_b32 %s, 0' % sSP)
        a.label(name + '_spin')
        for r in range(3):
            a.reset()
            if STAMP:
                a.I('s_add_u32 s97, s97, 0x%x' % (1 << (5 * (2 + k))))
            a.ext(check_issue(regs[r], so))
            a.I('s_waitcnt vmcnt(2)')
            a.I('v_readfirstlane_b32 %s, v%d' % (sCK, regs[(r + 1) % 3]))
            a.I('s_bitcmp1_b32 %s, %d' % (sCK, bit))
            a.I('s_cbranch_scc1 %s_ok' % name)
        a.I('s_add_u32 %s, %s, 1' % (sSP, sSP))
        a.I('s_cmp_lt_u32 %s, %d' % (sSP, SPIN))
        a.I('s_cbranch_scc1 %s_spin' % name)
        a.I('s_branch %s_ok' % name)


def emit_slow(a):
    for k, (vC, so, bit, name) in enumerate(slow):
        a.label(name + '_slow')
        a.reset()
        a.I('s_mov_b32 %s, 0' % sSP)
        a.label(name + '_spin')
        if STAMP:
            sys.stderr.write('slow %d = %s\n' % (k, name))
            a.I('s_add_u32 s%d, s%d, 0x%x' % (96 + k // 6, 96 + k // 6, 1 << (5 * (k % 6))))
        if vC is None:
            a.I('s_load_dword %s, s[52:53], %s glc' % (sCK, so))
            a.I('s_add_u32 %s, %s, 1' % (sSP, sSP))
            a.I('s_waitcnt lgkmcnt(0)')
        else:
            a.ext(check_issue(vC, so))
            a.I('s_add_u32 %s, %s, 1' % (sSP, sSP))
            a.I('s_waitcnt vmcnt(0)')
            a.I('v_readfirstlane_b32 %s, v%d' % (sCK, vC))
        a.I('s_bitcmp1_b32 %s, %d' % (sCK, bit))
        a.I('s_cbranch_scc1 %s_ok' % name)
        a.I('s_cmp_lt_u32 %s, %d' % (sSP, SPIN))
        a.I('s_cbranch_scc1 %s_spin' % name)
        a.I('s_branch %s_ok' % name)


def take(q, n):
    r = []
    for g in q[:n]:
        r += g
    del q[:n]
    return r


def stream_bases(b):
    b.I('s_lshr_b32 s3, %s, 2' % sMU)
    b.I('s_sub_u32 s3, %s, s3' % sMU)
    b.I('s_mul_i32 %s, %s, 6' % (sCK, sMU))
    b.I('s_add_u32 s3, s3, %s' % sCK)
    b.I('s_mul_i32 s3, s3, 40960')
    b.I('v_add_u32 v%d, s3, v%d' % (vD0, vL16))
    b.I('s_mul_i32 s3, %s, 276480' % sJJ)
    b.I('s_mul_i32 %s, %s, 61440' % (sCK, sW))
    b.I('s_add_u32 s3, s3, %s' % sCK)
    b.I('s_add_u32 s3, s3, 0x%x' % WDP)
    b.I('v_add_u32 v%d, s3, v%d' % (vWa, vL16))
    b.I('s_mul_i32 %s, %s, 11264' % (sW11, sW))


sW11 = sT[20]


def kb(a, st, layer, q, second):
    LB = LB0 + layer * LBS
    FS, TA, TB, AP, AM, WA, WD = 16, 24, 88, 136, 152, 168, 208
    vRS, vVW, vVR, vA0, vA2 = (1, 2), (3, 4), (5, 6, 7, 8), 9, 10
    vZS, vRB, vGs, vXs, vRo = (248, 249, 250), 251, 252, 253, 254
    T, R0 = AP + 20, AP
    sT1, sCLS, sQ, sW10, sBLK, sW25 = sT[0], sT[1], sT[2], sT[3], sT[4], sT[5]
    sSig, sAmp, sZS, sRS, sW9, sW20 = sT[6], sT[7], sT[8], sT[9], sT[10], sT[11]
    PER = opt('per%d' % layer, opt('per', 56))
    b = Asm()
    b.I('s_lshr_b32 %s, %s, 2' % (sT1, sMU))
    b.I('s_sub_u32 s3, 3, %s' % sT1)
    b.items.append([Ins('s_cmp_gt_u32 %s, 8' % sG), Ins('s_cselect_b32 %s, s3, %s' % (sT1, sT1))])
    b.I('s_and_b32 s3, %s, 1' % sT1)
    b.I('s_lshl_b32 %s, %s, 1' % (sCLS, sG))
    b.I('s_add_u32 %s, %s, s3' % (sCLS, sCLS))
    b.I('s_lshl_b32 %s, %s, 1' % (sCLS, sCLS))
    b.I('s_lshr_b32 s3, %s, 1' % sT1)
    b.I('s_add_u32 %s, %s, s3' % (sCLS, sCLS))
    b.I('s_lshl_b32 %s, %s, 4' % (sT1, sT1))
    b.I('s_add_u32 %s, %s, %s' % (sT1, sT1, sG))
    b.I('s_sub_u32 s3, 64, %s' % sT1)
    b.I('s_min_u32 s3, s3, %s' % sT1)
    b.I('s_and_b32 s3, s3, 31')
    b.I('s_mul_i32 s3, s3, 81920')
    b.I('s_add_u32 s3, s3, 0x%x' % (LB + oG))
    b.I('v_add_u32 v%d, s3, v%d' % (vGs, vL16))
    b.I('s_mul_i32 %s, %s, 10240' % (sW10, sW))
    sc0 = b.items
    b = Asm()
    b.I('s_and_b32 %s, %s, 3' % (sQ, sMU))
    b.I('s_lshl_b32 %s, %s, 2' % (sBLK, sCLS))
    b.I('s_add_u32 %s, %s, %s' % (sBLK, sBLK, sQ))
    b.I('s_mul_i32 s3, %s, 10240' % sBLK)
    b.I('s_add_u32 s3, s3, 0x%x' % (LB + oXA - L_X))
    b.I('v_add_u32 v%d, s3, v%d' % (vXs, vL16))
    b.I('s_mul_i32 %s, %s, 2560' % (sW25, sW))
    b.items.append([Ins('s_cmp_lt_u32 %s, 32' % sT1), Ins('s_cselect_b32 %s, %s, 0' % (sSig, fl(-0.25)))])
    b.items.append([Ins('s_cmp_gt_u32 %s, 32' % sT1), Ins('s_cselect_b32 %s, %s, %s' % (sSig, fl(0.25), sSig))])
    b.items.append([Ins('s_cmp_eq_u32 %s, 0' % sT1), Ins('s_cselect_b32 %s, 0xffff, -1' % sAmp)])
    b.items.append([Ins('s_cmp_eq_u32 %s, 32' % sT1), Ins('s_cselect_b32 %s, 0xffff0000, %s' % (sAmp, sAmp))])
    b.I('v_and_b32 v%d, 31, v0' % T)
    b.I('s_lshr_b32 s3, %s, 1' % sW)
    b.I('v_add_u32 v%d, s3, v%d' % (T, T))
    b.I('v_cvt_f32_u32 v%d, v%d' % (T, T))
    b.I('v_mul_f32 v%d, %s, v%d' % (T, fl(1.0 / 32), T))
    b.I('s_and_b32 s3, %s, 1' % sW)
    b.I('s_lshl_b32 s3, s3, 4')
    b.I('v_cos_f32 v%d, v%d' % (T + 2, T))
    b.I('v_lshrrev_b32 v%d, 5, v0' % (T + 1))
    b.I('v_lshl_add_u32 v%d, v%d, 3, s3' % (T + 1, T + 1))
    b.I('v_cvt_f32_u32 v%d, v%d' % (T + 1, T + 1))
    b.I('v_mul_f32 v%d, v%d, v%d' % (R0 + 1, T, T + 1))
    b.I('v_add_f32 v%d, v%d, v%d' % (R0 + 3, R0 + 1, T))
    b.I('v_add_f32 v%d, v%d, v%d' % (T + 2, T + 2, T + 2))
    for j in range(2):
        b.I('v_cos_f32 v%d, v%d' % (R0 + 2 * j, R0 + 2 * j + 1))
        b.I('v_sin_f32 v%d, v%d' % (R0 + 2 * j + 1, R0 + 2 * j + 1))
    b.I('s_lshl_b32 s3, %s, 11' % sW)
    b.I('v_add_u32 v%d, 0x%x, v%d' % (vRB, L_V, vL16))
    b.I('v_add_u32 v%d, s3, v%d' % (T + 1, vRB))
    for j in range(2, 8):
        b.I('v_pk_fma_f32 %s, %s, %s, %s op_sel_hi:[0,1,1] neg_lo:[0,0,1] neg_hi:[0,0,1]' % (vr(R0 + 2 * j, 2), vr(T + 2, 2), vr(R0 + 2 * j - 2, 2), vr(R0 + 2 * j - 4, 2)))
    for e in range(2):
        for p in range(4):
            b.I('v_cvt_pk_bf16_f32 v%d, v%d, v%d' % (TB + 4 * e + p, R0 + 4 * p + e, R0 + 4 * p + 2 + e))
        b.I('ds_write_b128 v%d, %s offset:%d' % (T + 1, vr(TB + 4 * e, 4), 1024 * e))
    b.I('s_lshl_b32 s3, %s, 9' % sQ)
    b.I('s_add_u32 s3, s3, %s' % sT1)
    b.I('v_bfe_u32 v%d, v0, 1, 3' % T)
    b.I('v_lshl_add_u32 v%d, v%d, 6, s3' % (T, T))
    b.I('v_cvt_f32_u32 v%d, v%d' % (T, T))
    b.I('v_mul_f32 v%d, %s, v%d' % (T, fl(1.0 / 2048), T))
    b.I('v_lshrrev_b32 v%d, 4, v0' % (T + 1))
    b.I('v_cvt_f32_u32 v%d, v%d' % (T + 5, T + 1))
    b.I('v_add_f32 v%d, v%d, v%d' % (T + 1, T + 5, T + 5))
    b.I('v_and_b32 v%d, 1, v0' % (T + 2))
    b.I('v_cvt_f32_u32 v%d, v%d' % (T + 2, T + 2))
    b.I('v_mul_f32 v%d, %s, v%d' % (T + 2, fl(0.25), T + 2))
    b.I('v_fma_f32 v%d, v%d, v%d, v%d' % (T + 1, T, T + 1, T + 2))
    for i in range(8):
        k = 16 * (i >> 2) + 8 * ((i >> 1) & 1) + (i & 1)
        b.I('v_fmamk_f32 v%d, v%d, %s, v%d' % (FS + i, T, fl(k), T + 1))
        b.I('v_add_f32 v%d, %s, v%d' % (R0 + i, sSig, FS + i))
        b.I('v_cos_f32 v%d, v%d' % (FS + i, FS + i))
        b.I('v_cos_f32 v%d, v%d' % (R0 + i, R0 + i))
    for i in range(8):
        b.I('v_cvt_pk_bf16_f32 v%d, v%d, v%d' % (FS + i, FS + i, R0 + i))
        b.I('v_and_b32 v%d, %s, v%d' % (FS + i, sAmp, FS + i))
    b.I('v_lshrrev_b32 v%d, 3, v0' % T)
    b.I('v_mul_u32_u24 v%d, 2560, v%d' % (T + 1, T))
    b.I('v_bfe_u32 v%d, v0, 2, 1' % (T + 2))
    b.I('v_lshl_add_u32 v%d, v%d, 3, v%d' % (T + 1, T + 2, T + 1))
    b.I('v_and_b32 v%d, 3, v0' % (T + 2))
    b.I('v_lshl_add_u32 v%d, v%d, 7, v%d' % (T + 1, T + 2, T + 1))
    b.I('v_and_b32 v%d, 3, v%d' % (T, T))
    b.I('v_and_b32 v%d, 2, v0' % (T + 2))
    b.I('v_lshl_or_b32 v%d, v%d, 1, v%d' % (T, T + 2, T))
    b.I('s_lshl_b32 s3, %s, 1' % sW)
    b.I('v_xor_b32 v%d, s3, v%d' % (T, T))
    b.I('v_lshl_add_u32 v%d, v%d, 4, v%d' % (vRS[0], T, T + 1))
    b.I('v_xor_b32 v%d, 16, v%d' % (vRS[1], vRS[0]))
    tab1 = b.items
    b = Asm()
    K = T + 2
    b.I('v_and_b32 v%d, 15, v0' % T)
    b.I('v_cvt_f32_u32 v%d, v%d' % (T, T))
    b.I('v_mul_f32 v%d, %s, v%d' % (T, fl(1.0 / 640), T))
    b.I('s_lshl_b32 s3, %s, 3' % sW)
    b.I('v_cos_f32 v%d, v%d' % (K, T))
    b.I('v_cvt_f32_u32 v%d, s3' % (T + 1))
    b.I('v_fmamk_f32 v%d, v%d, %s, v%d' % (T + 1, T + 5, fl(32), T + 1))
    b.I('v_mul_f32 v%d, v%d, v%d' % (T + 1, T, T + 1))
    b.I('v_add_f32 v%d, v%d, v%d' % (K, K, K))
    for ib in range(8):
        C, Sn = TA + 8 * ib, TA + 8 * ib + 4
        cur, oth = R0 + 10 * (ib & 1), R0 + 10 * ((ib + 1) & 1)
        for j in range(5):
            r = cur + 2 * j
            if ib < 2:
                b.I('v_fmamk_f32 v%d, v%d, %s, v%d' % (r + 1, T, fl(128 * j + ib), T + 1))
                b.I('v_cos_f32 v%d, v%d' % (r, r + 1))
                b.I('v_sin_f32 v%d, v%d' % (r + 1, r + 1))
            else:
                b.I('v_pk_fma_f32 %s, %s, %s, %s op_sel_hi:[0,1,1] neg_lo:[0,0,1] neg_hi:[0,0,1]' % (vr(r, 2), vr(K, 2), vr(oth + 2 * j, 2), vr(r, 2)))
        for e, d in ((0, C), (1, Sn)):
            b.I('v_cvt_pk_bf16_f32 v%d, v%d, v%d' % (d, cur + e, cur + 2 + e))
            b.I('v_cvt_pk_bf16_f32 v%d, v%d, v%d' % (d + 1, cur + 4 + e, cur + 6 + e))
            b.I('v_cvt_pk_bf16_f32 v%d, v%d, 0' % (d + 2, cur + 8 + e))
    tab2 = b.items

    b = Asm()
    b.I('s_lshl_b32 s3, %s, 1' % sW)
    b.I('v_and_b32 v%d, 31, v0' % (T + 2))
    b.I('v_lshrrev_b32 v%d, 5, v0' % (T + 4))
    b.I('v_add_u32 v%d, s3, v%d' % (T + 3, T + 4))
    xr_addr(b, vA0, vA2, T + 2, T + 3, T)
    b.I('v_add_u32 v%d, 0x%x, v%d' % (vA0, L_X, vA0))
    b.I('v_add_u32 v%d, 0x%x, v%d' % (vA2, L_X, vA2))
    b.I('v_bfe_u32 v%d, v0, 3, 2' % (T + 1))
    b.I('v_cmp_eq_u32 vcc, 3, v%d' % (T + 1))
    b.I('v_bfe_u32 v%d, v0, 2, 1' % T)
    b.I('v_add_u32 v%d, s3, v%d' % (T, T))
    b.I('v_and_b32 v%d, 3, v0' % (T + 2))
    b.I('v_cndmask_b32_e64 v%d, v%d, 0, vcc' % (T + 1, T + 1))
    b.I('v_lshl_add_u32 v%d, v%d, 2, v%d' % (T + 1, T + 1, T + 2))
    b.I('v_mad_u32_u24 v%d, v%d, 12, v%d' % (T + 2, T, T + 1))
    b.I('v_lshlrev_b32 v%d, 7, v%d' % (T + 2, T + 2))
    b.I('v_lshrrev_b32 v%d, 1, v%d' % (T + 1, T + 1))
    b.I('v_and_b32 v%d, 3, v%d' % (T, T))
    b.I('v_xor_b32 v%d, v%d, v%d' % (T, T, T + 1))
    b.I('v_xor_b32 v%d, v%d, v%d' % (T, T, T + 4))
    b.I('v_lshl_add_u32 v%d, v%d, 4, v%d' % (T, T, T + 2))
    b.I('v_add_u32 v%d, 0x%x, v%d' % (vVR[0], L_V, T))
    for k in range(1, 4):
        b.I('v_xor_b32 v%d, %d, v%d' % (vVR[k], 32 * k, vVR[0]))
    b.I('v_bfe_u32 v%d, v0, 1, 3' % T)
    b.I('v_lshrrev_b32 v%d, 4, v0' % (T + 1))
    b.I('v_mad_u32_u24 v%d, v%d, 3, v%d' % (T + 2, T, T + 1))
    b.I('v_lshlrev_b32 v%d, 9, v%d' % (T + 2, T + 2))
    b.I('v_add_u32 v%d, 1, v%d' % (T + 3, T + 1))
    b.I('v_lshrrev_b32 v%d, 2, v%d' % (T + 3, T + 3))
    b.I('v_lshl_add_u32 v%d, v%d, 16, v%d' % (T + 2, T + 3, T + 2))
    b.I('v_and_b32 v%d, 3, v%d' % (T, T))
    b.I('v_lshlrev_b32 v%d, 1, v%d' % (T + 1, T + 1))
    b.I('v_xor_b32 v%d, v%d, v%d' % (T, T, T + 1))
    b.I('v_and_b32 v%d, 1, v0' % (T + 1))
    b.I('v_lshl_or_b32 v%d, v%d, 2, %s' % (T + 1, T + 1, sW))
    b.I('v_xor_b32 v%d, v%d, v%d' % (T, T, T + 1))
    b.I('v_lshl_add_u32 v%d, v%d, 4, v%d' % (T, T, T + 2))
    b.I('v_add_u32 v%d, 0x%x, v%d' % (vVW[0], L_V, T))
    b.I('v_xor_b32 v%d, 16, v%d' % (vVW[1], vVW[0]))
    b.I('s_mul_i32 %s, %s, 20480' % (sW20, sW))
    for ib in range(8):
        b.I('v_mov_b32 v%d, 0' % (TA + 8 * ib + 3))
        b.I('v_mov_b32 v%d, 0' % (TA + 8 * ib + 7))
    addr = b.items

    b = Asm()
    U = T if second else FS
    b.I('s_mul_i32 s3, %s, 20' % sW)
    b.I('v_lshrrev_b32 v%d, 3, v0' % U)
    b.I('v_add_u32 v%d, s3, v%d' % (U, U))
    for it in range(3):
        if it:
            b.I('v_add_u32 v%d, 8, v%d' % (U, U))
        b.I('v_mul_u32_u24 v%d, 205, v%d' % (U + 1, U))
        b.I('v_lshrrev_b32 v%d, 9, v%d' % (U + 1, U + 1))
        b.I('v_xor_b32 v%d, v%d, v0' % (U + 1, U + 1))
        b.I('v_and_b32 v%d, 7, v%d' % (U + 1, U + 1))
        b.I('v_lshlrev_b32 v%d, 9, v%d' % (U + 2, U))
        b.I('v_lshl_add_u32 v%d, v%d, 4, v%d' % (vZS[it], U + 1, U + 2))
    b.I('v_lshrrev_b32 v%d, 5, v0' % U)
    b.I('v_lshl_add_u32 v%d, v%d, 31, v%d' % (vZS[2], U, vZS[2]))
    b.I('s_mul_i32 %s, %s, 40960' % (sZS, sCLS))
    b.I('s_lshl_b32 s3, %s, 7' % sQ)
    b.I('s_add_u32 %s, %s, s3' % (sZS, sZS))
    b.I('s_add_u32 %s, %s, 0x%x' % (sZS, sZS, LB + oZ))
    b.I('s_add_u32 s3, %s, 0x%x' % (sW25, L_X))
    b.I('v_add_u32 v%d, s3, v%d' % (vRB, vL16))
    b.I('v_and_b32 v%d, 31, v0' % (U + 1))
    b.I('v_min_u32 v%d, 1, v%d' % (U + 1, U + 1))
    b.I('v_lshlrev_b32 v%d, 31, v%d' % (U + 1, U + 1))
    b.I('v_lshl_add_u32 v%d, v%d, 3, v%d' % (vRo, U, U + 1))
    b.I('s_lshl_b32 %s, %s, 2' % (sRS, sBLK))
    b.I('s_add_u32 %s, %s, %s' % (sRS, sRS, sW))
    b.I('s_lshl_b32 %s, %s, 4' % (sRS, sRS))
    b.I('s_add_u32 %s, %s, 0x%x' % (sRS, sRS, LB + oRS))
    late = b.items

    tbr = ['ds_read_b128 %s, v%d offset:%d' % (vr(TB + 24 * (w >> 1) + 8 * e + 4 * (w & 1), 4), vRB, 2048 * w + 1024 * e) for w in range(4) for e in range(2)]
    neg = ['v_xor_b32 v%d, 0x80008000, v%d' % (TB + 16 + i, TB + 8 + i) for i in range(8)] + \
          ['v_xor_b32 v%d, 0x80008000, v%d' % (TB + 40 + i, TB + 24 + i) for i in range(8)]
    XE = lambda e: AP + e if e < 10 else AM + 20 - e
    rds = lambda ks: ['ds_read_b64_tr_b16 %s, v%d offset:%d' % (vr(WA + 20 * bg + 4 * t + 2 * rd, 2), vRS[bg], (16 * ks + 8 * rd) * 2560 + 512 * t)
                      for bg in range(2) for t in range(5) for rd in range(2)]
    mf = lambda ks: ['%s %s, %s, %s, %s' % (M16, vr(WD + 4 * i, 4), vr(WA + 4 * i, 4), vr(FS + 4 * ks, 4), vr(WD + 4 * i, 4) if ks else '0') for i in range(10)]
    gq = dma(vGs, sW10, 0, 10, 'g0') + dma(vGs, sW10, 40960, 10, 'g1')
    xd = dma(vXs, sW25, L_X, 3, 'xa')
    xd[2] = [Ins('s_mov_b32 exec_hi, 0')] + xd[2] + [Ins('s_mov_b32 exec_hi, -1')]
    if second:
        for g in gq + xd:
            for x in g:
                if x.kind == 'vmem':
                    x.text = x.text.replace(' lds', ' sc1 lds')
    early = dma(vD0, sW11, 81920, 11, 'w')

    if not second:
        a.I('v_lshlrev_b32 v%d, 4, v0' % vL16)
        a.ext(timed(sc0, [], 1))
        a.I('s_waitcnt lgkmcnt(0)')
        srd(a, 4, 52, WS_BYTES)
        st(a, 'ABCDP')
        q = gq + xd + early + wda_loads()
        a.ext(take(q, opt('nb', 11)))
        b = Asm()
        srd(b, 8, 54, XB)
        stream_bases(b)
        b.I('v_min_u32 v%d, 1, v0' % vFl)
        b.I('v_lshlrev_b32 v%d, 31, v%d' % (vFl, vFl))
        a.ext(timed(b.items + tab1 + tab2, q, opt('per0', 64), -opt('dl0', 750)))
        a.ext(take(q, len([g for g in q if g[-1].tag == 'g1'])))
        st(a, 'B')
        b = Asm()
        b.items.append(('wait_both', 'g0'))
        b.I('s_barrier')
        b.ext(rds(0)[:14])
        b.ext(addr[:14])
        b.ext(rds(0)[14:])
        b.ext(addr[14:34])
        b.I('s_waitcnt lgkmcnt(0)')
        b.ext(weave(mf(0), tbr + addr[34:], 0, 2))
        a.ext(timed(b.items, q, PER))
    else:
        vAr, vRp, vCk = WD + 32, WD + 33, WD + 34
        sAr, sRp = sT[12], sT[13]
        q[:0] = early
        b = Asm()
        b.I('s_lshl_b32 %s, %s, 7' % (sAr, sG))
        b.I('s_add_u32 %s, %s, 0x%x' % (sAr, sAr, LB + oFL + 384 * 128))
        b.I('s_min_u32 s3, %s, 1' % sW)
        b.I('s_lshl_b32 s3, s3, 31')
        b.I('v_or_b32 v%d, s3, v%d' % (vAr, vFl))
        b.I('v_mov_b32 v%d, 1' % vCk)
        n = opt('a1', 8)
        qa = q[:n]
        del q[:n]
        a.ext(timed(b.items + sc0 + tab1, qa, 80))
        a.ext(take(qa, 99))
        a.items.append(('wait_both', 'gs'))
        a.I('s_barrier')
        a.I('buffer_atomic_add v%d, v%d, %s, %s offen sc0 sc1' % (vCk, vAr, WS, sAr))
        st(a, 'P')
        n = opt('a2', 8)
        qa = q[:n]
        del q[:n]
        b = Asm()
        b.I('s_and_b32 %s, s2, 63' % sRp)
        b.I('v_mov_b32 v%d, v%d' % (vCk + 3, vAr))
        b.I('s_lshl_b32 %s, %s, 7' % (sRp, sRp))
        b.I('s_add_u32 %s, %s, 0x%x' % (sRp, sRp, LB + oFL + 448 * 128))
        b.I('s_mov_b32 %s, 0x%x' % (sAr, LB + oFL + 448 * 128))
        b.I('v_lshlrev_b32 v%d, 7, v0' % vRp)
        b.I('v_mov_b32 v%d, 1' % vAr)
        n2 = opt('t2', 90)
        a.ext(timed(tbr + b.items + tab2[:n2], qa, 64))
        a.ext(take(qa, 99))
        a.I('v_readfirstlane_b32 %s, v%d' % (sCK, vCk))
        a.I('s_cmp_lg_u32 %s, 15' % sCK)
        a.I('s_cbranch_scc1 a2a_notlast')
        a.raw('    buffer_atomic_add v%d, v%d, %s, %s offen sc1' % (vAr, vRp, WS, sAr))
        a.label('a2a_notlast')
        qa = take1(q, opt('a3', 4))
        rest = timed(tab2[n2:] + neg + addr + late, qa, 64)
        pr = (vCk, vCk + 1, vCk + 2)
        vPl = vCk + 3
        n3 = len(rest) // 3
        for r in range(3):
            a.ext(rest[r * n3:(r + 1) * n3 if r < 2 else 9999])
            a.I('v_mov_b32 v%d, 0' % pr[r])
            a.I('buffer_atomic_add v%d, v%d, %s, %s offen sc0 sc1' % (pr[r], vPl, WS, sRp))
        a.ext(take(qa, 99))
        assert not any(g[-1].tag == 'w' for g in q)
        a.I('s_cmp_lg_u32 %s, 0' % sW)
        a.I('s_cbranch_scc1 a2a_ok')
        pt = poll_test(pr, sRp, 4, 'a2a')
        a.raw('    s_waitcnt vmcnt(2)\n    ' + pt[0].text + '\n    s_nop 1\n    ' + pt[1].text + '\n    ' + pt[2].text)
        a.label('a2a_ok')
        a.I('s_barrier')
        st(a, 'ABCDP')
        a.ext(take(gq, 20))
        q[:0] = xd
        late, neg = [], []
        st(a, 'B')
        b = Asm()
        b.items.append(('wait_both', 'g0'))
        b.I('s_barrier')
        b.ext(rds(0)[:12])
        b.ext(weave(mf(0), rds(0)[12:], 0, 2))
        a.ext(timed(b.items, q, PER))
    a.items.append(('wait_both', 'g1'))
    a.I('s_barrier')
    st(a, 'AB')
    b = Asm()
    b.ext(rds(1)[:12])
    b.ext(neg[:6])
    b.ext(weave(mf(1), rds(1)[12:] + neg[6:], 0, 2))

    def ub(ib):
        d = lambda t: WD + 20 * (ib >> 2) + 4 * t + (ib & 3)
        u = WA + 4 * ib
        return ['v_cvt_pk_bf16_f32 v%d, v%d, v%d' % (u, d(0), d(1)), 'v_cvt_pk_bf16_f32 v%d, v%d, v%d' % (u + 1, d(2), d(3)),
                'v_cvt_pk_bf16_f32 v%d, v%d, 0' % (u + 2, d(4))]
    PQ = [[WD + 4 * ib for ib in range(8)], [TA + 8 * ib for ib in range(8)]]
    mP = ['%s %s, %s, %s, 0' % (M16, vr(PQ[0][ib], 4), vr(TA + 8 * ib, 4), vr(WA + 4 * ib, 4)) for ib in range(8)]
    mQ = ['%s %s, %s, %s, 0' % (M16, vr(PQ[1][ib], 4), vr(TA + 8 * ib + 4, 4), vr(WA + 4 * ib, 4)) for ib in range(8)]

    def vout(pq):
        o = []
        for r in range(4):
            t = (WA + 32, WA + 36, WD + 32, WD + 36)[r]
            for p in range(4):
                o.append('v_cvt_pk_bf16_f32 v%d, v%d, v%d' % (t + p, PQ[pq][2 * p] + r, PQ[pq][2 * p + 1] + r))
            o.append('ds_write_b128 v%d, %s offset:%d' % (vVW[r >> 1], vr(t, 4), pq * 12288 + r * 128))
        return o
    b.ext(ub(0) + ub(1) + ub(2) + ub(3))
    b.ext(weave(mP[:4] + mQ[:2], ub(4) + ub(5) + ub(6) + ub(7), 0, 2))
    b.ext(mP[4:])
    b.ext(weave(mQ[2:], vout(0), 1, 2))
    a.ext(timed(b.items, q, PER))
    assert not any(g is xd[2] or g[-1].tag == 'w' for g in q)
    a.items.append(('wait_both', 'xa'))
    a.I('s_barrier')
    st(a, 'B')
    q[:0] = dma(vD0, sW20, 0, 20, 'w')

    def mb(pq, pm):
        o = []
        for k in range(4):
            ri, wh = k >> 1, k & 1
            tb = (((0, 8), (16, 0)), ((24, 32), (32, 40)))[pm][pq][ri]
            acc = vr((AP, AM)[pm], 16)
            o.append('%s %s, %s, %s, %s' % (M32, acc, vr(WA + 16 * pq + 4 * k, 4), vr(TB + tb + 4 * wh, 4), acc if (pq or pm or k) else '0'))
        return o
    vrd = lambda pq: ['ds_read_b128 %s, v%d offset:%d' % (vr(WA + 16 * pq + 4 * k, 4), vVR[k], pq * 12288) for k in range(4)]
    vq = vout(1)
    S, XP, XU = WD, WD + 8, WD + 20

    def stat(es, first):
        o = []
        for e in es:
            if first:
                o.append('v_add_f32 v%d, v%d, v%d' % (S, XE(e), XE(e + 1)))
                o.append('v_mul_f32 v%d, v%d, v%d' % (S + 1, XE(e), XE(e)))
                first = False
            else:
                o.append('v_add_f32 v%d, v%d, v%d' % (S, S, XE(e)))
                o.append('v_fmac_f32 v%d, v%d, v%d' % (S + 1, XE(e), XE(e)))
                o.append('v_add_f32 v%d, v%d, v%d' % (S, S, XE(e + 1)))
            o.append('v_fmac_f32 v%d, v%d, v%d' % (S + 1, XE(e + 1), XE(e + 1)))
        return o
    un = unpack(range(XP, XP + 10), lambda e: XU + e if e < 10 else XE(e))
    radd = ['v_add_f32 v%d, v%d, v%d' % (AP + e, AP + e, XU + e) for e in range(10)]
    a.ext(vrd(0))
    a.I('ds_read_b128 %s, v%d offset:128' % (vr(XP + 4, 4), vA0))
    a.I('ds_read_b64 %s, v%d' % (vr(XP + 8, 2), vA2))
    a.I('ds_read_b128 %s, v%d' % (vr(XP, 4), vA0))
    a.ext(take(q, 1))
    a.ext(vq[:9])
    mm = mb(0, 0)
    a.ext([mm[0]] + vq[9:14] + [mm[1]] + vq[14:19] + [mm[2]] + vq[19:] + un[10:12] + [mm[3]] + take(q, 1) + un[12:])
    a.I('s_waitcnt lgkmcnt(0)')
    a.I('s_barrier')
    mm = mb(0, 1) + mb(1, 0) + mb(1, 1)
    a.ext([mm[0]] + vrd(1) + un[:2] + [mm[1]] + un[2:8] + [mm[2]] + un[8:10] + radd[:4] + [mm[3]] + radd[4:])
    li = 0
    for i in range(4, 10):
        a.I(mm[i])
        a.ext(take(q, 1) if i % 2 == 0 else [])
        a.ext(late[li:li + 5 + i % 2])
        li += 5 + i % 2
    s0 = stat(range(0, 10, 2), True)
    a.I(mm[10])
    a.ext(take(q, 1) + s0[:5])
    a.I(mm[11])
    b = Asm()
    b.ext(s0[5:])
    st(b, 'B')
    b.ext(stat(range(10, 20, 2), False))
    red = []
    for m in ('quad_perm:[1,0,3,2]', 'quad_perm:[2,3,0,1]', 'row_half_mirror', 'row_mirror'):
        for i in range(2):
            red.append('v_add_f32_dpp v%d, v%d, v%d %s row_mask:0xf bank_mask:0xf' % (S + i, S + i, S + i, m))
    b.ext(weave(red, late[li:], 1, 0.5))
    b.I('v_mov_b32 v%d, v%d' % (S + 2, S))
    b.I('v_mov_b32 v%d, v%d' % (S + 3, S + 1))
    b.I('v_permlane16_swap_b32 v%d, v%d' % (S, S + 2))
    b.I('v_permlane16_swap_b32 v%d, v%d' % (S + 1, S + 3))
    b.I('v_add_f32 v%d, v%d, v%d' % (S, S, S + 2))
    b.I('v_add_f32 v%d, v%d, v%d' % (S + 1, S + 1, S + 3))
    ln_coef(b, S, S + 1, S + 2, S + 4, None, LOG2E)
    ZP = WA
    pkf = lambda r: 'v_pk_fma_f32 %s, %s, %s, %s op_sel_hi:[1,0,0]' % (vr(r, 2), vr(r, 2), vr(S + 2, 2), vr(S + 4, 2))
    cz = lambda i: 'v_cvt_pk_bf16_f32 v%d, v%d, v%d' % (ZP + i, XE(2 * i), XE(2 * i + 1))
    for i in range(4):
        b.I(pkf(AP + 2 * i))
    for i in range(4):
        b.I(cz(i))
    b.I('ds_write_b128 v%d, %s' % (vA0, vr(ZP, 4)))
    for r in (AP + 8, AM + 10, AM + 8, AM + 6, AM + 4):
        b.I(pkf(r))
    for i in range(4, 8):
        b.I(cz(i))
    b.I('ds_write_b128 v%d, %s offset:128' % (vA0, vr(ZP + 4, 4)))
    b.I(pkf(AM + 2))
    b.I(pkf(AM))
    b.I(cz(8))
    b.I(cz(9))
    b.I('ds_write_b64 v%d, %s' % (vA2, vr(ZP + 8, 2)))
    a.ext(timed(b.items, q, PER))
    a.I('v_rcp_f32 v%d, v%d' % (S + 1, S + 2))
    a.I('v_mul_f32 v%d, %s, v%d' % (S, fl(1.0 / 640), S))
    a.I('s_waitcnt lgkmcnt(0)')
    a.I('s_barrier')
    for it in range(3):
        a.I('ds_read_b128 %s, v%d offset:%d' % (vr(WD + 8 + 4 * it, 4), vRB, 1024 * it))
    a.I('buffer_store_dwordx2 %s, v%d, %s, %s offen sc1' % (vr(S, 2), vRo, WS, sRS), tag='zs')
    for it in range(3):
        a.I('buffer_store_dwordx4 %s, v%d, %s, %s offen sc1' % (vr(WD + 8 + 4 * it, 4), vZS[it], WS, sZS), tag='zs')
    a.I('s_barrier')
    st(a, 'AB')
    a.I('s_lshl_b32 %s, %s, 9' % (sZF, sCLS))
    a.I('s_add_u32 %s, %s, 0x%x' % (sZF, sZF, LB + oFL))
    a.I('s_mul_i32 %s, %s, 9216' % (sW9, sW))
    w1 = [g for g in q if g[-1].tag == 'w']
    rest = [g for g in q if g[-1].tag != 'w']
    sys.stderr.write('layer %d after KB: w1 left %d, wda left %d\n' % (layer, len(w1), len(rest)))
    return w1, dma(vD0, sW9, L_V, 9, 't3'), rest


def gemms(a, st, layer, qw, q3, q):
    LB = LB0 + layer * LBS
    LN = LB + LBS
    ly = str(layer)
    O = lambda name, d0, d1=None: opt(name + ly, opt(name, d0 if (layer == 0 or d1 is None or not PERS) else d1))
    vLD, vZ, vL8, vC, vSg, vH = (vL16, 1, 2), 3, 4, 5, 6, 7
    vS0, vS1 = 8, 9
    HP, ACC, ET, Z = 16, [24, 40, 56, 72], 88, 96
    WB = 160
    sZ, sZc, sHS, sH6, sW5, sT6, sC2 = sT[0], sT[1], sT[3], sT[4], sT[5], sT[6], sT[7]
    sQ, sZp = sT[2], sT[12]
    b = Asm()
    b.I('v_mov_b32 v%d, 1' % vSg)
    b.I('s_lshl_b32 %s, %s, 2' % (sZ, sG))
    b.I('s_add_u32 %s, %s, %s' % (sZ, sZ, sW))
    b.I('s_lshl_b32 %s, %s, 9' % (sZc, sZ))
    b.I('s_add_u32 %s, %s, 0x%x' % (sZc, sZc, LB + oFL))
    b.I('s_lshr_b32 %s, %s, 2' % (sZp, sMU))
    b.I('s_lshl_b32 %s, %s, 7' % (sZp, sZp))
    b.I('s_add_u32 %s, %s, %s' % (sZp, sZp, sZc))
    b.I('s_lshl_b32 s3, %s, 6' % sW)
    b.I('v_add_u32 v%d, s3, v0' % vH)
    b.I('v_lshrrev_b32 v%d, 2, v%d' % (vH, vH))
    b.I('v_min_u32 v%d, 1, v%d' % (vH, vH))
    b.I('v_lshlrev_b32 v%d, 31, v%d' % (vH, vH))
    b.I('v_lshl_add_u32 v%d, v0, 7, v%d' % (vH, vH))
    b.I('s_mul_i32 %s, %s, 110592' % (sHS, sZ))
    b.I('s_mul_i32 %s, %s, 40960' % (sZ, sZ))
    b.I('s_add_u32 %s, %s, 0x%x' % (sZ, sZ, LB + oZ))
    b.I('v_lshrrev_b32 v%d, 4, v0' % vZ)
    b.I('v_and_b32 v%d, 15, v0' % vL8)
    b.I('v_lshlrev_b32 v%d, 4, v%d' % (vL8, vL8))
    b.I('v_lshl_add_u32 v%d, v%d, 9, v%d' % (vZ, vZ, vL8))
    b.I('v_add_u32 v%d, %s, v%d' % (vZ, sZ, vZ))
    b.I('v_lshlrev_b32 v%d, 3, v0' % vL8)
    b.I('v_add_u32 v%d, 0x10000, v%d' % (vLD[1], vL16))
    b.I('v_add_u32 v%d, 0x20000, v%d' % (vLD[2], vL16))
    b.I('s_add_u32 %s, %s, 0x%x' % (sHS, sHS, LB + oH))
    b.I('s_lshr_b32 s3, %s, 2' % sMU)
    b.I('s_sub_u32 %s, %s, s3' % (sH6, sMU))
    b.I('s_lshl_b32 %s, %s, 10' % (sH6, sH6))
    b.I('s_add_u32 %s, %s, %s' % (sH6, sH6, sHS))
    b.I('s_add_u32 %s, %s, 98304' % (sH6, sH6))
    b.I('s_mul_i32 s3, s3, 24576')
    b.I('s_add_u32 %s, %s, s3' % (sHS, sHS))
    b.I('s_lshl_b32 s3, %s, 11' % sQ)
    b.I('s_add_u32 %s, %s, s3' % (sHS, sHS))
    b.I('s_mul_i32 %s, %s, 5120' % (sW5, sW))
    b.I('s_add_u32 %s, %s, 1' % (sT6, sQ))
    b.I('s_lshr_b32 %s, %s, 2' % (sT6, sT6))
    b.I('s_lshl_b32 %s, %s, 31' % (sT6, sT6))
    b.I('s_mov_b32 %s, %s' % (sC2, fl(LOG2E * LOG2E)))
    set1 = b.items
    b = Asm()
    b.I('s_lshl_b32 %s, %s, 2' % (sHF, sG))
    b.I('s_lshr_b32 s3, %s, 2' % sMU)
    b.I('s_add_u32 %s, %s, s3' % (sHF, sHF))
    b.I('s_lshl_b32 %s, %s, 1' % (sHF, sHF))
    b.I('s_lshr_b32 s3, %s, 1' % sW)
    b.I('s_add_u32 %s, %s, s3' % (sHF, sHF))
    b.I('s_lshl_b32 %s, %s, 7' % (sHF, sHF))
    b.I('s_add_u32 %s, %s, 0x%x' % (sHF, sHF, LB + oFL + 256 * 128))
    b.I('s_lshl_b32 %s, %s, 2' % (sHC, sG))
    b.I('s_add_u32 %s, %s, %s' % (sHC, sHC, sW))
    b.I('s_lshl_b32 %s, %s, 1' % (sHC, sHC))
    b.I('s_add_u32 %s, %s, %s' % (sHC, sHC, sHB))
    b.I('s_lshl_b32 %s, %s, 7' % (sHC, sHC))
    b.I('s_add_u32 %s, %s, 0x%x' % (sHC, sHC, LB + oFL + 256 * 128))
    sHP = sT[13:17]
    b.I('s_lshl_b32 %s, %s, 1' % (sT[17], sG))
    b.I('s_add_u32 %s, %s, %s' % (sT[17], sT[17], sHB))
    b.I('s_mul_i32 %s, %s, %d' % (sT[17], sT[17], 2 * 110592))
    b.I('s_mul_i32 s3, %s, 24576' % sW)
    b.I('s_add_u32 %s, %s, s3' % (sT[17], sT[17]))
    b.I('s_add_u32 %s, %s, 0x%x' % (sT[17], sT[17], LB + oH))
    for p in range(4):
        b.I('s_add_u32 %s, %s, %d' % (sT[18], sW, p + 1))
        b.I('s_bfe_u32 s3, %s, 0x10001' % sT[18])
        b.I('s_mul_i32 s3, s3, 110592')
        b.I('s_add_u32 %s, %s, s3' % (sHP[p], sT[17]))
        b.I('s_and_b32 s3, %s, 1' % sT[18])
        b.I('s_lshl_b32 s3, s3, 10')
        b.I('s_add_u32 %s, %s, s3' % (sHP[p], sHP[p]))
    set2 = b.items

    NG = O('ng', 2)
    groups = [[(t, ks, m) for t in range(3) for m in range(2)] for ks in range(5 * NG)]
    for kg in range(NG, 4):
        tm = [(t, m) for t in range(3) for m in range(2)] if kg < 3 else [(t, m) for m in range(2) for t in range(3)]
        groups += [[(t, 5 * kg + i, m) for i in range(5)] for t, m in tm]
    groups += [[(t, 5 * kg + i, m) for i in range(5)] for t in range(3, 7) for m in range(2) for kg in range(4)]
    gstart = [0]
    for gr in groups:
        gstart.append(gstart[-1] + 2 * len(gr))
    DST = [0, 40960, 81920, 20480, 61440, 102400]
    accof = [0, 1, 2, 3, 0, 1, 2]
    wbuf = lambda gi, i: vr(WB + 20 * (gi & 1) + 4 * i, 4, 'a') if i < 5 else vr(ACC[3] + 4 * (gi & 1), 4)

    def grp_reads(n):
        o = []
        for i, (t, ks, m) in enumerate(groups[n]):
            kg = ks // 5
            off = t * 40960 + kg * 10240 if t < 4 else DST[2 * (t - 4) + (kg >> 1)] + (kg & 1) * 10240
            off += m * 5120 + (ks % 5) * 1024
            o.append('ds_read_b128 %s, v%d offset:%d' % (wbuf(n, i), vLD[off >> 16], off & 0xffff))
        return o

    q[:0] = qw + q3
    nA = max(O('nA', 8), len(qw))
    qa = take1(q, nA)
    a.ext(take(qa, 4))
    a.ext(timed(set1, qa, 24))
    a.ext(take(qa, 99))
    a.wait_vm('zs')
    a.I('s_barrier')
    a.I('buffer_atomic_add v%d, v%d, %s, %s offen sc1' % (vSg, vH, WS, sZF))
    st(a, 'B')
    pr = (vC, vS0, vS1)
    a.ext(take(q, O('nB', 4, 2)))
    dB = O('dB', 16)
    for r in range(3):
        a.ext(set2[r * dB:(r + 1) * dB if r < 2 else 99])
        a.ext(check_issue(pr[r], sZp))
        a.ext(take(q, O('nC', 2, 2)))
    sys.stderr.write('into GEMM1: left %d\n' % len(q))
    a.wait_vm('w')
    a.I('s_barrier')
    a.ext(grp_reads(0))
    a.ext(poll_test(pr, sZp, 2, 'zf' + ly))
    st(a, 'ACP')
    zq = []
    for ks in range(20):
        for rt in range(2):
            zq.append(([Ins('v_add_u32 v%d, 4096, v%d' % (vZ, vZ))] if (ks and ks % 2 == 0 and rt == 0) else []) +
                      [Ins('buffer_load_dwordx4 %s, v%d, %s, 0 offen offset:%d sc1' % (vr(Z + 8 * ks + 4 * rt, 4), vZ, WS, (ks & 1) * 2048 + rt * 256), 'z%d' % (ks if ks < 5 * NG else ks // 5 * 5))])
    a.ext(take(zq, O('nz', 11)))
    a.I('s_waitcnt lgkmcnt(0)')

    prevd = [0]

    def half_dma(h):
        g = dma(vD0, sW5, DST[h], 5, 't%d' % (4 + h // 2))
        d = (8 + h) * 20480 - DST[h]
        pre = [Ins('v_add_u32 v%d, 0x%x, v%d' % (vD0, (d - prevd[0]) & 0xffffffff, vD0))]
        prevd[0] = d
        if h == 4:
            pre.append(Ins('v_add_u32 v%d, %s, v%d' % (vD0, sT6, vD0)))
        g[0] = pre + g[0]
        return g

    def epg(t):
        A = ACC[accof[t]]
        o = []
        for r in range(8):
            o.append('v_exp_f32_e64 v%d, -v%d' % (ET + r, A + r))
            o.append('v_fma_f32 v%d, v%d, %s, %s' % (ET + r, ET + r, sC2, sC2))
        for r in range(8):
            o.append('v_rcp_f32 v%d, v%d' % (ET + r, ET + r))
            o.append('v_mul_f32 v%d, v%d, v%d' % (A + r, A + r, ET + r))
        return o

    def epu(t):
        A = ACC[accof[t]]
        o = []
        for p in range(4):
            for r in (2 * p, 2 * p + 1):
                o.append('v_mul_f32 v%d, v%d, v%d' % (A + 8 + r, A + 8 + r, A + r))
            o.append('v_cvt_pk_bf16_f32 v%d, v%d, v%d' % (HP + 4 * (p >> 1) + 2 * (t & 1) + (p & 1), A + 8 + 2 * p, A + 9 + 2 * p))
        return o

    def hstore(e):
        if e < 3:
            return [Ins('buffer_store_dwordx4 %s, v%d, %s, %s offen offset:%d sc1' % (vr(HP + 4 * rt, 4), vL16, WS, sHS, 1024 * rt), 'hs%d' % e) for rt in range(2)] + \
                   [Ins('s_add_u32 %s, %s, 8192' % (sHS, sHS))]
        return [Ins('buffer_store_dwordx2 %s, v%d, %s, %s offen offset:%d sc1' % (vr(HP + 4 * rt, 2), vS0, WS, sH6, 512 * rt), 'hs3') for rt in range(2)]

    def signal(e):
        return [Ins('v_mov_b32 v%d, 0x%x' % (vSg, 1 << (8 * e) if e < 3 else 1)),
                [('wait_vm', 'hs%d' % e), Ins('buffer_atomic_add v%d, v%d, %s, %s offen offset:%d sc1' % (vSg, vFl, WS, sHF if e < 3 else sZc, 0 if e < 3 else 4))]]

    hs = [[('v', r + 4 * i) for r in (ACC[3], ACC[0], ACC[1], 96) for i in range(4)],
          [('v', 112 + 4 * i) for i in range(16)],
          [('a', 4 * i) for i in range(16)],
          [('v', 96 + 4 * i) for i in range(6)]]
    wsl = [('a', 184 + 4 * i) for i in range(4)] + [('a', 64 + 4 * i) for i in range(4)] + [('v', 120 + 4 * i) for i in range(10)] + [('a', 80 + 4 * i) for i in range(12)]
    wb2 = [('a', 200 + 4 * i) for i in range(14)] + [('a', 160 + 4 * i) for i in range(6)]
    wd = lambda ps, i, n: ('a', 80 * ps + 20 * i + 4 * n) if ps < 2 else (wb2[5 * i + n] if ps == 2 else wsl[6 * n + i])
    R = lambda s, n=4, o=0: vr(s[1] + o, n, s[0])

    def hload(ps, p):
        o = []
        tag = 'h%d%d' % (ps, p)
        if ps < 3:
            for i in range(4):
                g = []
                if i % 2 == 0:
                    g += [Ins('v_add_u32 v%d, %s, v%d' % (vH, sHP[p], vL16)), Ins('s_add_u32 %s, %s, 4096' % (sHP[p], sHP[p]))]
                g.append(Ins('buffer_load_dwordx4 %s, v%d, %s, 0 offen offset:%d sc1' % (R(hs[ps][4 * p + i]), vH, WS, (i & 1) * 2048), tag))
                o.append(g)
        else:
            for i in range(12):
                g = [Ins('v_add_u32 v%d, 4096, v%d' % (vHs, vHs))] if i in (4, 8) else []
                g.append(Ins('buffer_load_dwordx2 %s, v%d, %s, 0 offen offset:%d sc1' % (R(hs[3][i >> 1], 2, 2 * (i & 1)), vHs, WS, (i % 4) * 1024), tag))
                o.append(g)
        return o

    sc = Sched()
    G = 560
    bar = {(110 if NG < 2 else 108): (None if NG < 2 else 'z9'), 230: 't3', 310: 't4', 390: 't5', 470: 't6'}
    for gi in range(1, len(groups)):
        n = gstart[gi]
        if n in bar:
            sc.add([('wait_both', bar[n]), 's_barrier'], n - 1, n - 1)
        elif n <= 60 * NG or n in (120, 180):
            sc.add([('wait_both', 'z%d' % groups[gi][0][1])], n - 1, n - 1)
        else:
            sc.add('s_waitcnt lgkmcnt(0)', n - 1, n - 1)
        for i, x in enumerate(grp_reads(gi)):
            sc.add(x, gstart[gi - 1], gstart[gi - 1] + 1 + (i * 3) // 4)

    def check(e, n0, n1):
        so = sHC if e < 3 else sC3
        if e >= 2 and O('sck', 1):
            name = 'h%d%s' % (e, ly)
            slow.append((None, so, 8 * e + 3 if e < 3 else 4, name))
            sc.add('s_load_dword %s, s[52:53], %s glc' % (sCK, so), n0, n0 + 2)
            sc.add(['s_waitcnt lgkmcnt(0)', 's_bitcmp1_b32 %s, %d' % (sCK, 8 * e + 3 if e < 3 else 4), 's_cbranch_scc0 %s_slow' % name, ('label', name + '_ok')], n1, n1 + 3)
            return n1 + 1
        sc.asap(check_issue(vC, so), n0, n0 + 3)
        ct = check_test(vC, so, 8 * e + 3 if e < 3 else 4, 'h%d%s' % (e, ly))
        sc.add([('wait_vm', 'ck'), ct[0]], n1, n1 + 2)
        sc.add(ct[1], n1 + 2, n1 + 4)
        return n1 + 3
    SUM, TMP, PK, vA0, vA2, vRs, vHs = 24, 44, 64, 8, 9, 16, 17
    vP, vPR = (3, 10, 11), 23
    sX1, sO, sC3, sRS = sT[0], sT[8], sT[9], sT[10]
    e0, e1, e2, e3 = O('e0', 290), O('e1', 376), O('e2', 497), G + O('e3', 13)
    ze = O('zend', 116)
    sc.paced(zq, 0, ze)
    q3l = [g for g in q if g[-1].tag == 't3']
    qd = [g for g in q if g[-1].tag != 't3']
    l1 = q3l + half_dma(0) + half_dma(1) + half_dma(2)
    r1 = O('r1', 42)
    sc.paced(l1 + take1(qd, max(0, (232 - ze) * 10 // r1 - len(l1))), ze, 232)
    l2 = half_dma(3) + half_dma(4) + half_dma(5)
    sc.paced(take1(l2, (e0 - 232) * 10 // r1), 232, e0)
    sts = dma(vS1, sT[19], 122880, 8, 't6')
    sts[0] = [Ins('s_mul_i32 %s, %s, 7680' % (sT[19], sW)), Ins('s_mul_i32 s3, %s, 276480' % sJJ), Ins('s_add_u32 s3, s3, 0x%x' % (WDP + 245760 - 122880)),
              Ins('v_add_u32 v%d, s3, v%d' % (vS1, vL16))] + sts[0]
    n2 = len(l2)
    l3 = l2 + sts + qd
    n3 = O('n3', 12)
    if n2:
        sc.paced(take1(l3, n2), e0 + 6, 312)
    sc.paced(take1(l3, n3 - n2), 312, e1)
    ct0 = O('ct0', 460)
    if l3:
        sc.paced(take1(l3, O('n4', 12)), e1 + 6, ct0)
    sc.asap(epg(0), 196, 260)
    sc.asap(epg(1), 206, e0 - 6)
    sc.asap(epu(0), 226, e0 - 8)
    sc.asap(epu(1), 236, e0 + 2)
    sc.asap(hstore(0), e0, e0 + 6)
    sc.asap(epg(2), 240, 340)
    sc.asap(epu(2), e0 + 2, e1 - 8)
    sc.asap(epg(3), 286, e1 - 6)
    sc.asap(epu(3), 326, e1 + 2)
    sc.asap(signal(0), O('sg0', 352), O('sg0', 352) + 3)
    sc.asap(hstore(1), e1, e1 + 6)
    sc.asap(epg(4), 366, 430)
    sc.asap(epu(4), 406, 440)
    n = check(0, O('ck0', 402), ct0)
    sc.asap(signal(1), O('sg1', 442), O('sg1', 442) + 4)
    sc.paced(hload(0, 0) + hload(0, 1) + l3, n, e2 - 4)
    sc.asap(epg(5), 446, 490)
    sc.asap(epu(5), 486, e2 + 2)
    n = check(1, e2 - 4, O('ct1', 542))
    sc.asap(hstore(2), e2, e2 + 6)
    sc.paced(hload(0, 2), e2 + 6, 528)
    sc.paced(hload(0, 3), 531, 544)
    sc.asap(epg(6), 526, G + 6)
    sc.add('v_add_u32 v%d, %s, v%d' % (vS0, sT6, vL8), 500, 550)
    sc.asap(epu(6), G + 6, e3 + 2)
    sc.asap(signal(2), O('sg2', 560), O('sg2', 560) + 3)
    sc.asap(hstore(3), e3, e3 + 4)
    sc.paced(hload(1, 0) + hload(1, 1) + hload(1, 2) + hload(1, 3), max(n, 545), G + O('h1e', 60))
    n = check(2, G + O('ck2', 44), G + O('ct2', 86))
    wl = []
    for i in range(54, 60):
        wl.append(([Ins('v_add_u32 v%d, 4096, v%d' % (vWa, vWa))] if i % 4 == 0 else []) +
                  [Ins('buffer_load_dwordx4 %s, v%d, %s, 0 offen offset:%d' % (R(wb2[i - 40]), vWa, WS, (i % 4) * 1024))])
    sc.paced(wl, G + O('h1e', 60), G + 81)
    sc.asap(signal(3), e3 + O('sg3', 62), e3 + O('sg3', 62) + 4)
    sc.paced(hload(2, 0) + hload(2, 1) + hload(2, 2) + hload(2, 3), max(n, G + 81), G + O('h2e', 150))
    srd_ = []
    for c in range(5):
        for i in range(6):
            off = 122880 + i * 5120 + c * 1024
            srd_.append('ds_read_b128 %s, v%d offset:%d' % (R(wd(3, i, c)), vLD[off >> 16], off & 0xffff))
    sc.paced(srd_[:18], G + 92, G + 157, G + 158)
    sc.paced(srd_[18:], G + 171, G + 215)
    n = check(3, G + O('ck3', 124), G + O('ct3', 166))
    sc.paced(hload(3, 3), n, n + 12)
    b = Asm()
    b.I('s_lshl_b32 %s, %s, 1' % (sC3, sG))
    b.I('s_add_u32 %s, %s, %s' % (sC3, sC3, sHB))
    b.I('s_lshl_b32 %s, %s, 2' % (sC3, sC3))
    b.I('s_add_u32 %s, %s, %s' % (sC3, sC3, sW))
    b.I('s_lshl_b32 %s, %s, 7' % (sRS, sC3))
    b.I('s_add_u32 %s, %s, 0x%x' % (sRS, sRS, LB + oRS))
    b.I('s_lshr_b32 %s, %s, 1' % (sC3, sC3))
    b.I('s_mul_i32 %s, %s, 40960' % (sX1, sC3))
    b.I('s_mul_i32 %s, %s, 110592' % (sO, sC3))
    b.I('s_lshl_b32 %s, %s, 9' % (sC3, sC3))
    b.I('s_add_u32 %s, %s, 0x%x' % (sC3, sC3, LB + oFL + 4))
    b.I('s_and_b32 %s, %s, 1' % (sT[3], sW))
    b.I('s_lshl_b32 %s, %s, 8' % (sT[3], sT[3]))
    b.I('s_add_u32 %s, %s, %s' % (sX1, sX1, sT[3]))
    b.I('s_add_u32 %s, %s, %s' % (sO, sO, sT[3]))
    b.I('s_add_u32 %s, %s, %s' % (sO, sO, sT[3]))
    b.I('s_add_u32 %s, %s, 0x%x' % (sO, sO, LB + oH + 98304))
    b.I('v_add_u32 v%d, %s, v%d' % (vHs, sO, vL8))
    b.I('s_mul_i32 %s, %s, 5120' % (sT[3], sJJ))
    b.I('s_add_u32 %s, %s, %s' % (sX1, sX1, sT[3]))
    b.I('s_add_u32 %s, %s, 0x%x' % (sX1, sX1, LB + oZ))
    b.I('v_and_b32 v%d, 15, v0' % ET)
    b.I('v_lshlrev_b32 v%d, 3, v%d' % (vRs, ET))
    b.I('v_lshrrev_b32 v%d, 5, v0' % (ET + 1))
    b.I('v_mul_u32_u24 v%d, 2560, v%d' % (ET + 1, ET + 1))
    b.I('v_lshl_add_u32 v%d, v%d, 4, v%d' % (ET, ET, ET + 1))
    b.I('v_bfe_u32 v%d, v0, 4, 1' % (ET + 1))
    b.I('v_lshl_add_u32 v%d, v%d, 3, v%d' % (vA2, ET + 1, ET))
    b.I('v_mul_u32_u24 v%d, 1536, v%d' % (ET + 1, ET + 1))
    b.I('v_add_u32 v%d, v%d, v%d' % (vA0, ET, ET + 1))
    for p in range(4):
        b.I('s_add_u32 %s, %s, %d' % (sT[3], sW, p + 1))
        b.I('s_and_b32 %s, %s, 3' % (sT[3], sT[3]))
        b.I('s_mul_i32 %s, %s, 15360' % (sT[3], sT[3]))
        b.I('s_add_u32 %s, %s, %d' % (sT[3], sT[3], L_P + (p % 3) * 5120))
        b.I('v_add_u32 v%d, %s, v%d' % (vP[p] if p < 3 else vPR, sT[3], vL16))
    vOW, vOR, vOG = 18, (19, 20, 21), (ET + 3, ET + 4, ET + 5)
    if layer == 1:
        row_nat_soff(b, sO, sT[3])
        b.I('s_mul_i32 %s, %s, 160' % (sT[3], sJJ))
        b.I('s_add_u32 %s, %s, %s' % (sO, sO, sT[3]))
        b.I('s_mul_i32 %s, %s, 2816' % (sT[3], sW))
        b.I('s_add_u32 %s, %s, 61440' % (sT[3], sT[3]))
        b.I('v_and_b32 v%d, 15, v0' % ET)
        b.I('v_mul_u32_u24 v%d, 176, v%d' % (vOW, ET))
        b.I('v_lshrrev_b32 v%d, 4, v0' % ET)
        b.I('v_mad_u32_u24 v%d, v%d, 40, v%d' % (vOW, ET, vOW))
        b.I('v_add_u32 v%d, %s, v%d' % (vOW, sT[3], vOW))
        for it in range(3):
            b.I('v_add_u32 v%d, %d, v0' % (ET, 64 * it))
            b.I('v_mul_u32_u24 v%d, 205, v%d' % (ET + 1, ET))
            b.I('v_lshrrev_b32 v%d, 11, v%d' % (ET + 1, ET + 1))
            b.I('v_add_u32 v%d, v%d, v%d' % (ET + 2, ET, ET + 1))
            b.I('v_lshl_add_u32 v%d, v%d, 4, %s' % (vOR[it], ET + 2, sT[3]))
            b.I('v_mul_u32_u24 v%d, %d, v%d' % (ET + 1, 81920 - 160, ET + 1))
            b.I('v_lshl_add_u32 v%d, v%d, 4, v%d' % (vOG[it], ET, ET + 1))
        b.I('v_lshrrev_b32 v%d, 5, v0' % ET)
        b.I('v_lshl_add_u32 v%d, v%d, 31, v%d' % (vOG[2], ET, vOG[2]))
    else:
        sS = sT[11]
        set_wave_index(b, sS)
        b.I('s_mul_i32 %s, %s, 20480' % (sO, sS))
        b.I('s_add_u32 %s, %s, 0x%x' % (sO, sO, LN + oXA))
        b.I('s_lshl_b32 %s, %s, 10' % (sS, sS))
        b.I('s_add_u32 %s, %s, 0x%x' % (sS, sS, LN + oST))
        b.I('s_lshl_b32 %s, %s, 7' % (sT[12], sJJ))
        b.I('s_add_u32 %s, %s, %s' % (sT[12], sT[12], sS))
        b.I('v_lshrrev_b32 v%d, 4, v0' % ET)
        b.I('v_lshl_add_u32 v21, v%d, 8, v%d' % (ET, vRs))
        b.I('v_min_u32 v%d, 1, v%d' % (ET, ET))
        b.I('v_lshl_add_u32 v20, v%d, 31, v%d' % (ET, vL8))
        tile_xr_addr(b, 18, 19, ET, sT[3])
    sc.asap(b.items, e3 + 8, G + 98)
    sc.paced([Ins('buffer_load_dwordx2 %s, v%d, %s, %s offen sc1' % (vr(PK + 10, 2), vRs, WS, sRS), 'x1'),
              Ins('buffer_load_dwordx4 %s, v%d, %s, %s offen sc1' % (vr(PK, 4), vA0, WS, sX1), 'x1'),
              Ins('buffer_load_dwordx4 %s, v%d, %s, %s offen offset:512 sc1' % (vr(PK + 4, 4), vA0, WS, sX1), 'x1'),
              Ins('buffer_load_dwordx2 %s, v%d, %s, %s offen offset:1024 sc1' % (vr(PK + 8, 2), vA2, WS, sX1), 'x1')], G + O('h2e', 150), G + O('h2e', 150) + 8)
    sc.add([('wait_vm', 'x1')], G + 200, G + 200)
    un = unpack(range(PK, PK + 10), lambda i: SUM + i)
    sc.asap([x for i in range(20) for x in (un[i], 'v_fma_f32 v%d, v%d, v%d, v%d' % (SUM + i, SUM + i, PK + 11, PK + 10))], G + 201, 10 ** 5)
    A2 = lambda p: 176 + 20 * p
    for p in range(3):
        for n in range(5):
            m = G + 170 + 20 * p + 4 * n
            sc.add('ds_write_b128 v%d, %s offset:%d' % (vP[p], vr(A2(p) + 4 * n, 4), 1024 * n), m, m + 1)
    nb = G + O('rb', 232)
    sc.add(['s_waitcnt lgkmcnt(0)', 's_barrier'], nb, nb)
    rds = lambda p, r: ['ds_read_b128 %s, v%d offset:%d' % (vr(r + 4 * n, 4), vPR, p * 5120 + n * 1024) for n in range(5)]
    add = lambda r: ['v_pk_add_f32 %s, %s, %s' % (vr(SUM + 2 * i, 2), vr(SUM + 2 * i, 2), vr(r + 2 * i, 2)) for i in range(10)]
    sc.asap(rds(0, A2(0)) + rds(1, A2(1)) + rds(2, A2(2)), nb + 1, nb + 9)
    sc.add('s_waitcnt lgkmcnt(0)', nb + 16, nb + 16)
    sc.asap(['v_add_f32 v%d, v%d, v%d' % (A2(0) + i, A2(0) + i, A2(1) + i) for i in range(20)], nb + 17, 10 ** 6)
    nfin = O('nfin', 20)
    sc.asap(['v_add_f32 v%d, v%d, v%d' % (SUM + i, SUM + i, A2(2) + i) for i in range(nfin)], nb + 17, 10 ** 6 + 1)

    mf = []
    for gi, gr in enumerate(groups):
        for rt in range(2):
            for i, (t, ks, m) in enumerate(gr):
                A = vr(ACC[accof[t]] + 8 * m + 4 * rt, 4)
                mf.append('%s %s, %s, %s, %s' % (M16, A, wbuf(gi, i), vr(Z + 8 * ks + 4 * rt, 4), A if ks else '0'))
    for ps, p in [(ps, p) for ps in range(3) for p in range(4)] + [(3, 3)]:
        sc.add([('wait_vm', 'h%d%d' % (ps, p))], len(mf) - 1, len(mf) - 1)
        for c in range(5):
            for i in range(4 if ps < 3 else 6):
                A = vr(A2(p) + 4 * c, 4)
                mf.append('%s %s, %s, %s, %s' % (M16, A, R(wd(ps, i, c)), R(hs[ps][4 * p + i if ps < 3 else i]), A if (ps or i) else '0'))

    def hook(n):
        if n in range(opt('p0', 0), opt('p0', 0) + 15 * opt('dp', 10), opt('dp', 10)):
            st(a, 'X')
        for s, pts in (('A', (0, 559)), ('C', (0, 240, 400, 559)), ('D', (559, 639, 719, 799)), ('E', (0, 60, 120, 180, 240, 320, 400)), ('F', (400, 480, 559, 639, 719, 799))):
            if n in pts:
                st(a, s)
    r = sc.run(a, mf, hook)
    sys.stderr.write('sched overflow slots %d, left %d\n' % r)
    st(a, 'ACDFP')
    a.ext(add(A2(2))[nfin // 2:] + add(A2(0)) + add(A2(3)))
    if layer == 1:
        for nn in range(5):
            a.I('v_cvt_pk_bf16_f32 v%d, v%d, v%d' % (PK + 2 * nn, SUM + 4 * nn, SUM + 4 * nn + 1))
            a.I('v_cvt_pk_bf16_f32 v%d, v%d, v%d' % (PK + 2 * nn + 1, SUM + 4 * nn + 2, SUM + 4 * nn + 3))
            a.I('ds_write_b64 v%d, %s offset:%d' % (vOW, vr(PK + 2 * nn, 2), 8 * nn))
        for it in range(3):
            a.I('ds_read_b128 %s, v%d' % (vr(TMP + 4 * it, 4), vOR[it]))
        for it in range(3):
            a.I('buffer_store_dwordx4 %s, v%d, %s, %s offen%s' % (vr(TMP + 4 * it, 4), vOG[it], SA, sO, ' sc1' if opt('osc', 1) else ''))
        return None

    T = TMP
    a.I('v_pk_add_f32 %s, %s, %s' % (vr(T, 2), vr(SUM, 2), vr(SUM + 2, 2)))
    a.I('v_pk_mul_f32 %s, %s, %s' % (vr(T + 2, 2), vr(SUM, 2), vr(SUM, 2)))
    a.I('v_pk_fma_f32 %s, %s, %s, %s' % (vr(T + 2, 2), vr(SUM + 2, 2), vr(SUM + 2, 2), vr(T + 2, 2)))
    for e in range(4, 20, 2):
        a.I('v_pk_add_f32 %s, %s, %s' % (vr(T, 2), vr(T, 2), vr(SUM + e, 2)))
        a.I('v_pk_fma_f32 %s, %s, %s, %s' % (vr(T + 2, 2), vr(SUM + e, 2), vr(SUM + e, 2), vr(T + 2, 2)))
    a.I('v_add_f32 v%d, v%d, v%d' % (T, T, T + 1))
    a.I('v_add_f32 v%d, v%d, v%d' % (T + 1, T + 2, T + 3))
    pk = ['v_cvt_pk_bf16_f32 v%d, v%d, v%d' % (PK + i, SUM + 2 * i, SUM + 2 * i + 1) for i in range(10)]
    qr = lst(quad_reduce, T, T + 1, T + 2)
    a.ext(qr[:2] + pk[:1] + qr[2:8] + pk[1:2] + qr[8:])
    a.I('v_min_u32 v%d, -2, v%d' % (T, T))
    a.I('v_min_u32 v%d, -2, v%d' % (T + 1, T + 1))
    a.I('buffer_store_dwordx2 %s, v20, %s, %s offen sc1' % (vr(T, 2), WS, sT[12]), tag='ss')
    q = []
    if PERS:
        stream_bases(a)
        q = wda_loads()
    at = AT(96, 61440, 139264)
    b = Asm()
    b.ext(pk[2:])
    b.I('s_mov_b32 %s, 0x%x' % (sLN, LN))
    at.setup(b, sLN, sT[5])
    qa = take1(q, opt('b1', 8))
    a.ext(timed(b.items, qa, 64))
    a.ext(take(qa, 99))
    a.wait_vm('ss')
    st(a, 'D')
    pl = ['buffer_load_dwordx2 %s, v21, %s, %s offen sc1' % (vr(T, 2), WS, sS), 'buffer_load_dwordx2 %s, v21, %s, %s offen offset:128 sc1' % (vr(T + 2, 2), WS, sS)]
    tst = ['v_max3_u32 v%d, v%d, v%d, v%d' % (T + 5, T, T + 1, T + 2), 'v_max_u32 v%d, v%d, v%d' % (T + 5, T + 5, T + 3), 'v_cmp_eq_u32 vcc, -1, v%d' % (T + 5), 's_nop 4']
    a.ext(pl)
    xa_store(a, PK, 18, 19, sO, T + 8)
    a.ext(take(q, opt('b2', 4)))
    a.ext(tst)
    a.I('s_cbranch_vccnz st_slow')
    a.label('st_ok')
    slow2.append((pl, tst))
    b = Asm()
    b.I('v_pk_add_f32 %s, %s, %s' % (vr(T, 2), vr(T, 2), vr(T + 2, 2)))
    quad_reduce(b, T, T + 1, T + 2)
    at.main(b, SUM, T, T + 1, 176, sT[5], 'gs')
    qa = take1(q, opt('b3', 4))
    a.ext(timed(b.items, qa, 100))
    return q


slow2 = []


def take1(q, n):
    r = q[:n]
    del q[:n]
    return r


def emit_slow2(a):
    for pl, tst in slow2:
        a.label('st_slow')
        a.reset()
        a.I('s_mov_b32 %s, 0' % sSP)
        a.label('st_spin')
        if STAMP:
            a.I('s_add_u32 s97, s97, 0x%x' % (1 << 25))
        a.ext(pl)
        a.I('s_add_u32 %s, %s, 1' % (sSP, sSP))
        a.I('s_cmp_ge_u32 %s, %d' % (sSP, SPIN))
        a.I('s_waitcnt vmcnt(0)')
        a.I('s_cbranch_scc1 st_ok')
        a.ext(tst)
        a.I('s_cbranch_vccnz st_spin')
        a.I('s_branch st_ok')


def add_pads(txt):
    import subprocess, re, tempfile, os
    d = tempfile.mkdtemp()
    tmp = txt.replace('ffn_body:', 'ffn_body:\n' + ''.join('ffn_pad%d:\n' % i for i in range(4)))
    open(d + '/a.s', 'w').write(tmp)
    subprocess.check_call(['clang', '-x', 'assembler', '-target', 'amdgcn-amd-amdhsa', '-mcpu=gfx950', '-c', d + '/a.s', '-o', d + '/a.o'])
    dis = subprocess.check_output(['llvm-objdump', '-d', '--mcpu=gfx950', d + '/a.o'], text=True)
    sym = subprocess.check_output(['llvm-objdump', '-t', d + '/a.o'], text=True)
    base = int(re.search(r'^([0-9a-f]+) .* ffn_body$', sym, re.M).group(1), 16)
    addrs = [x for x in (int(m, 16) for m in re.findall(r'// ?([0-9A-F]{12}):', dis)) if x >= base]
    lines = txt.split('\n')
    i0 = lines.index('ffn_body:')
    i1 = lines.index('ffn_end:')
    idx = [i for i in range(i0 + 1, i1 + 2) if lines[i].startswith('    ')]
    assert len(idx) == len(addrs), (len(idx), len(addrs))
    ins, page, k = {}, 0, 0
    while True:
        cand = [j for j in range(len(idx)) if page * 4096 <= addrs[j] - base + 8 * page <= page * 4096 + 52]
        if not cand:
            break
        good = [j for j in cand if j and 'v_mfma' in lines[idx[j - 1]] and 'v_mfma' in lines[idx[j]]] or \
               [j for j in cand if j and 'v_mfma' in lines[idx[j - 1]] and not lines[idx[j]].startswith('    s_')] or cand
        ins[idx[good[0]]] = page
        page += 1
    out = []
    for i, l in enumerate(lines):
        if i in ins:
            p = ins[i]
            nxt = 's_branch ffn_pad%d' % (p + 4) if p + 4 < page else ('s_branch ffn_padE' if p == page - 1 - (page - 1) % 4 - 1 or p == page - 1 and p % 4 == 3 else 's_endpgm')
            out += ['    s_branch .Lps%d' % p, 'ffn_pad%d:' % p, '    ' + nxt, '.Lps%d:' % p]
        out.append(l)
    sys.stderr.write('pages %d\n' % page)
    return '\n'.join(out)


def main():
    a = Asm()
    launches = [('prep_kernel', N_PREP, PREP_LDS), ('ffn0_kernel', 256, 163840)] + ([] if PERS else [('ffn1_kernel', 256, 163840)])
    head = ''.join('; @launch kernel=%s grid=(%d,1,1) block=(256,1,1) lds=%d\n' % l for l in launches)
    head += '.amdgcn_target "amdgcn-amd-amdhsa--gfx950"\n.text\n'
    k_prep(a, 'ffn_c0', 'ffn_end')
    a.raw('ffn_c0:')
    st = Stamps()
    q = None
    for layer in range(2):
        if layer == 0 or not PERS:
            st = Stamps()
            entry(a, 'ffn%d_kernel' % layer, 256, layer, 1 + layer, [(8, 72, XB)], 'ffn_end')
            if layer == 0:
                a.raw('    s_branch ffn_body\nffn_padE:\n    s_endpgm\n.p2align 12\nffn_body:')
            decode(a)
        st.on = (not PERS) or STAMP == 'P' or opt('stl', 0) == layer
        qw, q3, q = kb(a, st, layer, q, PERS and layer == 1)
        q = gemms(a, st, layer, qw, q3, q)
        if layer == 1 or not PERS:
            st.flush(a)
            a.I('s_endpgm')
    emit_slow(a)
    emit_slow2(a)
    emit_polls(a)
    a.label('ffn_end')
    a.I('s_endpgm')
    tail = '.section .rodata,"a"\n'
    for n, _, _ in launches:
        tail += '.p2align 6\n' + (kdesc(n, 128, 128) if n == 'prep_kernel' else kdesc(n, 512, 256))
    sys.stdout.write(add_pads(head + a.finalize() + tail))


if __name__ == '__main__':
    main()
```

```python
import struct, sys
from asmlib import Asm, Ins, vr, weave

STAMP = None
for _a in sys.argv:
    if _a.startswith('--stamp'):
        STAMP = _a.split('=')[1] if '=' in _a else 'A'


def opt(name, default):
    for x in sys.argv:
        if x.startswith('--%s=' % name):
            return type(default)(x.split('=')[1])
    return default


W1P, WDP = 0x0, 0x440000
LB0, LBS = 0x800000, 0x1400000
oG, oXA, oZ, oX1, oH, oST, oFL = 0x0, 0x280000, 0x500000, 0x780000, 0xA00000, 0x1100000, 0x1180000
oRS = oX1
STAMPS = 0x4000000
WS_BYTES = 0x10000000
XB = 2048 * 640 * 2
W1B = 640 * 1728 * 2
OOB = 0x80000000
LOG2E = 1.4426950408889634

WS, SA, SB = 's[4:7]', 's[8:11]', 's[12:15]'
sW, sG, sMU, sHB, sJJ, sLB, sLN, sLAST = 's16', 's17', 's18', 's19', 's20', 's21', 's22', 's23'
sT = ['s%d' % i for i in range(24, 50)]


def fl(x):
    return '0x%08x' % struct.unpack('<I', struct.pack('<f', x))[0]


def srd(a, base, lo, size):
    a.I('s_mov_b32 s%d, s%d' % (base, lo))
    a.I('s_and_b32 s%d, s%d, 0xffff' % (base + 1, lo + 1))
    a.I('s_mov_b32 s%d, 0x%x' % (base + 2, size))
    a.I('s_mov_b32 s%d, 0x20000' % (base + 3))


class Stamps:
    def __init__(self):
        self.n = 0

    on = True

    def __call__(self, a, sets='A'):
        if not STAMP or STAMP not in sets or not self.on:
            return
        i = self.n
        self.n += 1
        if STAMP == 'X':
            assert i < 16
            a.I('s_memtime s[%d:%d]' % (64 + 2 * i, 65 + 2 * i))
            return
        assert i < 8
        a.I('s_memrealtime s[%d:%d]' % (64 + 4 * i, 65 + 4 * i))
        a.I('s_memtime s[%d:%d]' % (66 + 4 * i, 67 + 4 * i))

    def flush(self, a):
        if not STAMP:
            return
        n0 = self.n
        self.on = True
        a.I('s_waitcnt vmcnt(0)')
        self(a, STAMP)
        a.I('s_lshl_b32 s50, s2, 2')
        a.I('s_add_u32 s50, s50, %s' % sW)
        a.I('s_lshl_b32 s50, s50, 7')
        a.I('s_add_u32 s50, s50, s51')
        a.I('s_add_u32 s50, s50, 0x%x' % STAMPS)
        a.I('s_waitcnt lgkmcnt(0)')
        a.I('v_mov_b32 v1, 0')
        for i in range(8 if STAMP == 'X' else self.n):
            a.I('v_mov_b32 v2, s%d' % (64 + 4 * i))
            a.I('v_mov_b32 v3, s%d' % (66 + 4 * i))
            a.I('buffer_store_dwordx2 v[2:3], v1, %s, s50 offen offset:%d' % (WS, 8 * i))
        a.I('v_mov_b32 v2, s96\nv_mov_b32 v3, s97')
        a.I('buffer_store_dwordx2 v[2:3], v1, %s, s50 offen offset:64' % WS)
        self.n = n0


def entry(a, name, nwg, layer, launch, ptrs, end, first=None):
    a.raw('.globl %s\n.p2align 8\n.type %s,@function' % (name, name))
    a.label(name)
    a.reset()
    a.I('s_cmp_ge_u32 s2, %d' % nwg)
    a.I('s_cbranch_scc1 %s' % end)
    a.I('s_load_dwordx2 s[52:53], s[0:1], 88')
    for i, (b, off, sz) in enumerate(ptrs):
        a.I('s_load_dwordx2 s[%d:%d], s[0:1], %d' % (54 + 2 * i, 55 + 2 * i, off))
    if first:
        first(a)
    a.I('s_mov_b32 %s, 0x%x' % (sLB, LB0 + layer * LBS))
    a.I('s_mov_b32 %s, %d' % (sLAST, layer))
    if STAMP:
        a.I('s_mov_b32 s51, 0x%x' % (launch * 0x80000))
        a.I('s_mov_b32 s96, 0\ns_mov_b32 s97, 0')


def decode(a, lanes=True):
    if lanes:
        a.I('v_lshrrev_b32 v1, 6, v0')
        a.I('v_and_b32 v0, 63, v0')
        a.I('v_readfirstlane_b32 %s, v1' % sW)
    a.I('s_and_b32 %s, s2, 1' % sG)
    a.I('s_lshl_b32 %s, %s, 2' % (sG, sG))
    a.I('s_bfe_u32 s3, s2, 0x20004')
    a.I('s_add_u32 %s, %s, s3' % (sG, sG))
    a.I('s_add_u32 %s, %s, 1' % (sG, sG))
    a.I('s_sub_u32 s3, 16, %s' % sG)
    a.I('s_cmp_eq_u32 s3, 8')
    a.I('s_cselect_b32 s3, 0, s3')
    a.I('s_bitcmp1_b32 s2, 3')
    a.I('s_cselect_b32 %s, s3, %s' % (sG, sG))
    a.I('s_bfe_u32 %s, s2, 0x20001' % sMU)
    a.I('s_lshl_b32 %s, %s, 2' % (sMU, sMU))
    a.I('s_bfe_u32 s3, s2, 0x20006')
    a.I('s_or_b32 %s, %s, s3' % (sMU, sMU))
    a.I('s_bfe_u32 %s, %s, 0x10002' % (sHB, sMU))
    a.I('s_lshr_b32 %s, %s, 3' % (sJJ, sMU))
    a.I('s_lshl_b32 %s, %s, 2' % (sJJ, sJJ))
    a.I('s_or_b32 %s, %s, s3' % (sJJ, sJJ))


def srds(a, ptrs):
    a.I('s_waitcnt lgkmcnt(0)')
    srd(a, 4, 52, WS_BYTES)
    for i, (b, off, sz) in enumerate(ptrs):
        srd(a, b, 54 + 2 * i, sz)


def kdesc(name, vgpr, acc):
    return '''.amdhsa_kernel %s
  .amdhsa_next_free_vgpr %d
  .amdhsa_next_free_sgpr %d
  .amdhsa_accum_offset %d
  .amdhsa_group_segment_fixed_size 0
  .amdhsa_kernarg_size 96
  .amdhsa_user_sgpr_count 2
  .amdhsa_user_sgpr_kernarg_segment_ptr 1
  .amdhsa_system_sgpr_workgroup_id_x 1
  .amdhsa_float_denorm_mode_32 3
.end_amdhsa_kernel
''' % (name, vgpr, 100 if STAMP else 64, acc)


def unpack(srcs, dst):
    o = []
    for i, s in enumerate(srcs):
        o.append('v_lshlrev_b32 v%d, 16, v%d' % (dst(2 * i), s))
        o.append('v_and_b32 v%d, 0xffff0000, v%d' % (dst(2 * i + 1), s))
    return o


def xr_addr(a, vA0, vA2, vm, vi, t):
    a.I('v_lshrrev_b32 v%d, 1, v%d' % (t, vm))
    a.I('v_mul_u32_u24 v%d, 640, v%d' % (t, t))
    a.I('v_and_b32 v%d, 1, v%d' % (t + 1, vm))
    a.I('v_and_b32 v%d, 7, v%d' % (vA0, vm))
    a.I('v_xor_b32 v%d, v%d, v%d' % (vA0, vA0, vi))
    a.I('v_lshl_add_u32 v%d, v%d, 4, v%d' % (vA0, vA0, t))
    a.I('v_and_b32 v%d, 6, v%d' % (vA2, vm))
    a.I('v_xor_b32 v%d, v%d, v%d' % (vA2, vA2, vi))
    a.I('v_lshl_add_u32 v%d, v%d, 4, v%d' % (vA2, vA2, t))
    a.I('v_lshl_add_u32 v%d, v%d, 3, v%d' % (vA2, t + 1, vA2))
    a.I('v_add_u32 v%d, 256, v%d' % (vA2, vA2))
    a.I('v_mul_u32_u24 v%d, 384, v%d' % (t + 1, t + 1))
    a.I('v_add_u32 v%d, v%d, v%d' % (vA0, vA0, t + 1))


def tile_xr_addr(a, vA0, vA2, t, st='s3'):
    a.I('v_lshrrev_b32 v%d, 4, v0' % (t + 2))
    a.I('s_lshl_b32 %s, %s, 2' % (st, sJJ))
    a.I('v_add_u32 v%d, %s, v%d' % (t + 2, st, t + 2))
    a.I('v_and_b32 v%d, 7, v0' % (t + 3))
    xr_addr(a, vA0, vA2, t + 2, t + 3, t)
    a.I('v_bfe_u32 v%d, v0, 3, 1' % t)
    a.I('v_mul_u32_u24 v%d, 10240, v%d' % (t, t))
    a.I('v_add_u32 v%d, v%d, v%d' % (vA0, vA0, t))
    a.I('v_add_u32 v%d, v%d, v%d' % (vA2, vA2, t))


def set_wave_index(a, sd):
    a.I('s_lshl_b32 %s, %s, 1' % (sd, sG))
    a.I('s_add_u32 %s, %s, %s' % (sd, sd, sHB))
    a.I('s_lshl_b32 %s, %s, 2' % (sd, sd))
    a.I('s_add_u32 %s, %s, %s' % (sd, sd, sW))


def tile_blk_soff(a, sd, sbase, off):
    set_wave_index(a, sd)
    a.I('s_mul_i32 %s, %s, 20480' % (sd, sd))
    a.I('s_add_u32 %s, %s, %s' % (sd, sd, sbase))
    a.I('s_add_u32 %s, %s, 0x%x' % (sd, sd, off))


def stats_soff(a, sd, sbase):
    set_wave_index(a, sd)
    a.I('s_lshl_b32 %s, %s, 10' % (sd, sd))
    a.I('s_add_u32 %s, %s, %s' % (sd, sd, sbase))
    a.I('s_add_u32 %s, %s, 0x%x' % (sd, sd, oST))


def row_nat_soff(a, sd, st='s3'):
    a.I('s_lshl_b32 %s, %s, 4' % (sd, sHB))
    a.I('s_add_u32 %s, %s, %s' % (sd, sd, sG))
    a.I('s_lshr_b32 %s, %s, 1' % (st, sW))
    a.I('s_lshl_b32 %s, %s, 5' % (st, st))
    a.I('s_add_u32 %s, %s, %s' % (sd, sd, st))
    a.I('s_and_b32 %s, %s, 1' % (st, sW))
    a.I('s_lshl_b32 %s, %s, 10' % (st, st))
    a.I('s_add_u32 %s, %s, %s' % (sd, sd, st))
    a.I('s_mul_i32 %s, %s, 1280' % (sd, sd))


def ln_coef(a, vS, vQ, vR, vN, t, scale=None):
    a.I('v_mul_f32 v%d, %s, v%d' % (vN, fl(-1.0 / 640), vS))
    a.I('v_mul_f32 v%d, %s, v%d' % (vR, fl(1.0 / 640), vQ))
    a.I('v_fma_f32 v%d, -v%d, v%d, v%d' % (vR, vN, vN, vR))
    a.I('v_max_f32 v%d, 0, v%d' % (vR, vR))
    a.I('v_add_f32 v%d, %s, v%d' % (vR, fl(1e-5), vR))
    a.I('v_rsq_f32 v%d, v%d' % (vR, vR))
    if scale:
        a.I('v_mul_f32 v%d, %s, v%d' % (vR, fl(scale), vR))
    a.I('v_mul_f32 v%d, v%d, v%d' % (vN, vN, vR))


def quad_reduce(a, r0, r1, t):
    for op in ('v_permlane16_swap_b32', 'v_permlane32_swap_b32'):
        a.I('v_mov_b32 v%d, v%d' % (t, r0))
        a.I('v_mov_b32 v%d, v%d' % (t + 1, r1))
        a.I('%s v%d, v%d' % (op, r0, t))
        a.I('%s v%d, v%d' % (op, r1, t + 1))
        a.I('v_add_f32 v%d, v%d, v%d' % (r0, r0, t))
        a.I('v_add_f32 v%d, v%d, v%d' % (r1, r1, t + 1))


def xa_store(a, PK, vA0, vA2, so, t):
    a.I('buffer_store_dwordx4 %s, v%d, %s, %s offen sc1' % (vr(PK, 4), vA0, WS, so))
    a.I('buffer_store_dwordx4 %s, v%d, %s, %s offen offset:128 sc1' % (vr(PK + 4, 4), vA0, WS, so))
    a.I('v_mov_b32 v%d, v%d' % (t, PK + 8))
    a.I('v_mov_b32 v%d, v%d' % (t + 1, PK + 9))
    a.I('v_mov_b32 v%d, v%d' % (t + 2, PK + 8))
    a.I('v_mov_b32 v%d, v%d' % (t + 3, PK + 9))
    a.I('v_bfe_u32 v%d, v0, 4, 1' % (t + 4))
    a.I('v_lshl_add_u32 v%d, v%d, 31, v%d' % (t + 4, t + 4, vA2))
    a.I('v_permlane16_swap_b32 v%d, v%d' % (t, t + 2))
    a.I('v_permlane16_swap_b32 v%d, v%d' % (t + 1, t + 3))
    a.I('buffer_store_dwordx4 %s, v%d, %s, %s offen sc1' % (vr(t, 4), t + 4, WS, so))


class AT:
    def __init__(self, base, lds_z, lds_b):
        self.F = base
        self.ZW, self.ZR, self.BW = base + 8, base + 9, base + 10
        self.BR = (base + 11, base + 12, base + 13)
        self.GA = (base + 14, base + 15, base + 16)
        self.T = base + 17
        self.lds_z, self.lds_b = lds_z, lds_b

    def setup(self, a, sOut, sGo):
        T = self.T
        a.I('v_and_b32 v%d, 15, v0' % T)
        a.I('v_lshrrev_b32 v%d, 1, v%d' % (T + 1, T))
        a.I('v_mul_u32_u24 v%d, 336, v%d' % (self.BW, T + 1))
        a.I('s_lshl_b32 s3, %s, 3' % sW)
        a.I('v_add_u32 v%d, s3, v%d' % (T + 1, T + 1))
        a.I('v_and_b32 v%d, 1, v0' % (T + 2))
        a.I('v_lshl_add_u32 v%d, v%d, 3, v%d' % (self.BW, T + 2, self.BW))
        a.I('v_cvt_f32_u32 v%d, v%d' % (T + 3, T + 2))
        a.I('v_mul_f32 v%d, %s, v%d' % (T + 3, fl(0.25), T + 3))
        a.I('v_cmp_eq_u32 vcc, 0, v%d' % (T + 1))
        a.I('v_lshlrev_b32 v%d, 5, v%d' % (T + 2, T + 2))
        a.I('v_lshrrev_b32 v%d, 5, v0' % (T + 4))
        a.I('v_cndmask_b32 v%d, v%d, v%d, vcc' % (T + 1, T + 1, T + 2))
        a.I('v_cndmask_b32_e64 v%d, v%d, 0, vcc' % (T + 3, T + 3))
        a.I('v_cvt_f32_u32 v%d, v%d' % (T + 1, T + 1))
        a.I('v_mul_f32 v%d, %s, v%d' % (T + 1, fl(1.0 / 64), T + 1))
        a.I('v_bfe_u32 v%d, v0, 4, 1' % (T + 2))
        a.I('v_lshlrev_b32 v%d, 5, v%d' % (T + 2, T + 2))
        a.I('v_lshl_add_u32 v%d, v%d, 1, v%d' % (T + 2, T + 4, T + 2))
        a.I('v_cvt_f32_u32 v%d, v%d' % (T + 2, T + 2))
        a.I('v_fma_f32 v%d, v%d, v%d, v%d' % (T + 3, T + 1, T + 2, T + 3))
        prev = None
        for ks in range(2):
            for p in range(4):
                d = self.F + 4 * ks + p
                tt = T + 2 + 2 * (p & 1)
                k = lambda j: 8 * (j & 3) + 4 * (j >> 2) + ks
                a.I('v_fmamk_f32 v%d, v%d, %s, v%d' % (d, T + 1, fl(k(2 * p)), T + 3))
                a.I('v_fmamk_f32 v%d, v%d, %s, v%d' % (tt, T + 1, fl(k(2 * p + 1)), T + 3))
                if prev:
                    a.I(prev)
                a.I('v_cos_f32 v%d, v%d' % (d, d))
                a.I('v_cos_f32 v%d, v%d' % (tt, tt))
                prev = 'v_cvt_pk_bf16_f32 v%d, v%d, v%d' % (d, d, tt)
        a.I('s_lshl_b32 s3, %s, 4' % sW)
        a.I(prev)
        a.I('v_add_u32 v%d, s3, v%d' % (T, T))
        a.I('v_mul_u32_u24 v%d, 168, v%d' % (self.ZW, T))
        a.I('v_lshrrev_b32 v%d, 4, v0' % T)
        a.I('v_mad_u32_u24 v%d, v%d, 40, v%d' % (self.ZW, T, self.ZW))
        a.I('v_and_b32 v%d, 28, v0' % (T + 1))
        a.I('v_lshrrev_b32 v%d, 5, v0' % (T + 2))
        a.I('v_add_u32 v%d, v%d, v%d' % (T + 1, T + 1, T + 2))
        a.I('v_mul_u32_u24 v%d, 168, v%d' % (T + 1, T + 1))
        a.I('v_and_b32 v%d, 3, v0' % (T + 2))
        a.I('v_lshl_add_u32 v%d, v%d, 3, v%d' % (self.ZR, T + 2, T + 1))
        if self.lds_z:
            a.I('v_add_u32 v%d, 0x%x, v%d' % (self.ZW, self.lds_z, self.ZW))
            a.I('v_add_u32 v%d, 0x%x, v%d' % (self.ZR, self.lds_z, self.ZR))
        a.I('s_and_b32 s3, %s, 3' % sG)
        a.I('v_xor_b32 v%d, s3, v%d' % (T, T))
        a.I('v_lshl_add_u32 v%d, v%d, 4, v%d' % (self.BW, T, self.BW))
        a.I('s_mul_i32 s3, %s, 2688' % sW)
        a.I('s_add_u32 s3, s3, 0x%x' % self.lds_b)
        a.I('v_add_u32 v%d, s3, v%d' % (self.BW, self.BW))
        a.I('s_mul_i32 %s, %s, 5' % (sGo, sJJ))
        for it in range(3):
            a.I('v_add_u32 v%d, %d, v0' % (T, 64 * it))
            a.I('v_mul_u32_u24 v%d, 205, v%d' % (T + 1, T))
            a.I('v_lshrrev_b32 v%d, 12, v%d' % (T + 1, T + 1))
            a.I('v_add_u32 v%d, v%d, v%d' % (T + 2, T, T + 1))
            a.I('v_lshl_add_u32 v%d, v%d, 4, s3' % (self.BR[it], T + 2))
            a.I('v_mul_u32_u24 v%d, 5, v%d' % (T + 2, T + 1))
            a.I('v_lshrrev_b32 v%d, 2, v%d' % (T + 3, T))
            a.I('v_sub_u32 v%d, v%d, v%d' % (T + 2, T + 3, T + 2))
            a.I('v_add_u32 v%d, %s, v%d' % (T + 2, sGo, T + 2))
            a.I('v_bfe_u32 v%d, v%d, 2, 1' % (T + 3, T + 2))
            a.I('v_xor_b32 v%d, v%d, v%d' % (T + 2, T + 2, T + 3))
            a.I('v_and_b32 v%d, 3, v0' % (T + 3))
            a.I('v_lshl_add_u32 v%d, v%d, 2, v%d' % (T + 2, T + 2, T + 3))
            a.I('v_mul_u32_u24 v%d, 81920, v%d' % (T + 1, T + 1))
            a.I('v_lshl_add_u32 v%d, v%d, 4, v%d' % (self.GA[it], T + 2, T + 1))
        a.I('v_lshrrev_b32 v%d, 5, v0' % T)
        a.I('v_lshl_add_u32 v%d, v%d, 31, v%d' % (self.GA[2], T, self.GA[2]))
        a.I('s_lshl_b32 %s, %s, 4' % (sGo, sHB))
        a.I('s_add_u32 %s, %s, %s' % (sGo, sGo, sG))
        a.I('s_mul_i32 %s, %s, 2560' % (sGo, sGo))
        a.I('s_mul_i32 s3, %s, %d' % (sW, 8 * 81920))
        a.I('s_add_u32 %s, %s, s3' % (sGo, sGo))
        a.I('s_add_u32 %s, %s, %s' % (sGo, sGo, sOut))

    def main(self, a, X, vS, vQ, W, sGo, tag=None):
        T = self.T + (self.T & 1)
        ln_coef(a, vS, vQ, T, T + 2, None)
        for n in range(5):
            for i in range(2):
                x = vr(X + 4 * n + 2 * i, 2)
                a.I('v_pk_fma_f32 %s, %s, %s, %s op_sel_hi:[1,0,0]' % (x, x, vr(T, 2), vr(T + 2, 2)))
            a.I('v_cvt_pk_bf16_f32 v%d, v%d, v%d' % (W + 2 * n, X + 4 * n, X + 4 * n + 1))
            a.I('v_cvt_pk_bf16_f32 v%d, v%d, v%d' % (W + 2 * n + 1, X + 4 * n + 2, X + 4 * n + 3))
            a.I('ds_write_b64 v%d, %s offset:%d' % (self.ZW, vr(W + 2 * n, 2), 8 * n))
        a.I('s_waitcnt lgkmcnt(0)')
        a.I('s_barrier')
        rds = ['ds_read_b64_tr_b16 %s, v%d offset:%d' % (vr(W + 8 * t + 4 * ks + 2 * rd, 2), self.ZR, (32 * ks + 2 * rd) * 168 + 32 * t)
               for t in range(5) for ks in range(2) for rd in range(2)]
        D = W + 40
        a.ext(rds[:12])
        for t in range(5):
            a.I('v_mfma_f32_16x16x32_bf16 %s, %s, %s, 0' % (vr(D + 4 * t, 4), vr(W + 8 * t, 4), vr(self.F, 4)))
            a.ext(rds[12 + 4 * t:14 + 4 * t])
            a.I('v_mfma_f32_16x16x32_bf16 %s, %s, %s, %s' % (vr(D + 4 * t, 4), vr(W + 8 * t + 4, 4), vr(self.F + 4, 4), vr(D + 4 * t, 4)))
            a.ext(rds[14 + 4 * t:16 + 4 * t])
        for t in range(5):
            a.I('v_cvt_pk_bf16_f32 v%d, v%d, v%d' % (X + 2 * t, D + 4 * t, D + 4 * t + 1))
            a.I('v_cvt_pk_bf16_f32 v%d, v%d, v%d' % (X + 2 * t + 1, D + 4 * t + 2, D + 4 * t + 3))
            a.I('ds_write_b64 v%d, %s offset:%d' % (self.BW, vr(X + 2 * t, 2), 64 * t))
        for it in range(3):
            a.I('ds_read_b128 %s, v%d' % (vr(W + 4 * it, 4), self.BR[it]))
        for it in range(3):
            a.I('buffer_store_dwordx4 %s, v%d, %s, %s offen sc1' % (vr(W + 4 * it, 4), self.GA[it], WS, sGo), tag)
```

```python
from common8 import *

vL16, vFl = 14, 12
N_WD, N_W1 = 108, 135


def phase0(a, st, name, hop, timed, take):
    a.raw('.globl %s\n.p2align 8\n.type %s,@function' % (name, name))
    a.label(name)
    a.I('s_cmp_ge_u32 s2, 256')
    a.I('s_cbranch_scc1 ffn_end')
    a.I('s_load_dwordx2 s[52:53], s[0:1], 88')
    a.I('s_load_dwordx2 s[54:55], s[0:1], 0')
    a.I('s_load_dwordx8 s[56:63], s[0:1], 48')
    a.I('s_load_dwordx2 s[22:23], s[0:1], 80')
    a.I('s_getpc_b64 s[46:47]')
    a.raw('.Lpc0:')
    a.I('s_add_u32 s46, s46, ffn_body-.Lpc0')
    a.I('s_addc_u32 s47, s47, 0')
    a.I('v_min_u32 v250, %d, v0' % opt('pf0', 80))
    a.I('v_lshlrev_b32 v250, 7, v250')
    a.I('global_load_dword v250, v250, s[46:47]')
    a.raw('    s_branch ffn_body\n.p2align 12\nffn_body:')
    if STAMP:
        a.I('s_mov_b32 s51, 0x80000\ns_mov_b32 s96, 0\ns_mov_b32 s97, 0')
    st(a, 'PQ')
    a.I('v_lshrrev_b32 v1, 6, v0')
    a.I('v_and_b32 v0, 63, v0')
    a.I('v_readfirstlane_b32 %s, v1' % sW)
    a.I('s_and_b32 %s, s2, 15' % sG)
    a.I('s_bfe_u32 %s, s2, 0x10004' % sHB)
    a.I('s_lshr_b32 %s, s2, 5' % sJJ)
    a.I('s_lshr_b32 %s, s2, 4' % sMU)
    a.I('v_lshlrev_b32 v%d, 4, v0' % vL16)
    vWr, WO = 20, 200
    sW0, sW1 = sT[16], sT[17]
    a.I('s_cmp_lt_u32 s2, %d' % N_WD)
    a.I('s_cbranch_scc1 p0_wd')
    a.I('s_sub_u32 %s, s2, %d' % (sT[0], N_WD))
    a.I('s_mul_i32 %s, %s, 205' % (sT[1], sT[0]))
    a.I('s_lshr_b32 %s, %s, 10' % (sT[1], sT[1]))
    a.I('s_mul_i32 s3, %s, 5' % sT[1])
    a.I('s_sub_u32 %s, %s, s3' % (sT[0], sT[0]))
    a.I('s_lshl_b32 %s, %s, 2' % (sT[0], sT[0]))
    a.I('s_and_b32 s3, %s, 2' % sW)
    a.I('s_add_u32 %s, %s, s3' % (sT[0], sT[0]))
    a.I('v_lshrrev_b32 v1, 3, v0')
    a.I('v_mul_u32_u24 v4, 3456, v1')
    a.I('v_and_b32 v2, 7, v0')
    a.I('v_lshl_add_u32 v4, v2, 4, v4')
    a.I('v_lshrrev_b32 v3, 2, v1')
    a.I('v_mul_u32_u24 v3, %d, v3' % (16 * 3456))
    a.I('s_cmp_ge_u32 %s, 27' % sT[1])
    a.I('s_cselect_b32 %s, 0x80000000, 0' % sT[6])
    a.I('v_add_u32 v4, %s, v4' % sT[6])
    a.I('v_add_u32 v5, v4, v3')
    a.I('s_lshl_b32 %s, %s, 7' % (sT[4], sT[1]))
    a.I('s_lshl_b32 %s, %s, 13' % (sT[5], sW))
    a.I('s_lshl_b32 %s, %s, 2' % (sT[2], sT[0]))
    a.I('s_mul_i32 %s, %s, 205' % (sT[3], sT[2]))
    a.I('s_lshr_b32 %s, %s, 10' % (sT[3], sT[3]))
    a.I('s_mul_i32 %s, %s, 5' % (sT[3], sT[3]))
    a.I('s_sub_u32 %s, %s, %s' % (sT[3], sT[2], sT[3]))
    a.I('s_mul_i32 %s, %s, %d' % (sT[2], sT[2], 8 * 3456))
    a.I('s_add_u32 %s, %s, %s' % (sT[2], sT[2], sT[4]))
    a.I('s_bitcmp1_b32 %s, 0' % sW)
    a.I('s_waitcnt lgkmcnt(0)')
    a.I('s_cselect_b32 s56, s58, s56')
    a.I('s_cselect_b32 s57, s59, s57')
    srd(a, 12, 56, W1B)
    for k in range(8):
        a.I('s_cmp_ge_u32 %s, 3' % sT[3])
        a.I('s_cselect_b32 s3, %d, 0' % (4 * 3456))
        a.I('s_sub_u32 s3, %s, s3' % sT[2])
        a.I('s_cmp_eq_u32 %s, 2' % sT[3])
        a.I('s_cselect_b64 vcc, -1, 0')
        a.I('s_add_u32 m0, %s, %d' % (sT[5], k * 1024))
        a.I('v_cndmask_b32 v6, v4, v5, vcc')
        a.I('buffer_load_dwordx4 v6, %s, s3 offen lds' % SB)
        if k < 7:
            a.I('s_add_u32 %s, %s, %d' % (sT[2], sT[2], 8 * 3456))
            a.I('s_add_u32 %s, %s, 1' % (sT[3], sT[3]))
            a.I('s_cmp_eq_u32 %s, 5' % sT[3])
            a.I('s_cselect_b32 %s, 0, %s' % (sT[3], sT[3]))
    a.I('s_branch p0_rows')

    a.label('p0_wd')
    a.reset()
    a.I('s_and_b32 %s, s2, 1' % sT[1])
    a.I('s_lshr_b32 %s, s2, 1' % sT[0])
    a.I('s_lshr_b32 %s, %s, 1' % (sT[5], sW))
    a.I('s_mul_i32 %s, %s, 43' % (sT[4], sT[0]))
    a.I('s_lshr_b32 %s, %s, 9' % (sT[4], sT[4]))
    a.I('s_and_b32 s3, %s, 3' % sT[0])
    a.I('s_mul_i32 %s, s3, 7' % sT[2])
    a.I('s_lshr_b32 s3, %s, 2' % sT[0])
    a.I('s_lshl_b32 s3, s3, 1')
    a.I('s_add_u32 %s, %s, s3' % (sT[2], sT[2]))
    a.I('s_mul_i32 s3, %s, 21' % sT[4])
    a.I('s_add_u32 %s, %s, s3' % (sT[2], sT[2]))
    a.I('s_add_u32 %s, %s, %s' % (sT[2], sT[2], sT[5]))
    a.I('s_lshl_b32 %s, %s, 1' % (sT[4], sT[0]))
    a.I('s_add_u32 %s, %s, %s' % (sT[4], sT[4], sT[5]))
    a.I('s_sub_u32 %s, %s, 96' % (sT[4], sT[4]))
    a.I('s_mul_i32 s3, %s, 86' % sT[4])
    a.I('s_lshr_b32 s3, s3, 8')
    a.I('s_mul_i32 s3, s3, 6')
    a.I('s_mul_i32 %s, %s, 7' % (sT[4], sT[4]))
    a.I('s_add_u32 %s, %s, s3' % (sT[4], sT[4]))
    a.I('s_add_u32 %s, %s, 6' % (sT[4], sT[4]))
    a.I('s_cmp_ge_u32 %s, 48' % sT[0])
    a.I('s_cselect_b32 %s, %s, %s' % (sT[2], sT[4], sT[2]))
    a.I('s_lshl_b32 %s, %s, 1' % (sT[2], sT[2]))
    a.I('s_and_b32 s3, %s, 1' % sW)
    a.I('s_add_u32 %s, %s, s3' % (sT[2], sT[2]))
    a.I('s_mul_i32 %s, %s, 10240' % (sT[2], sT[2]))
    a.I('s_mul_i32 s3, %s, 640' % sT[1])
    a.I('s_add_u32 %s, %s, s3' % (sT[2], sT[2]))
    a.I('s_mul_i32 %s, %s, 5120' % (sT[3], sW))
    a.I('s_waitcnt lgkmcnt(0)')
    srd(a, 12, 60, W1B)
    for it in range(5):
        a.I('v_add_u32 v2, %d, v0' % (64 * it))
        a.I('v_mul_u32_u24 v3, 1639, v2')
        a.I('v_lshrrev_b32 v3, 16, v3')
        a.I('v_mul_u32_u24 v3, 640, v3')
        a.I('s_add_u32 m0, %s, %d' % (sT[3], it * 1024))
        a.I('v_lshl_add_u32 v3, v2, 4, v3')
        a.I('buffer_load_dwordx4 v3, %s, %s offen lds' % (SB, sT[2]))

    a.label('p0_rows')
    a.reset()
    RW, PK, S = 120, 64, 44
    at = AT(96, 61440, 139264)
    X = 24
    srd(a, 8, 54, XB)
    srd(a, 4, 52, WS_BYTES)
    sR0, sR, sRe, sTl = sT[8], sT[9], sT[10], sT[11]
    sOwn = sT[18]
    a.I('s_or_b32 %s, %s, %s' % (sOwn, sMU, sW))
    a.I('s_cbranch_scc1 p0_noown')
    c = Asm()
    c.I('s_lshl_b32 s3, %s, 2' % sG)
    c.I('s_add_u32 s3, s3, 448')
    c.I('v_add_u32 v8, s3, v0')
    c.I('s_add_u32 s3, %s, 384' % sG)
    c.I('v_mov_b32 v9, s3')
    c.I('v_cmp_gt_u32 vcc, 4, v0')
    c.I('v_mov_b32 v10, 0')
    c.I('s_mov_b32 s3, 0x%x' % (LB0 + oFL))
    c.I('v_cndmask_b32 v8, v9, v8, vcc')
    c.I('v_lshlrev_b32 v8, 7, v8')
    c.I('s_mov_b64 exec, 31')
    c.I('buffer_store_dword v10, v8, %s, s3 offen sc1' % WS)
    c.I('s_mov_b64 exec, -1')
    a.raw(c.finalize().rstrip('\n'))
    a.label('p0_noown')
    row_nat_soff(a, sR0)
    a.I('v_lshrrev_b32 v1, 3, v0')
    a.I('v_mul_u32_u24 v1, 81920, v1')
    a.I('v_and_b32 v2, 7, v0')
    a.I('v_lshl_add_u32 v1, v2, 4, v1')
    a.I('v_add_u32 v1, %s, v1' % sR0)
    a.I('v_add_u32 v2, 0x%x, v1' % (512 * 1280))
    q = []
    for i in range(10):
        for s in range(2):
            q.append([Ins('buffer_load_dwordx4 %s, v%d, %s, 0 offen offset:%d' % (vr(RW + 8 * i + 4 * s, 4), 1 + s, SA, 128 * i), 'x%d' % i)])
    a.ext(take(q, opt('x0', 3)))
    st(a, 'Q')
    if opt('spf', 1):
        a.I('s_lshr_b32 s3, s2, 3')
        a.I('s_lshl_b32 s3, s3, 2')
        a.I('s_add_u32 s3, s3, %s' % sW)
        a.I('s_lshl_b32 s3, s3, 9')
        a.I('s_min_u32 s3, s3, ffn_end-ffn_body-512')
        a.I('s_add_u32 s46, s46, s3')
        a.I('s_addc_u32 s47, s47, 0')
        a.raw('\n'.join('    s_load_dword s21, s[46:47], %d' % (64 * i) for i in range(8)))
    hop(a, 0)
    a.label('hop0_ret')
    q += [[Ins('buffer_load_dwordx4 %s, v3, %s, %s offen' % (vr(PK, 4), SA, sTl))],
          [Ins('buffer_load_dwordx4 %s, v3, %s, %s offen offset:16' % (vr(PK + 4, 4), SA, sTl))],
          [Ins('buffer_load_dwordx2 %s, v3, %s, %s offen offset:32' % (vr(PK + 8, 2), SA, sTl))]]
    b = Asm()
    b.I('s_mul_i32 %s, %s, 160' % (sTl, sJJ))
    b.I('s_add_u32 %s, %s, %s' % (sTl, sTl, sR0))
    b.I('v_and_b32 v3, 15, v0')
    b.I('v_mul_u32_u24 v3, 81920, v3')
    b.I('v_lshrrev_b32 v4, 4, v0')
    b.I('v_mad_u32_u24 v3, v4, 40, v3')
    b.I('v_min_u32 v%d, 1, v0' % vFl)
    b.I('v_lshlrev_b32 v%d, 31, v%d' % (vFl, vFl))
    sI0, sI1, sI2 = sT[12], sT[13], sT[14]
    set_wave_index(b, sI0)
    b.I('s_lshl_b32 %s, %s, 3' % (sI0, sI0))
    b.I('s_add_u32 %s, %s, %s' % (sI0, sI0, sJJ))
    b.I('s_lshl_b32 %s, %s, 7' % (sI0, sI0))
    b.I('s_add_u32 %s, %s, 0x%x' % (sI0, sI0, LB0 + LBS + oST))
    b.I('v_lshrrev_b32 v4, 5, v0')
    b.I('v_lshlrev_b32 v5, 2, v0')
    b.I('v_lshl_add_u32 v4, v4, 31, v5')
    b.I('v_mov_b32 v5, -1')
    b.I('v_mov_b32 v6, 0')
    b.I('s_lshr_b32 %s, %s, 1' % (sI1, sW))
    b.I('s_lshl_b32 %s, %s, 8' % (sI1, sI1))
    b.I('s_add_u32 %s, %s, s2' % (sI1, sI1))
    b.I('s_and_b32 s3, %s, 1' % sW)
    b.I('s_lshl_b32 %s, s3, 9' % sI2)
    b.I('s_add_u32 %s, %s, 384' % (sI2, sI2))
    b.items.append([Ins('s_cmp_ge_u32 %s, %s' % (sI1, sI2)), Ins('s_cselect_b32 %s, 0x80000000, 0' % sI2)])
    b.I('v_or_b32 v7, %s, v4' % sI2)
    b.I('s_lshl_b32 %s, %s, 7' % (sI1, sI1))
    b.I('s_mul_i32 s3, s3, 0x%x' % LBS)
    b.I('s_add_u32 %s, %s, s3' % (sI1, sI1))
    b.I('s_add_u32 %s, %s, 0x%x' % (sI1, sI1, LB0 + oFL))
    at.setup(b, '0x%x' % LB0, sT[15])
    b.I('v_mov_b32 v%d, 0x3f803f80' % (S + 4))
    for i in range(4):
        b.I('v_mov_b32 v%d, 0' % (S + i))
    dots = []
    for i in range(10):
        for r in range(4):
            for s in range(2):
                v = RW + 8 * i + 4 * s + r
                dots.append('v_dot2c_f32_bf16 v%d, v%d, v%d' % (S + 2 * s, v, S + 4))
                dots.append('v_dot2c_f32_bf16 v%d, v%d, v%d' % (S + 2 * s + 1, v, v))
    a.ext(timed(b.items, q, opt('xp', 64), -opt('xd', 300)))
    nd = opt('nd', 5)
    a.wait_vm('x0')
    a.I('s_cmp_lg_u32 %s, 0' % sOwn)
    a.I('s_cbranch_scc1 p0_norep')
    a.raw('    v_mov_b32 v10, 1\n    s_mov_b64 exec, 1\n    global_atomic_add v6, v10, s[22:23] sc1\n    s_mov_b64 exec, -1')
    a.label('p0_norep')
    a.ext(timed(dots[:16 * nd], q, 32))
    a.ext(take(q, 99))
    a.I('buffer_store_dword v5, v4, %s, %s offen sc1' % (WS, sI0))
    a.I('buffer_store_dword v6, v7, %s, %s offen sc1' % (WS, sI1))
    st(a, 'Q')
    a.wait_vm('x0')
    a.I('s_barrier')
    a.I('s_cmp_lt_u32 s2, %d' % N_WD)
    a.I('s_cbranch_scc0 p0_w1b')
    c = Asm()
    c.I('v_lshrrev_b32 v1, 2, v0')
    c.I('v_mul_u32_u24 v1, 640, v1')
    c.I('v_and_b32 v2, 3, v0')
    c.I('v_mul_u32_u24 v2, 40, v2')
    c.I('s_mul_i32 s3, %s, 160' % sW)
    c.I('v_add3_u32 v1, v1, v2, s3')
    for n in range(5):
        for rd in range(2):
            c.I('ds_read_b64_tr_b16 %s, v1 offset:%d' % (vr(WO + 4 * n + 2 * rd, 2), rd * 10240 + n * 8))
    c.I('s_lshl_b32 %s, %s, 2' % (sT[1], sT[1]))
    c.I('s_add_u32 %s, %s, %s' % (sT[1], sT[1], sW))
    c.I('s_mul_i32 %s, %s, 276480' % (sT[1], sT[1]))
    c.I('s_mul_i32 s3, %s, 5120' % sT[0])
    c.I('s_add_u32 %s, %s, s3' % (sT[1], sT[1]))
    c.I('s_add_u32 %s, %s, 0x%x' % (sT[1], sT[1], WDP))
    c.I('s_add_u32 %s, %s, 4096' % (sT[2], sT[1]))
    c.I('v_mov_b32 v2, 0x80000000')
    for n in range(5):
        c.I('buffer_store_dwordx4 %s, v%d, %s, %s offen offset:%d sc1' % (vr(WO + 4 * n, 4), vL16, WS, sT[2] if n == 4 else sT[1], (n % 4) * 1024))
    for n in range(3):
        c.I('buffer_store_dword v2, v2, %s, 0 offen' % WS)
    c.I('s_branch p0_stat')
    a.raw(c.finalize().rstrip('\n'))
    a.label('p0_w1b')
    a.I('v_lshrrev_b32 v1, 4, v0')
    a.I('v_lshlrev_b32 v1, 10, v1')
    a.I('v_bfe_u32 v2, v0, 2, 2')
    a.I('v_lshl_add_u32 v1, v2, 7, v1')
    a.I('v_and_b32 v2, 3, v0')
    a.I('v_lshl_add_u32 v1, v2, 3, v1')
    a.I('v_add_u32 v1, %s, v1' % sT[5])
    for k in range(2):
        for ft in range(4):
            for rd in range(2):
                a.I('ds_read_b64_tr_b16 %s, v1 offset:%d' % (vr(WO + 16 * k + 4 * ft + 2 * rd, 2), k * 4096 + rd * 512 + ft * 32))
    a.I('v_add_u32 v2, %s, v%d' % (sT[6], vL16))
    a.I('s_mul_i32 %s, %s, %d' % (sT[1], sT[1], 4 * 40960))
    a.I('s_and_b32 %s, %s, 1' % (sT[2], sW))
    for k in range(2):
        a.I('s_mul_i32 s3, %s, 205' % sT[0])
        a.I('s_lshr_b32 s3, s3, 10')
        a.I('s_add_u32 s3, s3, %s' % sT[2])
        a.I('s_mul_i32 s3, s3, 5')
        a.I('s_add_u32 s3, s3, %s' % sT[0])
        a.I('s_lshl_b32 s3, s3, 10')
        a.I('s_add_u32 %s, s3, %s' % (sT[3], sT[1]))
        a.I('s_add_u32 %s, %s, 1' % (sT[0], sT[0]))
        for ft in range(4):
            a.I('buffer_store_dwordx4 %s, v2, %s, %s offen sc1' % (vr(WO + 16 * k + 4 * ft, 4), WS, sT[3]))
            if ft < 3:
                a.I('s_add_u32 %s, %s, 40960' % (sT[3], sT[3]))
    a.label('p0_stat')
    a.ext(dots[16 * nd:])
    st(a, 'Q')
    a.I('v_and_b32 v3, 1, v0')
    a.I('v_cmp_eq_u32 vcc, 1, v3')
    a.I('v_and_b32 v3, 7, v0')
    for m in ('quad_perm:[1,0,3,2]', 'quad_perm:[2,3,0,1]', 'row_half_mirror'):
        for i in range(4):
            a.I('v_add_f32_dpp v%d, v%d, v%d %s row_mask:0xf bank_mask:0xf' % (S + i, S + i, S + i, m))
    a.I('v_bfe_u32 v%d, v0, 3, 1' % (S + 4))
    a.I('v_lshl_add_u32 v3, v3, 3, v%d' % (S + 4))
    a.I('v_lshlrev_b32 v3, 2, v3')
    a.I('v_cndmask_b32 v%d, v%d, v%d, vcc' % (S, S, S + 2))
    a.I('v_cndmask_b32 v%d, v%d, v%d, vcc' % (S + 1, S + 1, S + 3))
    a.I('ds_bpermute_b32 v%d, v3, v%d' % (S + 2, S))
    a.I('ds_bpermute_b32 v%d, v3, v%d' % (S + 3, S + 1))
    a.ext(unpack(range(PK, PK + 10), lambda i: X + i))
    at.main(a, X, S + 2, S + 3, 176, sT[15], 'gs')
    decode(a, False)
```

```python
from common8 import *
from sched import Sched
import asmlib

M16 = 'v_mfma_f32_16x16x32_bf16'
M32 = 'v_mfma_f32_32x32x16_bf16'
L_V, L_X = 126976, 151552
L_P = 0
PERS = 1
KNAME = 'interleave_layers__spectral_fnet__swiglu_ffn__prompt_kernel'
sDBG = 's[22:23]'
SPIN = 20000

vL16, vD0, vFl, vDt, vWa = 14, 11, 12, 13, 15
sZF, sHF, sHC = sT[21], sT[22], sT[23]
sCK, sSP = sT[24], sT[25]
slow = []


def lst(f, *args):
    b = Asm()
    f(b, *args)
    return b.items


def dma(vbase, sbase, lds, n, tag):
    o = []
    for i in range(n):
        g = []
        if i % 4 == 0:
            g.append(Ins('s_add_u32 m0, %s, %d' % (sbase, lds + i * 1024)))
            g.append(Ins('v_add_u32 v%d, m0, v%d' % (vDt, vbase)))
        g.append(Ins('buffer_load_dwordx4 v%d, %s, 0 offen offset:%d sc1 lds' % (vDt, WS, (i % 4) * 1024), tag))
        o.append(g)
    return link(o)


def wda_loads():
    o = []
    for i in range(54):
        g = []
        if i and i % 4 == 0:
            g.append(Ins('v_add_u32 v%d, 4096, v%d' % (vWa, vWa)))
        g.append(Ins('buffer_load_dwordx4 %s, v%d, %s, 0 offen offset:%d sc1' % (vr(4 * i + (40 if i >= 40 else 0), 4, 'a'), vWa, WS, (i % 4) * 1024), 'wda'))
        o.append(g)
    return o


def est(x):
    if isinstance(x, tuple):
        return 0 if x[0] in ('label', 'raw') else 30
    if x.kind == 'mfma':
        return 4 * x.passes
    if x.op == 's_barrier':
        return 40
    if x.op == 's_waitcnt':
        return 40
    if x.op.startswith(('v_sin', 'v_cos', 'v_exp', 'v_r', 'v_pk', 'ds_write')):
        return 8
    return 4


def timed(items, q, period, t=0):
    out = []
    for x in items:
        x = Ins(x) if isinstance(x, str) else x
        if isinstance(x, list):
            out += x
            t += 4 * len(x)
        else:
            out.append(x)
            t += est(x)
        if t >= period and q:
            g = q.pop(0)
            out += g
            t += 4 * len(g) - period
    return out


def link(groups):
    last = {}
    for g in groups:
        for x in g:
            if isinstance(x, Ins):
                if x.kind == 'vmem':
                    for r in ('m0',):
                        if r in x.src and r in last:
                            x.dep = last[r]
                for r in x.dst:
                    last[r] = x
    return groups


def weave_groups(main, groups, every, start=0):
    out, gi = [], 0
    for i, m in enumerate(main):
        out.append(m)
        if i >= start and (i - start) % every == every - 1 and gi < len(groups):
            out += groups[gi]
            gi += 1
    return out, groups[gi:]


def check_issue(vC, so):
    return [Ins('v_mov_b32 v%d, 0' % vC), Ins('buffer_atomic_add v%d, v%d, %s, %s offen sc0 sc1' % (vC, vFl, WS, so), 'ck')]


def check_test(vC, so, bit, name):
    slow.append((vC, so, bit, name))
    return [Ins('v_readfirstlane_b32 %s, v%d' % (sCK, vC)),
            [Ins('s_bitcmp1_b32 %s, %d' % (sCK, bit)), Ins('s_cbranch_scc0 %s_slow' % name), ('label', name + '_ok')]]


polls = []


def poll_test(regs, so, bit, name):
    polls.append((regs, so, bit, name))
    return [Ins('v_readfirstlane_b32 %s, v%d' % (sCK, regs[0])), Ins('s_bitcmp1_b32 %s, %d' % (sCK, bit)),
            Ins('s_cbranch_scc0 %s_slow' % name), ('label', name + '_ok')]


def emit_polls(a):
    for k, (regs, so, bit, name) in enumerate(polls):
        a.label(name + '_slow')
        a.reset()
        a.I('s_mov_b32 %s, 0' % sSP)
        a.label(name + '_spin')
        for r in range(3):
            a.reset()
            if STAMP:
                a.I('s_add_u32 s97, s97, 0x%x' % (1 << (5 * (2 + k))))
            a.ext(check_issue(regs[r], so))
            a.I('s_waitcnt vmcnt(2)')
            a.I('v_readfirstlane_b32 %s, v%d' % (sCK, regs[(r + 1) % 3]))
            a.I('s_bitcmp1_b32 %s, %d' % (sCK, bit))
            a.I('s_cbranch_scc1 %s_ok' % name)
        a.I('s_add_u32 %s, %s, 1' % (sSP, sSP))
        a.I('s_cmp_lt_u32 %s, %d' % (sSP, SPIN))
        a.I('s_cbranch_scc1 %s_spin' % name)
        a.I('s_branch %s_ok' % name)


def emit_slow(a):
    for k, (vC, so, bit, name) in enumerate(slow):
        a.label(name + '_slow')
        a.reset()
        a.I('s_mov_b32 %s, 0' % sSP)
        a.label(name + '_spin')
        if STAMP:
            sys.stderr.write('slow %d = %s\n' % (k, name))
            a.I('s_add_u32 s%d, s%d, 0x%x' % (96 + k // 6, 96 + k // 6, 1 << (5 * (k % 6))))
        if vC is None:
            a.I('s_load_dword %s, s[52:53], %s glc' % (sCK, so))
            a.I('s_add_u32 %s, %s, 1' % (sSP, sSP))
            a.I('s_waitcnt lgkmcnt(0)')
        else:
            a.ext(check_issue(vC, so))
            a.I('s_add_u32 %s, %s, 1' % (sSP, sSP))
            a.I('s_waitcnt vmcnt(0)')
            a.I('v_readfirstlane_b32 %s, v%d' % (sCK, vC))
        a.I('s_bitcmp1_b32 %s, %d' % (sCK, bit))
        a.I('s_cbranch_scc1 %s_ok' % name)
        a.I('s_cmp_lt_u32 %s, %d' % (sSP, SPIN))
        a.I('s_cbranch_scc1 %s_spin' % name)
        a.I('s_branch %s_ok' % name)


def take(q, n):
    r = []
    for g in q[:n]:
        r += g
    del q[:n]
    return r


def stream_bases(b):
    b.I('s_lshr_b32 s3, %s, 2' % sMU)
    b.I('s_sub_u32 s3, %s, s3' % sMU)
    b.I('s_mul_i32 %s, %s, 6' % (sCK, sMU))
    b.I('s_add_u32 s3, s3, %s' % sCK)
    b.I('s_mul_i32 s3, s3, 40960')
    b.I('v_add_u32 v%d, s3, v%d' % (vD0, vL16))
    b.I('s_mul_i32 s3, %s, 276480' % sJJ)
    b.I('s_mul_i32 %s, %s, 61440' % (sCK, sW))
    b.I('s_add_u32 s3, s3, %s' % sCK)
    b.I('s_add_u32 s3, s3, 0x%x' % WDP)
    b.I('v_add_u32 v%d, s3, v%d' % (vWa, vL16))
    b.I('s_mul_i32 %s, %s, 11264' % (sW11, sW))


sW11 = sT[20]


def kb(a, st, layer, q):
    LB = LB0 + layer * LBS
    FS, TA, TB, AP, AM, WA, WD = 16, 24, 88, 136, 152, 168, 208
    vRS, vVW, vVR, vA0, vA2 = (1, 2), (3, 4), (5, 6, 7, 8), 9, 10
    vZS, vRB, vGs, vXs, vRo = (248, 249, 250), 251, 252, 253, 254
    T, R0 = AP + 20, AP
    sT1, sCLS, sQ, sW10, sBLK, sW25 = sT[0], sT[1], sT[2], sT[3], sT[4], sT[5]
    sSig, sAmp, sZS, sRS, sW9, sW20 = sT[6], sT[7], sT[8], sT[9], sT[10], sT[11]
    PER = opt('per%d' % layer, opt('per', 60))
    b = Asm()
    b.I('s_lshr_b32 %s, %s, 2' % (sT1, sMU))
    b.I('s_sub_u32 s3, 3, %s' % sT1)
    b.items.append([Ins('s_cmp_gt_u32 %s, 8' % sG), Ins('s_cselect_b32 %s, s3, %s' % (sT1, sT1))])
    b.I('s_and_b32 s3, %s, 1' % sT1)
    b.I('s_lshl_b32 %s, %s, 1' % (sCLS, sG))
    b.I('s_add_u32 %s, %s, s3' % (sCLS, sCLS))
    b.I('s_lshl_b32 %s, %s, 1' % (sCLS, sCLS))
    b.I('s_lshr_b32 s3, %s, 1' % sT1)
    b.I('s_add_u32 %s, %s, s3' % (sCLS, sCLS))
    b.I('s_lshl_b32 %s, %s, 4' % (sT1, sT1))
    b.I('s_add_u32 %s, %s, %s' % (sT1, sT1, sG))
    b.I('s_sub_u32 s3, 64, %s' % sT1)
    b.I('s_min_u32 s3, s3, %s' % sT1)
    b.I('s_and_b32 s3, s3, 31')
    b.I('s_mul_i32 s3, s3, 81920')
    b.I('s_add_u32 s3, s3, 0x%x' % (LB + oG))
    b.I('v_add_u32 v%d, s3, v%d' % (vGs, vL16))
    b.I('s_mul_i32 %s, %s, 10240' % (sW10, sW))
    sc0 = b.items
    b = Asm()
    b.I('s_and_b32 %s, %s, 3' % (sQ, sMU))
    b.I('s_lshl_b32 %s, %s, 2' % (sBLK, sCLS))
    b.I('s_add_u32 %s, %s, %s' % (sBLK, sBLK, sQ))
    b.I('s_mul_i32 s3, %s, 10240' % sBLK)
    b.I('s_add_u32 s3, s3, 0x%x' % (LB + oXA - L_X))
    b.I('v_add_u32 v%d, s3, v%d' % (vXs, vL16))
    b.I('s_mul_i32 %s, %s, 2560' % (sW25, sW))
    b.items.append([Ins('s_cmp_lt_u32 %s, 32' % sT1), Ins('s_cselect_b32 %s, %s, 0' % (sSig, fl(-0.25)))])
    b.items.append([Ins('s_cmp_gt_u32 %s, 32' % sT1), Ins('s_cselect_b32 %s, %s, %s' % (sSig, fl(0.25), sSig))])
    b.items.append([Ins('s_cmp_eq_u32 %s, 0' % sT1), Ins('s_cselect_b32 %s, 0xffff, -1' % sAmp)])
    b.items.append([Ins('s_cmp_eq_u32 %s, 32' % sT1), Ins('s_cselect_b32 %s, 0xffff0000, %s' % (sAmp, sAmp))])
    b.I('v_and_b32 v%d, 31, v0' % T)
    b.I('s_lshr_b32 s3, %s, 1' % sW)
    b.I('v_add_u32 v%d, s3, v%d' % (T, T))
    b.I('v_cvt_f32_u32 v%d, v%d' % (T, T))
    b.I('v_mul_f32 v%d, %s, v%d' % (T, fl(1.0 / 32), T))
    b.I('s_and_b32 s3, %s, 1' % sW)
    b.I('s_lshl_b32 s3, s3, 4')
    b.I('v_cos_f32 v%d, v%d' % (T + 2, T))
    b.I('v_lshrrev_b32 v%d, 5, v0' % (T + 1))
    b.I('v_lshl_add_u32 v%d, v%d, 3, s3' % (T + 1, T + 1))
    b.I('v_cvt_f32_u32 v%d, v%d' % (T + 1, T + 1))
    b.I('v_mul_f32 v%d, v%d, v%d' % (R0 + 1, T, T + 1))
    b.I('v_add_f32 v%d, v%d, v%d' % (R0 + 3, R0 + 1, T))
    b.I('v_add_f32 v%d, v%d, v%d' % (T + 2, T + 2, T + 2))
    for j in range(2):
        b.I('v_cos_f32 v%d, v%d' % (R0 + 2 * j, R0 + 2 * j + 1))
        b.I('v_sin_f32 v%d, v%d' % (R0 + 2 * j + 1, R0 + 2 * j + 1))
    b.I('s_lshl_b32 s3, %s, 11' % sW)
    b.I('v_add_u32 v%d, 0x%x, v%d' % (vRB, L_V, vL16))
    b.I('v_add_u32 v%d, s3, v%d' % (T + 1, vRB))
    for j in range(2, 8):
        b.I('v_pk_fma_f32 %s, %s, %s, %s op_sel_hi:[0,1,1] neg_lo:[0,0,1] neg_hi:[0,0,1]' % (vr(R0 + 2 * j, 2), vr(T + 2, 2), vr(R0 + 2 * j - 2, 2), vr(R0 + 2 * j - 4, 2)))
    for e in range(2):
        for p in range(4):
            b.I('v_cvt_pk_bf16_f32 v%d, v%d, v%d' % (TB + 4 * e + p, R0 + 4 * p + e, R0 + 4 * p + 2 + e))
        b.I('ds_write_b128 v%d, %s offset:%d' % (T + 1, vr(TB + 4 * e, 4), 1024 * e))
    b.I('s_lshl_b32 s3, %s, 9' % sQ)
    b.I('s_add_u32 s3, s3, %s' % sT1)
    b.I('v_bfe_u32 v%d, v0, 1, 3' % T)
    b.I('v_lshl_add_u32 v%d, v%d, 6, s3' % (T, T))
    b.I('v_cvt_f32_u32 v%d, v%d' % (T, T))
    b.I('v_mul_f32 v%d, %s, v%d' % (T, fl(1.0 / 2048), T))
    b.I('v_lshrrev_b32 v%d, 4, v0' % (T + 1))
    b.I('v_cvt_f32_u32 v%d, v%d' % (T + 5, T + 1))
    b.I('v_add_f32 v%d, v%d, v%d' % (T + 1, T + 5, T + 5))
    b.I('v_and_b32 v%d, 1, v0' % (T + 2))
    b.I('v_cvt_f32_u32 v%d, v%d' % (T + 2, T + 2))
    b.I('v_mul_f32 v%d, %s, v%d' % (T + 2, fl(0.25), T + 2))
    b.I('v_fma_f32 v%d, v%d, v%d, v%d' % (T + 1, T, T + 1, T + 2))
    for i in range(8):
        k = 16 * (i >> 2) + 8 * ((i >> 1) & 1) + (i & 1)
        b.I('v_fmamk_f32 v%d, v%d, %s, v%d' % (FS + i, T, fl(k), T + 1))
        b.I('v_add_f32 v%d, %s, v%d' % (R0 + i, sSig, FS + i))
        b.I('v_cos_f32 v%d, v%d' % (FS + i, FS + i))
        b.I('v_cos_f32 v%d, v%d' % (R0 + i, R0 + i))
    for i in range(8):
        b.I('v_cvt_pk_bf16_f32 v%d, v%d, v%d' % (FS + i, FS + i, R0 + i))
        b.I('v_and_b32 v%d, %s, v%d' % (FS + i, sAmp, FS + i))
    b.I('v_lshrrev_b32 v%d, 3, v0' % T)
    b.I('v_mul_u32_u24 v%d, 2560, v%d' % (T + 1, T))
    b.I('v_bfe_u32 v%d, v0, 2, 1' % (T + 2))
    b.I('v_lshl_add_u32 v%d, v%d, 3, v%d' % (T + 1, T + 2, T + 1))
    b.I('v_and_b32 v%d, 3, v0' % (T + 2))
    b.I('v_lshl_add_u32 v%d, v%d, 7, v%d' % (T + 1, T + 2, T + 1))
    b.I('v_and_b32 v%d, 3, v%d' % (T, T))
    b.I('v_and_b32 v%d, 2, v0' % (T + 2))
    b.I('v_lshl_or_b32 v%d, v%d, 1, v%d' % (T, T + 2, T))
    b.I('s_lshl_b32 s3, %s, 1' % sW)
    b.I('v_xor_b32 v%d, s3, v%d' % (T, T))
    b.I('v_lshl_add_u32 v%d, v%d, 4, v%d' % (vRS[0], T, T + 1))
    b.I('v_xor_b32 v%d, 16, v%d' % (vRS[1], vRS[0]))
    tab1 = b.items
    b = Asm()
    K = T + 2
    b.I('v_and_b32 v%d, 15, v0' % T)
    b.I('v_cvt_f32_u32 v%d, v%d' % (T, T))
    b.I('v_mul_f32 v%d, %s, v%d' % (T, fl(1.0 / 640), T))
    b.I('s_lshl_b32 s3, %s, 3' % sW)
    b.I('v_cos_f32 v%d, v%d' % (K, T))
    b.I('v_cvt_f32_u32 v%d, s3' % (T + 1))
    b.I('v_fmamk_f32 v%d, v%d, %s, v%d' % (T + 1, T + 5, fl(32), T + 1))
    b.I('v_mul_f32 v%d, v%d, v%d' % (T + 1, T, T + 1))
    b.I('v_add_f32 v%d, v%d, v%d' % (K, K, K))
    for ib in range(8):
        C, Sn = TA + 8 * ib, TA + 8 * ib + 4
        cur, oth = R0 + 10 * (ib & 1), R0 + 10 * ((ib + 1) & 1)
        for j in range(5):
            r = cur + 2 * j
            if ib < 2:
                b.I('v_fmamk_f32 v%d, v%d, %s, v%d' % (r + 1, T, fl(128 * j + ib), T + 1))
                b.I('v_cos_f32 v%d, v%d' % (r, r + 1))
                b.I('v_sin_f32 v%d, v%d' % (r + 1, r + 1))
            else:
                b.I('v_pk_fma_f32 %s, %s, %s, %s op_sel_hi:[0,1,1] neg_lo:[0,0,1] neg_hi:[0,0,1]' % (vr(r, 2), vr(K, 2), vr(oth + 2 * j, 2), vr(r, 2)))
        for e, d in ((0, C), (1, Sn)):
            b.I('v_cvt_pk_bf16_f32 v%d, v%d, v%d' % (d, cur + e, cur + 2 + e))
            b.I('v_cvt_pk_bf16_f32 v%d, v%d, v%d' % (d + 1, cur + 4 + e, cur + 6 + e))
            b.I('v_cvt_pk_bf16_f32 v%d, v%d, 0' % (d + 2, cur + 8 + e))
    tab2 = b.items

    b = Asm()
    b.I('s_lshl_b32 s3, %s, 1' % sW)
    b.I('v_and_b32 v%d, 31, v0' % (T + 2))
    b.I('v_lshrrev_b32 v%d, 5, v0' % (T + 4))
    b.I('v_add_u32 v%d, s3, v%d' % (T + 3, T + 4))
    xr_addr(b, vA0, vA2, T + 2, T + 3, T)
    b.I('v_add_u32 v%d, 0x%x, v%d' % (vA0, L_X, vA0))
    b.I('v_add_u32 v%d, 0x%x, v%d' % (vA2, L_X, vA2))
    b.I('v_bfe_u32 v%d, v0, 3, 2' % (T + 1))
    b.I('v_cmp_eq_u32 vcc, 3, v%d' % (T + 1))
    b.I('v_bfe_u32 v%d, v0, 2, 1' % T)
    b.I('v_add_u32 v%d, s3, v%d' % (T, T))
    b.I('v_and_b32 v%d, 3, v0' % (T + 2))
    b.I('v_cndmask_b32_e64 v%d, v%d, 0, vcc' % (T + 1, T + 1))
    b.I('v_lshl_add_u32 v%d, v%d, 2, v%d' % (T + 1, T + 1, T + 2))
    b.I('v_mad_u32_u24 v%d, v%d, 12, v%d' % (T + 2, T, T + 1))
    b.I('v_lshlrev_b32 v%d, 7, v%d' % (T + 2, T + 2))
    b.I('v_lshrrev_b32 v%d, 1, v%d' % (T + 1, T + 1))
    b.I('v_and_b32 v%d, 3, v%d' % (T, T))
    b.I('v_xor_b32 v%d, v%d, v%d' % (T, T, T + 1))
    b.I('v_xor_b32 v%d, v%d, v%d' % (T, T, T + 4))
    b.I('v_lshl_add_u32 v%d, v%d, 4, v%d' % (T, T, T + 2))
    b.I('v_add_u32 v%d, 0x%x, v%d' % (vVR[0], L_V, T))
    for k in range(1, 4):
        b.I('v_xor_b32 v%d, %d, v%d' % (vVR[k], 32 * k, vVR[0]))
    b.I('v_bfe_u32 v%d, v0, 1, 3' % T)
    b.I('v_lshrrev_b32 v%d, 4, v0' % (T + 1))
    b.I('v_mad_u32_u24 v%d, v%d, 3, v%d' % (T + 2, T, T + 1))
    b.I('v_lshlrev_b32 v%d, 9, v%d' % (T + 2, T + 2))
    b.I('v_add_u32 v%d, 1, v%d' % (T + 3, T + 1))
    b.I('v_lshrrev_b32 v%d, 2, v%d' % (T + 3, T + 3))
    b.I('v_lshl_add_u32 v%d, v%d, 16, v%d' % (T + 2, T + 3, T + 2))
    b.I('v_and_b32 v%d, 3, v%d' % (T, T))
    b.I('v_lshlrev_b32 v%d, 1, v%d' % (T + 1, T + 1))
    b.I('v_xor_b32 v%d, v%d, v%d' % (T, T, T + 1))
    b.I('v_and_b32 v%d, 1, v0' % (T + 1))
    b.I('v_lshl_or_b32 v%d, v%d, 2, %s' % (T + 1, T + 1, sW))
    b.I('v_xor_b32 v%d, v%d, v%d' % (T, T, T + 1))
    b.I('v_lshl_add_u32 v%d, v%d, 4, v%d' % (T, T, T + 2))
    b.I('v_add_u32 v%d, 0x%x, v%d' % (vVW[0], L_V, T))
    b.I('v_xor_b32 v%d, 16, v%d' % (vVW[1], vVW[0]))
    b.I('s_mul_i32 %s, %s, 20480' % (sW20, sW))
    for ib in range(8):
        b.I('v_mov_b32 v%d, 0' % (TA + 8 * ib + 3))
        b.I('v_mov_b32 v%d, 0' % (TA + 8 * ib + 7))
    addr = b.items

    b = Asm()
    U = T
    b.I('s_mul_i32 s3, %s, 20' % sW)
    b.I('v_lshrrev_b32 v%d, 3, v0' % U)
    b.I('v_add_u32 v%d, s3, v%d' % (U, U))
    for it in range(3):
        if it:
            b.I('v_add_u32 v%d, 8, v%d' % (U, U))
        b.I('v_mul_u32_u24 v%d, 205, v%d' % (U + 1, U))
        b.I('v_lshrrev_b32 v%d, 9, v%d' % (U + 1, U + 1))
        b.I('v_xor_b32 v%d, v%d, v0' % (U + 1, U + 1))
        b.I('v_and_b32 v%d, 7, v%d' % (U + 1, U + 1))
        b.I('v_lshlrev_b32 v%d, 9, v%d' % (U + 2, U))
        b.I('v_lshl_add_u32 v%d, v%d, 4, v%d' % (vZS[it], U + 1, U + 2))
    b.I('v_lshrrev_b32 v%d, 5, v0' % U)
    b.I('v_lshl_add_u32 v%d, v%d, 31, v%d' % (vZS[2], U, vZS[2]))
    b.I('s_mul_i32 %s, %s, 40960' % (sZS, sCLS))
    b.I('s_lshl_b32 s3, %s, 7' % sQ)
    b.I('s_add_u32 %s, %s, s3' % (sZS, sZS))
    b.I('s_add_u32 %s, %s, 0x%x' % (sZS, sZS, LB + oZ))
    b.I('s_add_u32 s3, %s, 0x%x' % (sW25, L_X))
    b.I('v_add_u32 v%d, s3, v%d' % (vRB, vL16))
    b.I('v_and_b32 v%d, 31, v0' % (U + 1))
    b.I('v_min_u32 v%d, 1, v%d' % (U + 1, U + 1))
    b.I('v_lshlrev_b32 v%d, 31, v%d' % (U + 1, U + 1))
    b.I('v_lshl_add_u32 v%d, v%d, 3, v%d' % (vRo, U, U + 1))
    b.I('s_lshl_b32 %s, %s, 2' % (sRS, sBLK))
    b.I('s_add_u32 %s, %s, %s' % (sRS, sRS, sW))
    b.I('s_lshl_b32 %s, %s, 4' % (sRS, sRS))
    b.I('s_add_u32 %s, %s, 0x%x' % (sRS, sRS, LB + oRS))
    late = b.items

    tbr = ['ds_read_b128 %s, v%d offset:%d' % (vr(TB + 24 * (w >> 1) + 8 * e + 4 * (w & 1), 4), vRB, 2048 * w + 1024 * e) for w in range(4) for e in range(2)]
    neg = ['v_xor_b32 v%d, 0x80008000, v%d' % (TB + 16 + i, TB + 8 + i) for i in range(8)] + \
          ['v_xor_b32 v%d, 0x80008000, v%d' % (TB + 40 + i, TB + 24 + i) for i in range(8)]
    XE = lambda e: AP + e if e < 10 else AM + 20 - e
    rds = lambda ks: ['ds_read_b64_tr_b16 %s, v%d offset:%d' % (vr(WA + 20 * bg + 4 * t + 2 * rd, 2), vRS[bg], (16 * ks + 8 * rd) * 2560 + 512 * t)
                      for bg in range(2) for t in range(5) for rd in range(2)]
    mf = lambda ks: ['%s %s, %s, %s, %s' % (M16, vr(WD + 4 * i, 4), vr(WA + 4 * i, 4), vr(FS + 4 * ks, 4), vr(WD + 4 * i, 4) if ks else '0') for i in range(10)]
    gq = dma(vGs, sW10, 0, 10, 'g0') + dma(vGs, sW10, 40960, 10, 'g1')
    xd = dma(vXs, sW25, L_X, 3, 'xa')
    xd[2] = [Ins('s_mov_b32 exec_hi, 0')] + xd[2] + [Ins('s_mov_b32 exec_hi, -1')]
    early = dma(vD0, sW11, 81920, 11, 'w')

    ly = str(layer)
    O = lambda name, d0, d1: opt(name + ly, opt(name, d1 if layer else d0))
    vAr, vRp, vCk = WD + 32, WD + 33, WD + 34
    sAr, sRp = sT[12], sT[13]
    XP = WD + 8
    b = Asm()
    if layer:
        q[:0] = early
    else:
        a.I('v_mov_b32 v246, 0')
        a.I('global_load_dword v247, v246, %s sc1' % sDBG, tag='gs')
        stream_bases(b)
    b.I('s_lshl_b32 %s, %s, 7' % (sAr, sG))
    b.I('s_add_u32 %s, %s, 0x%x' % (sAr, sAr, LB + oFL + 384 * 128))
    b.I('s_min_u32 s3, %s, 1' % sW)
    b.I('s_lshl_b32 s3, s3, 31')
    b.I('v_or_b32 v%d, s3, v%d' % (vAr, vFl))
    b.I('v_mov_b32 v%d, 1' % vCk)
    qa = take1(q, opt('a1', 8))
    a.ext(timed(b.items + sc0 + tab1, qa, 80))
    a.ext(take(qa, 99))
    a.items.append(('wait_both', 'gs'))
    if not layer:
        a.I('v_readfirstlane_b32 %s, v247' % sT[14])
        a.I('s_cmp_lt_u32 %s, 16' % sT[14])
        a.I('s_cbranch_scc1 rdy_slow')
        a.label('rdy_ok')
    a.I('s_barrier')
    a.I('buffer_atomic_add v%d, v%d, %s, %s offen sc0 sc1' % (vCk, vAr, WS, sAr))
    st(a, 'Q' if layer == 0 else 'R')
    qa = take1(q, opt('a2', 8))
    b = Asm()
    if not layer:
        b.I('s_lshl_b32 s3, %s, 2' % sQ)
        b.I('s_add_u32 s3, s3, %s' % sW)
        b.I('s_lshl_b32 s3, s3, 7')
        b.I('s_add_u32 s3, s3, %s' % sT1)
        b.I('s_mul_i32 s3, s3, 1280')
        b.I('v_lshrrev_b32 v%d, 5, v0' % vXs)
        b.I('v_mul_u32_u24 v%d, 81920, v%d' % (vXs, vXs))
        b.I('v_and_b32 v%d, 31, v0' % vRp)
        b.I('v_mad_u32_u24 v%d, v%d, 40, v%d' % (vXs, vRp, vXs))
        b.I('buffer_load_dwordx4 %s, v%d, %s, s3 offen' % (vr(XP, 4), vXs, SA))
        b.I('buffer_load_dwordx4 %s, v%d, %s, s3 offen offset:16' % (vr(XP + 4, 4), vXs, SA))
        b.I('buffer_load_dwordx2 %s, v%d, %s, s3 offen offset:32' % (vr(XP + 8, 2), vXs, SA))
    b.I('s_and_b32 %s, s2, 63' % sRp)
    b.I('v_mov_b32 v%d, v%d' % (vCk + 3, vAr))
    b.I('s_lshl_b32 %s, %s, 7' % (sRp, sRp))
    b.I('s_add_u32 %s, %s, 0x%x' % (sRp, sRp, LB + oFL + 448 * 128))
    b.I('s_mov_b32 %s, 0x%x' % (sAr, LB + oFL + 448 * 128))
    b.I('v_lshlrev_b32 v%d, 7, v0' % vRp)
    b.I('v_mov_b32 v%d, 1' % vAr)
    n2 = opt('t2', 90)
    a.ext(timed(tbr + b.items + tab2[:n2], qa, 64))
    a.ext(take(qa, 99))
    a.I('v_readfirstlane_b32 %s, v%d' % (sCK, vCk))
    a.I('s_cmp_lg_u32 %s, 15' % sCK)
    a.I('s_cbranch_scc1 a2a_notlast' + ly)
    a.raw('    buffer_atomic_add v%d, v%d, %s, %s offen sc1' % (vAr, vRp, WS, sAr))
    a.label('a2a_notlast' + ly)
    qa = take1(q, opt('a3', 4))
    rest = timed(tab2[n2:] + neg + addr + late + ([] if layer else unpack(range(XP, XP + 10), XE)), qa, 64)
    pr = (vCk, vCk + 1, vCk + 2)
    n3 = len(rest) // 3
    for r in range(3):
        a.ext(rest[r * n3:(r + 1) * n3 if r < 2 else 9999])
        a.I('v_mov_b32 v%d, 0' % pr[r])
        a.I('buffer_atomic_add v%d, v%d, %s, %s offen sc0 sc1' % (pr[r], vCk + 3, WS, sRp))
    a.ext(take(qa, 99))
    assert not any(g[-1].tag == 'w' for g in q)
    hop(a, layer + 1)
    pt = poll_test(pr, sRp, 4, 'a2a' + ly)
    a.raw('    s_waitcnt vmcnt(2)\n    ' + pt[0].text + '\n    s_nop 1\n    ' + pt[1].text + '\n    ' + pt[2].text)
    a.label('a2a%s_ok' % ly)
    a.label('hop%d_ret' % (layer + 1))
    a.I('s_barrier')
    st(a, 'ABCDPQ')
    a.ext(take(gq, 20))
    if layer:
        q[:0] = xd
    else:
        q = early + wda_loads()
    late, neg = [], []
    st(a, 'B')
    b = Asm()
    b.items.append(('wait_both', 'g0'))
    b.I('s_barrier')
    b.ext(rds(0)[:12])
    b.ext(weave(mf(0), rds(0)[12:], 0, 2))
    a.ext(timed(b.items, q, O('perB', 40, 60)))
    a.items.append(('wait_both', 'g1'))
    a.I('s_barrier')
    st(a, 'AB')
    b = Asm()
    b.ext(rds(1)[:12])
    b.ext(neg[:6])
    b.ext(weave(mf(1), rds(1)[12:] + neg[6:], 0, 2))

    def ub(ib):
        d = lambda t: WD + 20 * (ib >> 2) + 4 * t + (ib & 3)
        u = WA + 4 * ib
        return ['v_cvt_pk_bf16_f32 v%d, v%d, v%d' % (u, d(0), d(1)), 'v_cvt_pk_bf16_f32 v%d, v%d, v%d' % (u + 1, d(2), d(3)),
                'v_cvt_pk_bf16_f32 v%d, v%d, 0' % (u + 2, d(4))]
    PQ = [[WD + 4 * ib for ib in range(8)], [TA + 8 * ib for ib in range(8)]]
    mP = ['%s %s, %s, %s, 0' % (M16, vr(PQ[0][ib], 4), vr(TA + 8 * ib, 4), vr(WA + 4 * ib, 4)) for ib in range(8)]
    mQ = ['%s %s, %s, %s, 0' % (M16, vr(PQ[1][ib], 4), vr(TA + 8 * ib + 4, 4), vr(WA + 4 * ib, 4)) for ib in range(8)]

    def vout(pq):
        o = []
        for r in range(4):
            t = (WA + 32, WA + 36, WD + 32, WD + 36)[r]
            for p in range(4):
                o.append('v_cvt_pk_bf16_f32 v%d, v%d, v%d' % (t + p, PQ[pq][2 * p] + r, PQ[pq][2 * p + 1] + r))
            o.append('ds_write_b128 v%d, %s offset:%d' % (vVW[r >> 1], vr(t, 4), pq * 12288 + r * 128))
        return o
    b.ext(ub(0) + ub(1) + ub(2) + ub(3))
    b.ext(weave(mP[:4] + mQ[:2], ub(4) + ub(5) + ub(6) + ub(7), 0, 2))
    b.ext(mP[4:])
    b.ext(weave(mQ[2:], vout(0), 1, 2))
    a.ext(timed(b.items, q, PER))
    assert not any(g is xd[2] or g[-1].tag == 'w' for g in q)
    a.items.append(('wait_both', 'xa'))
    a.I('s_barrier')
    st(a, 'B')
    q[:0] = dma(vD0, sW20, 0, 20, 'w')

    def mb(pq, pm):
        o = []
        for k in range(4):
            ri, wh = k >> 1, k & 1
            tb = (((0, 8), (16, 0)), ((24, 32), (32, 40)))[pm][pq][ri]
            acc = vr((AP, AM)[pm], 16)
            o.append('%s %s, %s, %s, %s' % (M32, acc, vr(WA + 16 * pq + 4 * k, 4), vr(TB + tb + 4 * wh, 4), acc if (pq or pm or k or not layer) else '0'))
        return o
    vrd = lambda pq: ['ds_read_b128 %s, v%d offset:%d' % (vr(WA + 16 * pq + 4 * k, 4), vVR[k], pq * 12288) for k in range(4)]
    vq = vout(1)
    S, XU = WD, WD + 20

    def stat(es, first):
        o = []
        for e in es:
            if first:
                o.append('v_add_f32 v%d, v%d, v%d' % (S, XE(e), XE(e + 1)))
                o.append('v_mul_f32 v%d, v%d, v%d' % (S + 1, XE(e), XE(e)))
                first = False
            else:
                o.append('v_add_f32 v%d, v%d, v%d' % (S, S, XE(e)))
                o.append('v_fmac_f32 v%d, v%d, v%d' % (S + 1, XE(e), XE(e)))
                o.append('v_add_f32 v%d, v%d, v%d' % (S, S, XE(e + 1)))
            o.append('v_fmac_f32 v%d, v%d, v%d' % (S + 1, XE(e + 1), XE(e + 1)))
        return o
    un = unpack(range(XP, XP + 10), lambda e: XU + e if e < 10 else XE(e))
    radd = ['v_add_f32 v%d, v%d, v%d' % (AP + e, AP + e, XU + e) for e in range(10)]
    a.ext(vrd(0))
    if layer:
        a.I('ds_read_b128 %s, v%d offset:128' % (vr(XP + 4, 4), vA0))
        a.I('ds_read_b64 %s, v%d' % (vr(XP + 8, 2), vA2))
        a.I('ds_read_b128 %s, v%d' % (vr(XP, 4), vA0))
    else:
        un, radd = [], []
    a.ext(take(q, 1))
    a.ext(vq[:9])
    mm = mb(0, 0)
    a.ext([mm[0]] + vq[9:14] + [mm[1]] + vq[14:19] + [mm[2]] + vq[19:] + un[10:12] + [mm[3]] + take(q, 1) + un[12:])
    a.I('s_waitcnt lgkmcnt(0)')
    a.I('s_barrier')
    mm = mb(0, 1) + mb(1, 0) + mb(1, 1)
    a.ext([mm[0]] + vrd(1) + un[:2] + [mm[1]] + un[2:8] + [mm[2]] + un[8:10] + radd[:4] + [mm[3]] + radd[4:])
    li = 0
    for i in range(4, 10):
        a.I(mm[i])
        a.ext(take(q, 1) if i % 2 == 0 else [])
        a.ext(late[li:li + 5 + i % 2])
        li += 5 + i % 2
    s0 = stat(range(0, 10, 2), True)
    a.I(mm[10])
    a.ext(take(q, 1) + s0[:5])
    a.I(mm[11])
    b = Asm()
    b.ext(s0[5:])
    st(b, 'B')
    b.ext(stat(range(10, 20, 2), False))
    red = []
    for m in ('quad_perm:[1,0,3,2]', 'quad_perm:[2,3,0,1]', 'row_half_mirror', 'row_mirror'):
        for i in range(2):
            red.append('v_add_f32_dpp v%d, v%d, v%d %s row_mask:0xf bank_mask:0xf' % (S + i, S + i, S + i, m))
    b.ext(weave(red, late[li:], 1, 0.5))
    b.I('v_mov_b32 v%d, v%d' % (S + 2, S))
    b.I('v_mov_b32 v%d, v%d' % (S + 3, S + 1))
    b.I('v_permlane16_swap_b32 v%d, v%d' % (S, S + 2))
    b.I('v_permlane16_swap_b32 v%d, v%d' % (S + 1, S + 3))
    b.I('v_add_f32 v%d, v%d, v%d' % (S, S, S + 2))
    b.I('v_add_f32 v%d, v%d, v%d' % (S + 1, S + 1, S + 3))
    ln_coef(b, S, S + 1, S + 2, S + 4, None, LOG2E)
    ZP = WA
    pkf = lambda r: 'v_pk_fma_f32 %s, %s, %s, %s op_sel_hi:[1,0,0]' % (vr(r, 2), vr(r, 2), vr(S + 2, 2), vr(S + 4, 2))
    cz = lambda i: 'v_cvt_pk_bf16_f32 v%d, v%d, v%d' % (ZP + i, XE(2 * i), XE(2 * i + 1))
    for i in range(4):
        b.I(pkf(AP + 2 * i))
    for i in range(4):
        b.I(cz(i))
    b.I('ds_write_b128 v%d, %s' % (vA0, vr(ZP, 4)))
    for r in (AP + 8, AM + 10, AM + 8, AM + 6, AM + 4):
        b.I(pkf(r))
    for i in range(4, 8):
        b.I(cz(i))
    b.I('ds_write_b128 v%d, %s offset:128' % (vA0, vr(ZP + 4, 4)))
    b.I(pkf(AM + 2))
    b.I(pkf(AM))
    b.I(cz(8))
    b.I(cz(9))
    b.I('ds_write_b64 v%d, %s' % (vA2, vr(ZP + 8, 2)))
    a.ext(timed(b.items, q, PER))
    a.I('v_rcp_f32 v%d, v%d' % (S + 1, S + 2))
    a.I('v_mul_f32 v%d, %s, v%d' % (S, fl(1.0 / 640), S))
    a.I('s_waitcnt lgkmcnt(0)')
    a.I('s_barrier')
    for it in range(3):
        a.I('ds_read_b128 %s, v%d offset:%d' % (vr(WD + 8 + 4 * it, 4), vRB, 1024 * it))
    a.I('buffer_store_dwordx2 %s, v%d, %s, %s offen sc1' % (vr(S, 2), vRo, WS, sRS), tag='zs')
    for it in range(3):
        a.I('buffer_store_dwordx4 %s, v%d, %s, %s offen sc1' % (vr(WD + 8 + 4 * it, 4), vZS[it], WS, sZS), tag='zs')
    a.I('s_barrier')
    st(a, 'AB')
    a.I('s_lshl_b32 %s, %s, 9' % (sZF, sCLS))
    a.I('s_add_u32 %s, %s, 0x%x' % (sZF, sZF, LB + oFL))
    a.I('s_mul_i32 %s, %s, 9216' % (sW9, sW))
    w1 = [g for g in q if g[-1].tag == 'w']
    rest = [g for g in q if g[-1].tag != 'w']
    sys.stderr.write('layer %d after KB: w1 left %d, wda left %d\n' % (layer, len(w1), len(rest)))
    return w1, dma(vD0, sW9, L_V, 9, 't3'), rest


def gemms(a, st, layer, qw, q3, q):
    LB = LB0 + layer * LBS
    LN = LB + LBS
    ly = str(layer)
    O = lambda name, d0, d1=None: opt(name + ly, opt(name, d0 if (layer == 0 or d1 is None or not PERS) else d1))
    vLD, vZ, vL8, vC, vSg, vH = (vL16, 1, 2), 3, 4, 5, 6, 7
    vS0, vS1 = 8, 9
    HP, ACC, ET, Z = 16, [24, 40, 56, 72], 88, 96
    WB = 160
    sZ, sZc, sHS, sH6, sW5, sT6, sC2 = sT[0], sT[1], sT[3], sT[4], sT[5], sT[6], sT[7]
    sQ, sZp = sT[2], sT[12]
    b = Asm()
    b.I('v_mov_b32 v%d, 1' % vSg)
    b.I('s_lshl_b32 %s, %s, 2' % (sZ, sG))
    b.I('s_add_u32 %s, %s, %s' % (sZ, sZ, sW))
    b.I('s_lshl_b32 %s, %s, 9' % (sZc, sZ))
    b.I('s_add_u32 %s, %s, 0x%x' % (sZc, sZc, LB + oFL))
    b.I('s_lshr_b32 %s, %s, 2' % (sZp, sMU))
    b.I('s_lshl_b32 %s, %s, 7' % (sZp, sZp))
    b.I('s_add_u32 %s, %s, %s' % (sZp, sZp, sZc))
    b.I('s_lshl_b32 s3, %s, 6' % sW)
    b.I('v_add_u32 v%d, s3, v0' % vH)
    b.I('v_lshrrev_b32 v%d, 2, v%d' % (vH, vH))
    b.I('v_min_u32 v%d, 1, v%d' % (vH, vH))
    b.I('v_lshlrev_b32 v%d, 31, v%d' % (vH, vH))
    b.I('v_lshl_add_u32 v%d, v0, 7, v%d' % (vH, vH))
    b.I('s_mul_i32 %s, %s, 110592' % (sHS, sZ))
    b.I('s_mul_i32 %s, %s, 40960' % (sZ, sZ))
    b.I('s_add_u32 %s, %s, 0x%x' % (sZ, sZ, LB + oZ))
    b.I('v_lshrrev_b32 v%d, 4, v0' % vZ)
    b.I('v_and_b32 v%d, 15, v0' % vL8)
    b.I('v_lshlrev_b32 v%d, 4, v%d' % (vL8, vL8))
    b.I('v_lshl_add_u32 v%d, v%d, 9, v%d' % (vZ, vZ, vL8))
    b.I('v_add_u32 v%d, %s, v%d' % (vZ, sZ, vZ))
    b.I('v_lshlrev_b32 v%d, 3, v0' % vL8)
    b.I('v_add_u32 v%d, 0x10000, v%d' % (vLD[1], vL16))
    b.I('v_add_u32 v%d, 0x20000, v%d' % (vLD[2], vL16))
    b.I('s_add_u32 %s, %s, 0x%x' % (sHS, sHS, LB + oH))
    b.I('s_lshr_b32 s3, %s, 2' % sMU)
    b.I('s_sub_u32 %s, %s, s3' % (sH6, sMU))
    b.I('s_lshl_b32 %s, %s, 10' % (sH6, sH6))
    b.I('s_add_u32 %s, %s, %s' % (sH6, sH6, sHS))
    b.I('s_add_u32 %s, %s, 98304' % (sH6, sH6))
    b.I('s_mul_i32 s3, s3, 24576')
    b.I('s_add_u32 %s, %s, s3' % (sHS, sHS))
    b.I('s_lshl_b32 s3, %s, 11' % sQ)
    b.I('s_add_u32 %s, %s, s3' % (sHS, sHS))
    b.I('s_mul_i32 %s, %s, 5120' % (sW5, sW))
    b.I('s_add_u32 %s, %s, 1' % (sT6, sQ))
    b.I('s_lshr_b32 %s, %s, 2' % (sT6, sT6))
    b.I('s_lshl_b32 %s, %s, 31' % (sT6, sT6))
    b.I('s_mov_b32 %s, %s' % (sC2, fl(LOG2E * LOG2E)))
    set1 = b.items
    b = Asm()
    b.I('s_lshl_b32 %s, %s, 2' % (sHF, sG))
    b.I('s_lshr_b32 s3, %s, 2' % sMU)
    b.I('s_add_u32 %s, %s, s3' % (sHF, sHF))
    b.I('s_lshl_b32 %s, %s, 1' % (sHF, sHF))
    b.I('s_lshr_b32 s3, %s, 1' % sW)
    b.I('s_add_u32 %s, %s, s3' % (sHF, sHF))
    b.I('s_lshl_b32 %s, %s, 7' % (sHF, sHF))
    b.I('s_add_u32 %s, %s, 0x%x' % (sHF, sHF, LB + oFL + 256 * 128))
    b.I('s_lshl_b32 %s, %s, 2' % (sHC, sG))
    b.I('s_add_u32 %s, %s, %s' % (sHC, sHC, sW))
    b.I('s_lshl_b32 %s, %s, 1' % (sHC, sHC))
    b.I('s_add_u32 %s, %s, %s' % (sHC, sHC, sHB))
    b.I('s_lshl_b32 %s, %s, 7' % (sHC, sHC))
    b.I('s_add_u32 %s, %s, 0x%x' % (sHC, sHC, LB + oFL + 256 * 128))
    sHP = sT[13:17]
    b.I('s_lshl_b32 %s, %s, 1' % (sT[17], sG))
    b.I('s_add_u32 %s, %s, %s' % (sT[17], sT[17], sHB))
    b.I('s_mul_i32 %s, %s, %d' % (sT[17], sT[17], 2 * 110592))
    b.I('s_mul_i32 s3, %s, 24576' % sW)
    b.I('s_add_u32 %s, %s, s3' % (sT[17], sT[17]))
    b.I('s_add_u32 %s, %s, 0x%x' % (sT[17], sT[17], LB + oH))
    for p in range(4):
        b.I('s_xor_b32 %s, %s, %d' % (sT[18], sW, 3 - p))
        b.I('s_lshr_b32 s3, %s, 1' % sT[18])
        b.I('s_mul_i32 s3, s3, 110592')
        b.I('s_add_u32 %s, %s, s3' % (sHP[p], sT[17]))
        b.I('s_and_b32 s3, %s, 1' % sT[18])
        b.I('s_lshl_b32 s3, s3, 10')
        b.I('s_add_u32 %s, %s, s3' % (sHP[p], sHP[p]))
    set2 = b.items

    NG = O('ng', 2)
    groups = [[(t, ks, m) for t in range(3) for m in range(2)] for ks in range(5 * NG)]
    for kg in range(NG, 4):
        tm = [(t, m) for t in range(3) for m in range(2)] if kg < 3 else [(t, m) for m in range(2) for t in range(3)]
        groups += [[(t, 5 * kg + i, m) for i in range(5)] for t, m in tm]
    groups += [[(t, 5 * kg + i, m) for i in range(5)] for t in range(3, 7) for m in range(2) for kg in range(4)]
    gstart = [0]
    for gr in groups:
        gstart.append(gstart[-1] + 2 * len(gr))
    DST = [0, 40960, 81920, 20480, 61440, 102400]
    accof = [0, 1, 2, 3, 0, 1, 2]
    wbuf = lambda gi, i: vr(WB + 20 * (gi & 1) + 4 * i, 4, 'a') if i < 5 else vr(ACC[3] + 4 * (gi & 1), 4)

    def grp_reads(n):
        o = []
        for i, (t, ks, m) in enumerate(groups[n]):
            kg = ks // 5
            off = t * 40960 + kg * 10240 if t < 4 else DST[2 * (t - 4) + (kg >> 1)] + (kg & 1) * 10240
            off += m * 5120 + (ks % 5) * 1024
            o.append('ds_read_b128 %s, v%d offset:%d' % (wbuf(n, i), vLD[off >> 16], off & 0xffff))
        return o

    q[:0] = qw + q3
    nA = max(O('nA', 8), len(qw))
    qa = take1(q, nA)
    a.ext(take(qa, 4))
    a.ext(timed(set1, qa, 24))
    a.ext(take(qa, 99))
    a.wait_vm('zs')
    a.I('s_barrier')
    a.I('buffer_atomic_add v%d, v%d, %s, %s offen sc1' % (vSg, vH, WS, sZF))
    st(a, 'B')
    pr = (vC, vS0, vS1)
    a.ext(take(q, O('nB', 8, 2)))
    dB = O('dB', 16)
    for r in range(3):
        a.ext(set2[r * dB:(r + 1) * dB if r < 2 else 99])
        a.ext(check_issue(pr[r], sZp))
        a.ext(take(q, O('nC', 3, 2)))
    sys.stderr.write('into GEMM1: left %d\n' % len(q))
    a.wait_vm('w')
    a.I('s_barrier')
    a.ext(grp_reads(0))
    a.ext(poll_test(pr, sZp, 2, 'zf' + ly))
    st(a, 'ACPQ')
    zq = []
    for ks in range(20):
        for rt in range(2):
            zq.append(([Ins('v_add_u32 v%d, 4096, v%d' % (vZ, vZ))] if (ks and ks % 2 == 0 and rt == 0) else []) +
                      [Ins('buffer_load_dwordx4 %s, v%d, %s, 0 offen offset:%d sc1' % (vr(Z + 8 * ks + 4 * rt, 4), vZ, WS, (ks & 1) * 2048 + rt * 256), 'z%d' % (ks if ks < 5 * NG else ks // 5 * 5))])
    a.ext(take(zq, O('nz', 11)))
    a.I('s_waitcnt lgkmcnt(0)')

    prevd = [0]

    def half_dma(h):
        g = dma(vD0, sW5, DST[h], 5, 't%d' % (4 + h // 2))
        d = (8 + h) * 20480 - DST[h]
        pre = [Ins('v_add_u32 v%d, 0x%x, v%d' % (vD0, (d - prevd[0]) & 0xffffffff, vD0))]
        prevd[0] = d
        if h == 4:
            pre.append(Ins('v_add_u32 v%d, %s, v%d' % (vD0, sT6, vD0)))
        g[0] = pre + g[0]
        return g

    def epg(t):
        A = ACC[accof[t]]
        o = []
        for r in range(8):
            o.append('v_exp_f32_e64 v%d, -v%d' % (ET + r, A + r))
            o.append('v_fma_f32 v%d, v%d, %s, %s' % (ET + r, ET + r, sC2, sC2))
        for r in range(8):
            o.append('v_rcp_f32 v%d, v%d' % (ET + r, ET + r))
            o.append('v_mul_f32 v%d, v%d, v%d' % (A + r, A + r, ET + r))
        return o

    def epu(t):
        A = ACC[accof[t]]
        o = []
        for p in range(4):
            for r in (2 * p, 2 * p + 1):
                o.append('v_mul_f32 v%d, v%d, v%d' % (A + 8 + r, A + 8 + r, A + r))
            o.append('v_cvt_pk_bf16_f32 v%d, v%d, v%d' % (HP + 4 * (p >> 1) + 2 * (t & 1) + (p & 1), A + 8 + 2 * p, A + 9 + 2 * p))
        return o

    def hstore(e):
        if e < 3:
            return [Ins('buffer_store_dwordx4 %s, v%d, %s, %s offen offset:%d sc1' % (vr(HP + 4 * rt, 4), vL16, WS, sHS, 1024 * rt), 'hs%d' % e) for rt in range(2)] + \
                   [Ins('s_add_u32 %s, %s, 8192' % (sHS, sHS))]
        return [Ins('buffer_store_dwordx2 %s, v%d, %s, %s offen offset:%d sc1' % (vr(HP + 4 * rt, 2), vS0, WS, sH6, 512 * rt), 'hs3') for rt in range(2)]

    def signal(e):
        return [Ins('v_mov_b32 v%d, 0x%x' % (vSg, 1 << (8 * e) if e < 3 else 1)),
                [('wait_vm', 'hs%d' % e), Ins('buffer_atomic_add v%d, v%d, %s, %s offen offset:%d sc1' % (vSg, vFl, WS, sHF if e < 3 else sZc, 0 if e < 3 else 4))]]

    hs = [[('v', r + 4 * i) for r in (ACC[3], ACC[0], 144, 160) for i in range(4)],
          [('v', r + 4 * i) for r in (ACC[1], 96, 112, 128) for i in range(4)],
          [('a', 4 * i) for i in range(16)],
          [('v', 144 + 4 * i) for i in range(6)]]
    wsl = [('a', 184 + 4 * i) for i in range(4)] + [('a', 64 + 4 * i) for i in range(4)] + [('v', 168), ('v', 172)] + [('v', 96 + 4 * i) for i in range(8)] + [('a', 80 + 4 * i) for i in range(12)]
    wb2 = [('a', 200 + 4 * i) for i in range(14)] + [('a', 160 + 4 * i) for i in range(6)]
    wd = lambda ps, i, n: ('a', 80 * ps + 20 * i + 4 * n) if ps < 2 else (wb2[5 * i + n] if ps == 2 else wsl[6 * n + i])
    R = lambda s, n=4, o=0: vr(s[1] + o, n, s[0])

    def hload(ps, p):
        o = []
        tag = 'h%d%d' % (ps, p)
        if ps < 3:
            for i in range(4):
                g = []
                if i % 2 == 0:
                    g += [Ins('v_add_u32 v%d, %s, v%d' % (vH, sHP[p], vL16)), Ins('s_add_u32 %s, %s, 4096' % (sHP[p], sHP[p]))]
                g.append(Ins('buffer_load_dwordx4 %s, v%d, %s, 0 offen offset:%d sc1' % (R(hs[ps][4 * p + i]), vH, WS, (i & 1) * 2048), tag))
                o.append(g)
        else:
            for i in range(12):
                g = [Ins('v_add_u32 v%d, 4096, v%d' % (vHs, vHs))] if i in (4, 8) else []
                g.append(Ins('buffer_load_dwordx2 %s, v%d, %s, 0 offen offset:%d sc1' % (R(hs[3][i >> 1], 2, 2 * (i & 1)), vHs, WS, (i % 4) * 1024), tag))
                o.append(g)
        return o

    sc = Sched()
    G = 560
    bar = {(110 if NG < 2 else 108): (None if NG < 2 else 'z9'), 230: 't3', 310: 't4', 390: 't5', 470: 't6'}
    for gi in range(1, len(groups)):
        n = gstart[gi]
        if n in bar:
            sc.add([('wait_both', bar[n]), 's_barrier'], n - 1, n - 1)
        elif n <= 60 * NG or n in (120, 180):
            sc.add([('wait_both', 'z%d' % groups[gi][0][1])], n - 1, n - 1)
        else:
            sc.add('s_waitcnt lgkmcnt(0)', n - 1, n - 1)
        for i, x in enumerate(grp_reads(gi)):
            sc.add(x, gstart[gi - 1], gstart[gi - 1] + 1 + (i * 3) // 4)

    def check(e, n0, n1):
        so = sHC if e < 3 else sC3
        if e >= 2 and O('sck', 1):
            name = 'h%d%s' % (e, ly)
            slow.append((None, so, 8 * e + 3 if e < 3 else 4, name))
            sc.add('s_load_dword %s, s[52:53], %s glc' % (sCK, so), n0, n0 + 2)
            sc.add(['s_waitcnt lgkmcnt(0)', 's_bitcmp1_b32 %s, %d' % (sCK, 8 * e + 3 if e < 3 else 4), 's_cbranch_scc0 %s_slow' % name, ('label', name + '_ok')], n1, n1 + 3)
            return n1 + 1
        sc.asap(check_issue(vC, so), n0, n0 + 3)
        ct = check_test(vC, so, 8 * e + 3 if e < 3 else 4, 'h%d%s' % (e, ly))
        sc.add([('wait_vm', 'ck'), ct[0]], n1, n1 + 2)
        sc.add(ct[1], n1 + 2, n1 + 4)
        return n1 + 3
    SUM, TMP, PK, vA0, vA2, vRs, vHs = 24, 44, 64, 8, 9, 16, 17
    vP, vPR = (3, 10, 11), 23
    sX1, sO, sC3, sRS = sT[0], sT[8], sT[9], sT[10]
    e0, e1, e2, e3 = O('e0', 290), O('e1', 376), O('e2', 497), G + O('e3', 13)
    ze = O('zend', 116)
    sc.paced(zq, 0, ze)
    q3l = [g for g in q if g[-1].tag == 't3']
    qd = [g for g in q if g[-1].tag != 't3']
    l1 = q3l + half_dma(0) + half_dma(1) + half_dma(2)
    r1 = O('r1', 42)
    sc.paced(l1 + take1(qd, max(0, (232 - ze) * 10 // r1 - len(l1))), ze, 232)
    l2 = half_dma(3) + half_dma(4) + half_dma(5)
    sc.paced(take1(l2, (e0 - 232) * 10 // r1), 232, e0)
    sts = dma(vS1, sT[19], 122880, 8, 't6')
    sts[0] = [Ins('s_mul_i32 %s, %s, 7680' % (sT[19], sW)), Ins('s_mul_i32 s3, %s, 276480' % sJJ), Ins('s_add_u32 s3, s3, 0x%x' % (WDP + 245760 - 122880)),
              Ins('v_add_u32 v%d, s3, v%d' % (vS1, vL16))] + sts[0]
    n2 = len(l2)
    l3 = l2 + sts + qd
    n3 = O('n3', 14, 12)
    if n2:
        sc.paced(take1(l3, n2), e0 + 6, 312)
    sc.paced(take1(l3, n3 - n2), 312, e1)
    ct0 = O('ct0', 436)
    if l3:
        sc.paced(take1(l3, O('n4', 10, 8)), e1 + 6, ct0)
    sc.asap(epg(0), 196, 260)
    sc.asap(epg(1), 206, e0 - 6)
    sc.asap(epu(0), 226, e0 - 8)
    sc.asap(epu(1), 236, e0 + 2)
    sc.asap(hstore(0), e0, e0 + 6)
    sc.asap(epg(2), 240, 340)
    sc.asap(epu(2), e0 + 2, e1 - 8)
    sc.asap(epg(3), 286, e1 - 6)
    sc.asap(epu(3), 326, e1 + 2)
    sc.asap(signal(0), O('sg0', 348), O('sg0', 348) + 3)
    sc.asap(hstore(1), e1, e1 + 6)
    sc.asap(epg(4), 366, 430)
    sc.asap(epu(4), 406, 440)
    n = check(0, O('ck0', 384), ct0)
    sc.asap(signal(1), O('sg1', 434), O('sg1', 434) + 4)
    sSa = sT[19]
    hst = dma(vS1, sSa, 0, 8, 'hst')
    sc.asap([Ins('s_lshr_b32 %s, %s, 1' % (sSa, sW)), Ins('s_mul_i32 %s, %s, 20480' % (sSa, sSa)), Ins('s_mul_i32 s3, %s, 10240' % sW),
              Ins('s_add_u32 %s, %s, s3' % (sSa, sSa)), Ins('s_min_u32 s3, %s, %s' % (sHP[2], sHP[3])), Ins('s_sub_u32 s3, s3, %s' % sSa),
              Ins('v_add_u32 v%d, s3, v%d' % (vS1, vL16)), Ins('s_sub_u32 s3, %s, s3' % sHP[2]), Ins('v_add_u32 v10, s3, v%d' % vL16),
              Ins('s_add_u32 %s, %s, 8192' % (sHP[2], sHP[2])), Ins('s_add_u32 %s, %s, 8192' % (sHP[3], sHP[3]))], 400, 430)
    sc.paced(hload(0, 0) + hload(0, 1) + hst, n, O('h0e', e2 + 4))
    sc.asap(epg(5), 446, 490)
    sc.asap(epu(5), 486, e2 + 2)
    n = check(1, O('ck1', 470), O('ct1', 522))
    sc.asap(hstore(2), e2, e2 + 6)
    if l3:
        sc.paced(take1(l3, O('n5', 5, 4)), e2 + 6, n)
    sc.asap(epg(6), 526, G + 6)
    sc.add('v_add_u32 v%d, %s, v%d' % (vS0, sT6, vL8), 500, 550)
    sc.asap(epu(6), G + 6, e3 + 2)
    sc.asap(signal(2), O('sg2', 558), O('sg2', 558) + 3)
    sc.asap(hstore(3), e3, e3 + 4)
    h1e = G + O('h1e', 40)
    sc.paced(hload(1, 0) + hload(1, 1) + hload(1, 2) + hload(1, 3), n, h1e)
    sc.add([('wait_vm', 'hst')], G - 1, G - 1)
    sc.asap(['ds_read_b128 %s, v10 offset:%d' % (R(hs[0][8 + i]), 2048 * i) for i in range(4)] + ['v_xor_b32 v10, 0x400, v10'] +
            ['ds_read_b128 %s, v10 offset:%d' % (R(hs[0][12 + i]), 2048 * i) for i in range(4)], G + 16, G + 28)
    sc.add(['s_waitcnt lgkmcnt(0)', 's_barrier'], G + 38, G + 38)
    n = check(2, G + O('ck2', 44), G + O('ct2', 84))
    wl = []
    for i in range(54, 60):
        wl.append(([Ins('v_add_u32 v%d, 4096, v%d' % (vWa, vWa))] if i % 4 == 0 else []) +
                  [Ins('buffer_load_dwordx4 %s, v%d, %s, 0 offen offset:%d sc1' % (R(wb2[i - 40]), vWa, WS, (i % 4) * 1024))])
    assert len(l3) <= 14
    sc.paced(l3 + wl, h1e, G + O('wle', 70))
    sc.asap(signal(3), e3 + O('sg3', 56), e3 + O('sg3', 56) + 4)
    sc.paced(hload(2, 0) + hload(2, 1) + hload(2, 2) + hload(2, 3), max(n, G + 81), G + O('h2e', 150))
    srd_ = []
    for c in range(5):
        for i in range(6):
            off = 122880 + i * 5120 + c * 1024
            srd_.append('ds_read_b128 %s, v%d offset:%d' % (R(wd(3, i, c)), vLD[off >> 16], off & 0xffff))
    sc.paced(srd_[:18], G + 92, G + 157, G + 158)
    sc.paced(srd_[18:], G + 161, G + 176, G + 178)
    n = check(3, G + O('ck3', 152), G + O('ct3', 192))
    sc.paced(hload(3, 3), n, n + 12)
    b = Asm()
    b.I('s_lshl_b32 %s, %s, 1' % (sC3, sG))
    b.I('s_add_u32 %s, %s, %s' % (sC3, sC3, sHB))
    b.I('s_lshl_b32 %s, %s, 2' % (sC3, sC3))
    b.I('s_add_u32 %s, %s, %s' % (sC3, sC3, sW))
    b.I('s_lshl_b32 %s, %s, 7' % (sRS, sC3))
    b.I('s_add_u32 %s, %s, 0x%x' % (sRS, sRS, LB + oRS))
    b.I('s_lshr_b32 %s, %s, 1' % (sC3, sC3))
    b.I('s_mul_i32 %s, %s, 40960' % (sX1, sC3))
    b.I('s_mul_i32 %s, %s, 110592' % (sO, sC3))
    b.I('s_lshl_b32 %s, %s, 9' % (sC3, sC3))
    b.I('s_add_u32 %s, %s, 0x%x' % (sC3, sC3, LB + oFL + 4))
    b.I('s_and_b32 %s, %s, 1' % (sT[3], sW))
    b.I('s_lshl_b32 %s, %s, 8' % (sT[3], sT[3]))
    b.I('s_add_u32 %s, %s, %s' % (sX1, sX1, sT[3]))
    b.I('s_add_u32 %s, %s, %s' % (sO, sO, sT[3]))
    b.I('s_add_u32 %s, %s, %s' % (sO, sO, sT[3]))
    b.I('s_add_u32 %s, %s, 0x%x' % (sO, sO, LB + oH + 98304))
    b.I('v_add_u32 v%d, %s, v%d' % (vHs, sO, vL8))
    b.I('s_mul_i32 %s, %s, 5120' % (sT[3], sJJ))
    b.I('s_add_u32 %s, %s, %s' % (sX1, sX1, sT[3]))
    b.I('s_add_u32 %s, %s, 0x%x' % (sX1, sX1, LB + oZ))
    b.I('v_and_b32 v%d, 15, v0' % ET)
    b.I('v_lshlrev_b32 v%d, 3, v%d' % (vRs, ET))
    b.I('v_lshrrev_b32 v%d, 5, v0' % (ET + 1))
    b.I('v_mul_u32_u24 v%d, 2560, v%d' % (ET + 1, ET + 1))
    b.I('v_lshl_add_u32 v%d, v%d, 4, v%d' % (ET, ET, ET + 1))
    b.I('v_bfe_u32 v%d, v0, 4, 1' % (ET + 1))
    b.I('v_lshl_add_u32 v%d, v%d, 3, v%d' % (vA2, ET + 1, ET))
    b.I('v_mul_u32_u24 v%d, 1536, v%d' % (ET + 1, ET + 1))
    b.I('v_add_u32 v%d, v%d, v%d' % (vA0, ET, ET + 1))
    for p in range(4):
        b.I('s_xor_b32 %s, %s, %d' % (sT[3], sW, 3 - p))
        b.I('s_mul_i32 %s, %s, 15360' % (sT[3], sT[3]))
        b.I('s_add_u32 %s, %s, %d' % (sT[3], sT[3], L_P + (p % 3) * 5120))
        b.I('v_add_u32 v%d, %s, v%d' % (vP[p] if p < 3 else vPR, sT[3], vL16))
    vOW, vOR, vOG = 18, (19, 20, 21), (ET + 3, ET + 4, ET + 5)
    if layer == 1:
        srd(b, 8, 62, XB)
        row_nat_soff(b, sO, sT[3])
        b.I('s_mul_i32 %s, %s, 160' % (sT[3], sJJ))
        b.I('s_add_u32 %s, %s, %s' % (sO, sO, sT[3]))
        b.I('s_mul_i32 %s, %s, 2816' % (sT[3], sW))
        b.I('s_add_u32 %s, %s, 61440' % (sT[3], sT[3]))
        b.I('v_and_b32 v%d, 15, v0' % ET)
        b.I('v_mul_u32_u24 v%d, 176, v%d' % (vOW, ET))
        b.I('v_lshrrev_b32 v%d, 4, v0' % ET)
        b.I('v_mad_u32_u24 v%d, v%d, 40, v%d' % (vOW, ET, vOW))
        b.I('v_add_u32 v%d, %s, v%d' % (vOW, sT[3], vOW))
        for it in range(3):
            b.I('v_add_u32 v%d, %d, v0' % (ET, 64 * it))
            b.I('v_mul_u32_u24 v%d, 205, v%d' % (ET + 1, ET))
            b.I('v_lshrrev_b32 v%d, 11, v%d' % (ET + 1, ET + 1))
            b.I('v_add_u32 v%d, v%d, v%d' % (ET + 2, ET, ET + 1))
            b.I('v_lshl_add_u32 v%d, v%d, 4, %s' % (vOR[it], ET + 2, sT[3]))
            b.I('v_mul_u32_u24 v%d, %d, v%d' % (ET + 1, 81920 - 160, ET + 1))
            b.I('v_lshl_add_u32 v%d, v%d, 4, v%d' % (vOG[it], ET, ET + 1))
        b.I('v_lshrrev_b32 v%d, 5, v0' % ET)
        b.I('v_lshl_add_u32 v%d, v%d, 31, v%d' % (vOG[2], ET, vOG[2]))
    else:
        sS = sT[11]
        set_wave_index(b, sS)
        b.I('s_mul_i32 %s, %s, 20480' % (sO, sS))
        b.I('s_add_u32 %s, %s, 0x%x' % (sO, sO, LN + oXA))
        b.I('s_lshl_b32 %s, %s, 10' % (sS, sS))
        b.I('s_add_u32 %s, %s, 0x%x' % (sS, sS, LN + oST))
        b.I('s_lshl_b32 %s, %s, 7' % (sT[12], sJJ))
        b.I('s_add_u32 %s, %s, %s' % (sT[12], sT[12], sS))
        b.I('v_lshrrev_b32 v%d, 4, v0' % ET)
        b.I('v_lshl_add_u32 v21, v%d, 8, v%d' % (ET, vRs))
        b.I('v_min_u32 v%d, 1, v%d' % (ET, ET))
        b.I('v_lshl_add_u32 v20, v%d, 31, v%d' % (ET, vL8))
        tile_xr_addr(b, 18, 19, ET, sT[3])
    sc.asap(b.items[:31], e3 + 8, G + 68)
    sc.asap(b.items[31:], G + 40, G + 140)
    sc.paced([Ins('buffer_load_dwordx2 %s, v%d, %s, %s offen sc1' % (vr(PK + 10, 2), vRs, WS, sRS), 'x1'),
              Ins('buffer_load_dwordx4 %s, v%d, %s, %s offen sc1' % (vr(PK, 4), vA0, WS, sX1), 'x1'),
              Ins('buffer_load_dwordx4 %s, v%d, %s, %s offen offset:512 sc1' % (vr(PK + 4, 4), vA0, WS, sX1), 'x1'),
              Ins('buffer_load_dwordx2 %s, v%d, %s, %s offen offset:1024 sc1' % (vr(PK + 8, 2), vA2, WS, sX1), 'x1')], G + O('wle', 70), G + O('wle', 70) + 12)
    sc.add([('wait_vm', 'x1')], G + 150, G + 150)
    un = unpack(range(PK, PK + 10), lambda i: SUM + i)
    sc.asap([x for i in range(20) for x in (un[i], 'v_fma_f32 v%d, v%d, v%d, v%d' % (SUM + i, SUM + i, PK + 11, PK + 10))], G + 151, 10 ** 5)
    A2 = lambda p: 176 + 20 * p
    for p in range(3):
        for n in range(5):
            m = G + 170 + 20 * p + 4 * n
            sc.add('ds_write_b128 v%d, %s offset:%d' % (vP[p], vr(A2(p) + 4 * n, 4), 1024 * n), m, m + 1)
    nb = G + O('rb', 232)
    sc.add(['s_waitcnt lgkmcnt(0)', 's_barrier'], nb, nb)
    rds = lambda p, r: ['ds_read_b128 %s, v%d offset:%d' % (vr(r + 4 * n, 4), vPR, p * 5120 + n * 1024) for n in range(5)]
    add = lambda r: ['v_pk_add_f32 %s, %s, %s' % (vr(SUM + 2 * i, 2), vr(SUM + 2 * i, 2), vr(r + 2 * i, 2)) for i in range(10)]
    sc.asap(rds(0, A2(0)) + rds(1, A2(1)) + rds(2, A2(2)), nb + 1, nb + 9)
    sc.add('s_waitcnt lgkmcnt(0)', nb + 16, nb + 16)
    sc.asap(['v_add_f32 v%d, v%d, v%d' % (A2(0) + i, A2(0) + i, A2(1) + i) for i in range(20)], nb + 17, 10 ** 6)
    nfin = O('nfin', 20)
    sc.asap(['v_add_f32 v%d, v%d, v%d' % (SUM + i, SUM + i, A2(2) + i) for i in range(nfin)], nb + 17, 10 ** 6 + 1)

    mf = []
    for gi, gr in enumerate(groups):
        for rt in range(2):
            for i, (t, ks, m) in enumerate(gr):
                A = vr(ACC[accof[t]] + 8 * m + 4 * rt, 4)
                mf.append('%s %s, %s, %s, %s' % (M16, A, wbuf(gi, i), vr(Z + 8 * ks + 4 * rt, 4), A if ks else '0'))
    for ps, p in [(ps, p) for ps in range(3) for p in range(4)] + [(3, 3)]:
        if (ps, p) not in ((0, 0), (0, 2), (0, 3)):
            sc.add([('wait_vm', 'h%d%d' % (ps, p))], len(mf) - 1, len(mf) - 1)
        for c in range(5):
            for i in range(4 if ps < 3 else 6):
                A = vr(A2(p) + 4 * c, 4)
                mf.append('%s %s, %s, %s, %s' % (M16, A, R(wd(ps, i, c)), R(hs[ps][4 * p + i if ps < 3 else i]), A if (ps or i) else '0'))

    def hook(n):
        if n in range(opt('p0', 0), opt('p0', 0) + 15 * opt('dp', 10), opt('dp', 10)):
            st(a, 'X')
        for s, pts in (('A', (0, 559)), ('C', (0, 240, 400, 559)), ('D', (559, 639, 719, 799)), ('E', (0, 60, 120, 180, 240, 320, 400)), ('F', (400, 480, 559, 639, 719, 799))):
            if n in pts:
                st(a, s)
    r = sc.run(a, mf, hook)
    sys.stderr.write('sched overflow slots %d, left %d\n' % r)
    st(a, 'ACDFP')
    a.ext(add(A2(2))[nfin // 2:] + add(A2(0)) + add(A2(3)))
    if layer == 1:
        for nn in range(5):
            a.I('v_cvt_pk_bf16_f32 v%d, v%d, v%d' % (PK + 2 * nn, SUM + 4 * nn, SUM + 4 * nn + 1))
            a.I('v_cvt_pk_bf16_f32 v%d, v%d, v%d' % (PK + 2 * nn + 1, SUM + 4 * nn + 2, SUM + 4 * nn + 3))
            a.I('ds_write_b64 v%d, %s offset:%d' % (vOW, vr(PK + 2 * nn, 2), 8 * nn))
        for it in range(3):
            a.I('ds_read_b128 %s, v%d' % (vr(TMP + 4 * it, 4), vOR[it]))
        for it in range(3):
            a.I('buffer_store_dwordx4 %s, v%d, %s, %s offen%s' % (vr(TMP + 4 * it, 4), vOG[it], SA, sO, ' sc1' if opt('osc', 1) else ''))
        return None

    T = TMP
    a.I('v_pk_add_f32 %s, %s, %s' % (vr(T, 2), vr(SUM, 2), vr(SUM + 2, 2)))
    a.I('v_pk_mul_f32 %s, %s, %s' % (vr(T + 2, 2), vr(SUM, 2), vr(SUM, 2)))
    a.I('v_pk_fma_f32 %s, %s, %s, %s' % (vr(T + 2, 2), vr(SUM + 2, 2), vr(SUM + 2, 2), vr(T + 2, 2)))
    for e in range(4, 20, 2):
        a.I('v_pk_add_f32 %s, %s, %s' % (vr(T, 2), vr(T, 2), vr(SUM + e, 2)))
        a.I('v_pk_fma_f32 %s, %s, %s, %s' % (vr(T + 2, 2), vr(SUM + e, 2), vr(SUM + e, 2), vr(T + 2, 2)))
    a.I('v_add_f32 v%d, v%d, v%d' % (T, T, T + 1))
    a.I('v_add_f32 v%d, v%d, v%d' % (T + 1, T + 2, T + 3))
    pk = ['v_cvt_pk_bf16_f32 v%d, v%d, v%d' % (PK + i, SUM + 2 * i, SUM + 2 * i + 1) for i in range(10)]
    qr = lst(quad_reduce, T, T + 1, T + 2)
    a.ext(qr[:2] + pk[:1] + qr[2:8] + pk[1:2] + qr[8:])
    a.I('v_min_u32 v%d, -2, v%d' % (T, T))
    a.I('v_min_u32 v%d, -2, v%d' % (T + 1, T + 1))
    a.I('buffer_store_dwordx2 %s, v20, %s, %s offen sc1' % (vr(T, 2), WS, sT[12]), tag='ss')
    q = []
    if PERS:
        stream_bases(a)
        q = wda_loads()
    at = AT(96, 61440, 139264)
    b = Asm()
    b.ext(pk[2:])
    at.setup(b, '0x%x' % LN, sT[5])
    qa = take1(q, opt('b1', 8))
    a.ext(timed(b.items, qa, 64))
    a.ext(take(qa, 99))
    a.wait_vm('ss')
    st(a, 'D')
    pl = ['buffer_load_dwordx2 %s, v21, %s, %s offen sc1' % (vr(T, 2), WS, sS), 'buffer_load_dwordx2 %s, v21, %s, %s offen offset:128 sc1' % (vr(T + 2, 2), WS, sS)]
    tst = ['v_max3_u32 v%d, v%d, v%d, v%d' % (T + 5, T, T + 1, T + 2), 'v_max_u32 v%d, v%d, v%d' % (T + 5, T + 5, T + 3), 'v_cmp_eq_u32 vcc, -1, v%d' % (T + 5), 's_nop 4']
    a.ext(pl)
    xa_store(a, PK, 18, 19, sO, T + 8)
    a.ext(take(q, opt('b2', 4)))
    a.ext(tst)
    a.I('s_cbranch_vccnz st_slow')
    a.label('st_ok')
    slow2.append((pl, tst))
    b = Asm()
    b.I('v_pk_add_f32 %s, %s, %s' % (vr(T, 2), vr(T, 2), vr(T + 2, 2)))
    quad_reduce(b, T, T + 1, T + 2)
    at.main(b, SUM, T, T + 1, 176, sT[5], 'gs')
    qa = take1(q, opt('b3', 4))
    a.ext(timed(b.items, qa, 100))
    return q


slow2 = []


def take1(q, n):
    r = q[:n]
    del q[:n]
    return r


def emit_slow2(a):
    for pl, tst in slow2:
        a.label('st_slow')
        a.reset()
        a.I('s_mov_b32 %s, 0' % sSP)
        a.label('st_spin')
        if STAMP:
            a.I('s_add_u32 s97, s97, 0x%x' % (1 << 30))
        a.ext(pl)
        a.I('s_add_u32 %s, %s, 1' % (sSP, sSP))
        a.I('s_cmp_ge_u32 %s, %d' % (sSP, SPIN))
        a.I('s_waitcnt vmcnt(0)')
        a.I('s_cbranch_scc1 st_ok')
        a.ext(tst)
        a.I('s_cbranch_vccnz st_spin')
        a.I('s_branch st_ok')


def hop(a, s):
    for w in range(1, 4):
        a.I('s_cmp_eq_u32 %s, %d' % (sW, w))
        a.I('s_cbranch_scc1 hop%d_%d' % (s, w))


def add_pads(txt):
    import subprocess, re, tempfile
    d = tempfile.mkdtemp()
    tmp = txt.replace('ffn_body:', 'ffn_body:\n' + ''.join('hop%d_%d:\n' % (s, w) for s in range(3) for w in range(1, 4)))
    open(d + '/a.s', 'w').write(tmp)
    subprocess.check_call(['clang', '-x', 'assembler', '-target', 'amdgcn-amd-amdhsa', '-mcpu=gfx950', '-c', d + '/a.s', '-o', d + '/a.o'])
    dis = subprocess.check_output(['llvm-objdump', '-d', '--mcpu=gfx950', d + '/a.o'], text=True)
    sym = subprocess.check_output(['llvm-objdump', '-t', d + '/a.o'], text=True)
    base = int(re.search(r'^([0-9a-f]+) .* ffn_body$', sym, re.M).group(1), 16)
    addrs = [x for x in (int(m, 16) for m in re.findall(r'// ?([0-9A-F]{12}):', dis)) if x >= base]
    lines = txt.split('\n')
    i0 = lines.index('ffn_body:')
    i1 = lines.index('ffn_end:')
    idx = [i for i in range(i0 + 1, i1 + 2) if lines[i].startswith('    ')]
    assert len(idx) == len(addrs), (len(idx), len(addrs))
    pads, page = [], 1
    while True:
        cand = [j for j in range(len(idx)) if page * 4096 <= addrs[j] - base + 8 * len(pads) <= page * 4096 + 52]
        if not cand:
            break
        good = [j for j in cand if 'v_mfma' in lines[idx[j - 1]] and 'v_mfma' in lines[idx[j]]] or \
               [j for j in cand if 'v_mfma' in lines[idx[j - 1]] and not lines[idx[j]].startswith('    s_')] or cand
        pads.append(idx[good[0]])
        page += 1
    rets = [lines.index('hop%d_ret:' % s) for s in range(3)] + [10 ** 9]
    ins = {}
    for s in range(3):
        mine = [p for p in pads if (rets[s] if s else 0) < p < rets[s + 1]]
        for w in range(1, 4):
            ch = mine[w - 1::3] if opt('hop', 1) else []
            for k, p in enumerate(ch):
                ins[p] = ['    s_branch .Lps%d' % p] + (['hop%d_%d:' % (s, w)] if k == 0 else []) + \
                         ['.Lpd%d:' % p, '    s_branch ' + ('.Lpd%d' % ch[k + 1] if k + 1 < len(ch) else 'hop%d_ret' % s), '.Lps%d:' % p]
            if not ch:
                ins.setdefault(rets[s], []).append('hop%d_%d:' % (s, w))
        sys.stderr.write('pad set %d: %d\n' % (s, len(mine)))
    out = []
    for i, l in enumerate(lines):
        out += ins.get(i, [])
        out.append(l)
    return '\n'.join(out)


def verify(txt):
    from collections import Counter
    ver, cnt = {}, {}
    for k, l in enumerate(txt[txt.index('ffn_body:'):txt.index('_slow:')].split('\n')):
        if not l.startswith('    '):
            continue
        x = Ins(l.strip())
        if x.kind == 'mfma':
            for o in x.ops[1:3]:
                vs = {ver.get(r) for r in asmlib.regs_of(o)}
                for v in vs:
                    if v is not None:
                        cnt[v] += 1
        for r in x.dst:
            if x.kind in ('vmem', 'ds'):
                ver[r] = (k, x.op + (' sc1' if 'sc1' in l else ''))
                cnt.setdefault(ver[r], 0)
            else:
                ver[r] = None
    h = Counter((v[1], c) for v, c in cnt.items())
    exp = {('buffer_load_dwordx4 sc1', 14): 80, ('buffer_load_dwordx4 sc1', 4): 120, ('buffer_load_dwordx2 sc1', 5): 24}
    for e, n in exp.items():
        assert h[e] == n, (e, h)
    assert h[('buffer_load_dwordx4 sc1', 5)] + h[('ds_read_b128', 5)] == 96, h
    assert h[('ds_read_b128', 1)] >= 60 and h[('ds_read_b128', 2)] >= 560, h
    return txt


def main():
    from phase0 import phase0
    a = Asm()
    if opt('list', 0):
        head = '; @launch kernel=%s grid=(256,1,1) block=(256,1,1) lds=163840\n' % KNAME
    else:
        head = '; @launch grid=(256,1,1) block=(256,1,1) lds=163840\n'
    head += '.amdgcn_target "amdgcn-amd-amdhsa--gfx950"\n.text\n'
    st = Stamps()
    phase0(a, st, KNAME, hop, timed, take)
    q = []
    for layer in range(2):
        st.on = STAMP == 'P' or opt('stl', 0) == layer
        qw, q3, q = kb(a, st, layer, q)
        q = gemms(a, st, layer, qw, q3, q)
    st.flush(a)
    a.I('s_endpgm')
    emit_slow(a)
    emit_slow2(a)
    emit_polls(a)
    a.label('rdy_slow')
    a.reset()
    a.I('s_mov_b32 %s, 0' % sSP)
    a.label('rdy_spin')
    a.I('s_sleep 8')
    a.I('global_load_dword v247, v246, %s sc1' % sDBG)
    a.I('s_add_u32 %s, %s, 1' % (sSP, sSP))
    a.I('v_readfirstlane_b32 %s, v247' % sT[14])
    a.I('s_cmp_ge_u32 %s, 16' % sT[14])
    a.I('s_cbranch_scc1 rdy_ok')
    a.I('s_cmp_lt_u32 %s, %d' % (sSP, SPIN))
    a.I('s_cbranch_scc1 rdy_spin')
    a.I('s_branch rdy_ok')
    a.label('ffn_end')
    a.I('s_endpgm')
    tail = '.section .rodata,"a"\n.p2align 6\n' + kdesc(KNAME, 512, 256)
    sys.stdout.write(add_pads(verify(head + a.finalize() + tail)))


if __name__ == '__main__':
    main()
```

```python
import struct, sys
from asmlib import Asm, Ins, vr, weave

STAMP = None
for _a in sys.argv:
    if _a.startswith('--stamp'):
        STAMP = _a.split('=')[1] if '=' in _a else 'A'


def opt(name, default):
    for x in sys.argv:
        if x.startswith('--%s=' % name):
            return type(default)(x.split('=')[1])
    return default


W1P, WDP = 0x0, 0x440000
LB0, LBS = 0x800000, 0x1400000
oG, oXA, oZ, oX1, oH, oST, oFL = 0x0, 0x280000, 0x500000, 0x780000, 0xA00000, 0x1100000, 0x1180000
oRS = oX1
STAMPS = 0x4000000
WS_BYTES = 0x10000000
XB = 2048 * 640 * 2
W1B = 640 * 1728 * 2
OOB = 0x80000000
LOG2E = 1.4426950408889634

WS, SA, SB = 's[4:7]', 's[8:11]', 's[12:15]'
sW, sG, sMU, sHB, sJJ, sLB, sLN, sLAST = 's16', 's17', 's18', 's19', 's20', 's21', 's22', 's23'
sT = ['s%d' % i for i in range(24, 50)]


def fl(x):
    return '0x%08x' % struct.unpack('<I', struct.pack('<f', x))[0]


def srd(a, base, lo, size):
    a.I('s_mov_b32 s%d, s%d' % (base, lo))
    a.I('s_and_b32 s%d, s%d, 0xffff' % (base + 1, lo + 1))
    a.I('s_mov_b32 s%d, 0x%x' % (base + 2, size))
    a.I('s_mov_b32 s%d, 0x20000' % (base + 3))


class Stamps:
    def __init__(self):
        self.n = 0

    on = True

    def __call__(self, a, sets='A'):
        if not STAMP or STAMP not in sets or not self.on:
            return
        i = self.n
        self.n += 1
        if STAMP in 'XYZ':
            assert i < 16
            a.I('s_memtime s[%d:%d]' % (64 + 2 * i, 65 + 2 * i))
            return
        assert i < 8
        a.I('s_memrealtime s[%d:%d]' % (64 + 4 * i, 65 + 4 * i))
        a.I('s_memtime s[%d:%d]' % (66 + 4 * i, 67 + 4 * i))

    def flush(self, a):
        if not STAMP:
            return
        n0 = self.n
        self.on = True
        a.I('s_waitcnt vmcnt(0)')
        self(a, STAMP)
        a.I('s_lshl_b32 s50, s2, 2')
        a.I('s_add_u32 s50, s50, %s' % sW)
        a.I('s_lshl_b32 s50, s50, 7')
        a.I('s_add_u32 s50, s50, s51')
        a.I('s_add_u32 s50, s50, 0x%x' % STAMPS)
        a.I('s_waitcnt lgkmcnt(0)')
        a.I('v_mov_b32 v1, 0')
        for i in range(8 if STAMP in 'XYZ' else self.n):
            a.I('v_mov_b32 v2, s%d' % (64 + 4 * i))
            a.I('v_mov_b32 v3, s%d' % (66 + 4 * i))
            a.I('buffer_store_dwordx2 v[2:3], v1, %s, s50 offen offset:%d' % (WS, 8 * i))
        a.I('v_mov_b32 v2, s96\nv_mov_b32 v3, s97')
        a.I('buffer_store_dwordx2 v[2:3], v1, %s, s50 offen offset:64' % WS)
        self.n = n0


def entry(a, name, nwg, layer, launch, ptrs, end, first=None):
    a.raw('.globl %s\n.p2align 8\n.type %s,@function' % (name, name))
    a.label(name)
    a.reset()
    a.I('s_cmp_ge_u32 s2, %d' % nwg)
    a.I('s_cbranch_scc1 %s' % end)
    a.I('s_load_dwordx2 s[52:53], s[0:1], 88')
    for i, (b, off, sz) in enumerate(ptrs):
        a.I('s_load_dwordx2 s[%d:%d], s[0:1], %d' % (54 + 2 * i, 55 + 2 * i, off))
    if first:
        first(a)
    a.I('s_mov_b32 %s, 0x%x' % (sLB, LB0 + layer * LBS))
    a.I('s_mov_b32 %s, %d' % (sLAST, layer))
    if STAMP:
        a.I('s_mov_b32 s51, 0x%x' % (launch * 0x80000))
        a.I('s_mov_b32 s96, 0\ns_mov_b32 s97, 0')


def decode(a, lanes=True):
    if lanes:
        a.I('v_lshrrev_b32 v1, 6, v0')
        a.I('v_and_b32 v0, 63, v0')
        a.I('v_readfirstlane_b32 %s, v1' % sW)
    a.I('s_and_b32 %s, s2, 1' % sG)
    a.I('s_lshl_b32 %s, %s, 2' % (sG, sG))
    a.I('s_bfe_u32 s3, s2, 0x20004')
    a.I('s_add_u32 %s, %s, s3' % (sG, sG))
    a.I('s_add_u32 %s, %s, 1' % (sG, sG))
    a.I('s_sub_u32 s3, 16, %s' % sG)
    a.I('s_cmp_eq_u32 s3, 8')
    a.I('s_cselect_b32 s3, 0, s3')
    a.I('s_bitcmp1_b32 s2, 3')
    a.I('s_cselect_b32 %s, s3, %s' % (sG, sG))
    a.I('s_bfe_u32 %s, s2, 0x20001' % sMU)
    a.I('s_lshl_b32 %s, %s, 2' % (sMU, sMU))
    a.I('s_bfe_u32 s3, s2, 0x20006')
    a.I('s_or_b32 %s, %s, s3' % (sMU, sMU))
    a.I('s_bfe_u32 %s, %s, 0x10002' % (sHB, sMU))
    a.I('s_lshr_b32 %s, %s, 3' % (sJJ, sMU))
    a.I('s_lshl_b32 %s, %s, 2' % (sJJ, sJJ))
    a.I('s_or_b32 %s, %s, s3' % (sJJ, sJJ))


def srds(a, ptrs):
    a.I('s_waitcnt lgkmcnt(0)')
    srd(a, 4, 52, WS_BYTES)
    for i, (b, off, sz) in enumerate(ptrs):
        srd(a, b, 54 + 2 * i, sz)


def kdesc(name, vgpr, acc):
    return '''.amdhsa_kernel %s
  .amdhsa_next_free_vgpr %d
  .amdhsa_next_free_sgpr %d
  .amdhsa_accum_offset %d
  .amdhsa_group_segment_fixed_size 0
  .amdhsa_kernarg_size 96
  .amdhsa_user_sgpr_count 2
  .amdhsa_user_sgpr_kernarg_segment_ptr 1
  .amdhsa_system_sgpr_workgroup_id_x 1
  .amdhsa_float_denorm_mode_32 3
.end_amdhsa_kernel
''' % (name, vgpr, 100, acc)


def unpack(srcs, dst):
    o = []
    for i, s in enumerate(srcs):
        o.append('v_lshlrev_b32 v%d, 16, v%d' % (dst(2 * i), s))
        o.append('v_and_b32 v%d, 0xffff0000, v%d' % (dst(2 * i + 1), s))
    return o


def xr_addr(a, vA0, vA2, vm, vi, t):
    a.I('v_lshrrev_b32 v%d, 1, v%d' % (t, vm))
    a.I('v_mul_u32_u24 v%d, 640, v%d' % (t, t))
    a.I('v_and_b32 v%d, 1, v%d' % (t + 1, vm))
    a.I('v_and_b32 v%d, 7, v%d' % (vA0, vm))
    a.I('v_xor_b32 v%d, v%d, v%d' % (vA0, vA0, vi))
    a.I('v_lshl_add_u32 v%d, v%d, 4, v%d' % (vA0, vA0, t))
    a.I('v_and_b32 v%d, 6, v%d' % (vA2, vm))
    a.I('v_xor_b32 v%d, v%d, v%d' % (vA2, vA2, vi))
    a.I('v_lshl_add_u32 v%d, v%d, 4, v%d' % (vA2, vA2, t))
    a.I('v_lshl_add_u32 v%d, v%d, 3, v%d' % (vA2, t + 1, vA2))
    a.I('v_add_u32 v%d, 256, v%d' % (vA2, vA2))
    a.I('v_mul_u32_u24 v%d, 384, v%d' % (t + 1, t + 1))
    a.I('v_add_u32 v%d, v%d, v%d' % (vA0, vA0, t + 1))


def tile_xr_addr(a, vA0, vA2, t, st='s3'):
    a.I('v_lshrrev_b32 v%d, 4, v0' % (t + 2))
    a.I('s_lshl_b32 %s, %s, 2' % (st, sJJ))
    a.I('v_add_u32 v%d, %s, v%d' % (t + 2, st, t + 2))
    a.I('v_and_b32 v%d, 7, v0' % (t + 3))
    xr_addr(a, vA0, vA2, t + 2, t + 3, t)
    a.I('v_bfe_u32 v%d, v0, 3, 1' % t)
    a.I('v_mul_u32_u24 v%d, 10240, v%d' % (t, t))
    a.I('v_add_u32 v%d, v%d, v%d' % (vA0, vA0, t))
    a.I('v_add_u32 v%d, v%d, v%d' % (vA2, vA2, t))


def set_wave_index(a, sd):
    a.I('s_lshl_b32 %s, %s, 1' % (sd, sG))
    a.I('s_add_u32 %s, %s, %s' % (sd, sd, sHB))
    a.I('s_lshl_b32 %s, %s, 2' % (sd, sd))
    a.I('s_add_u32 %s, %s, %s' % (sd, sd, sW))


def tile_blk_soff(a, sd, sbase, off):
    set_wave_index(a, sd)
    a.I('s_mul_i32 %s, %s, 20480' % (sd, sd))
    a.I('s_add_u32 %s, %s, %s' % (sd, sd, sbase))
    a.I('s_add_u32 %s, %s, 0x%x' % (sd, sd, off))


def stats_soff(a, sd, sbase):
    set_wave_index(a, sd)
    a.I('s_lshl_b32 %s, %s, 10' % (sd, sd))
    a.I('s_add_u32 %s, %s, %s' % (sd, sd, sbase))
    a.I('s_add_u32 %s, %s, 0x%x' % (sd, sd, oST))


def row_nat_soff(a, sd, st='s3'):
    a.I('s_lshl_b32 %s, %s, 4' % (sd, sHB))
    a.I('s_add_u32 %s, %s, %s' % (sd, sd, sG))
    a.I('s_lshr_b32 %s, %s, 1' % (st, sW))
    a.I('s_lshl_b32 %s, %s, 5' % (st, st))
    a.I('s_add_u32 %s, %s, %s' % (sd, sd, st))
    a.I('s_and_b32 %s, %s, 1' % (st, sW))
    a.I('s_lshl_b32 %s, %s, 10' % (st, st))
    a.I('s_add_u32 %s, %s, %s' % (sd, sd, st))
    a.I('s_mul_i32 %s, %s, 1280' % (sd, sd))


def ln_coef(a, vS, vQ, vR, vN, t, scale=None):
    a.I('v_mul_f32 v%d, %s, v%d' % (vN, fl(-1.0 / 640), vS))
    a.I('v_mul_f32 v%d, %s, v%d' % (vR, fl(1.0 / 640), vQ))
    a.I('v_fma_f32 v%d, -v%d, v%d, v%d' % (vR, vN, vN, vR))
    a.I('v_max_f32 v%d, 0, v%d' % (vR, vR))
    a.I('v_add_f32 v%d, %s, v%d' % (vR, fl(1e-5), vR))
    a.I('v_rsq_f32 v%d, v%d' % (vR, vR))
    if scale:
        a.I('v_mul_f32 v%d, %s, v%d' % (vR, fl(scale), vR))
    a.I('v_mul_f32 v%d, v%d, v%d' % (vN, vN, vR))


def quad_reduce(a, r0, r1, t):
    for op in ('v_permlane16_swap_b32', 'v_permlane32_swap_b32'):
        a.I('v_mov_b32 v%d, v%d' % (t, r0))
        a.I('v_mov_b32 v%d, v%d' % (t + 1, r1))
        a.I('%s v%d, v%d' % (op, r0, t))
        a.I('%s v%d, v%d' % (op, r1, t + 1))
        a.I('v_add_f32 v%d, v%d, v%d' % (r0, r0, t))
        a.I('v_add_f32 v%d, v%d, v%d' % (r1, r1, t + 1))


def xa_store(a, PK, vA0, vA2, so, t, tag=None):
    a.I('buffer_store_dwordx4 %s, v%d, %s, %s offen sc1' % (vr(PK, 4), vA0, WS, so))
    a.I('buffer_store_dwordx4 %s, v%d, %s, %s offen offset:128 sc1' % (vr(PK + 4, 4), vA0, WS, so))
    a.I('v_mov_b32 v%d, v%d' % (t, PK + 8))
    a.I('v_mov_b32 v%d, v%d' % (t + 1, PK + 9))
    a.I('v_mov_b32 v%d, v%d' % (t + 2, PK + 8))
    a.I('v_mov_b32 v%d, v%d' % (t + 3, PK + 9))
    a.I('v_bfe_u32 v%d, v0, 4, 1' % (t + 4))
    a.I('v_lshl_add_u32 v%d, v%d, 31, v%d' % (t + 4, t + 4, vA2))
    a.I('v_permlane16_swap_b32 v%d, v%d' % (t, t + 2))
    a.I('v_permlane16_swap_b32 v%d, v%d' % (t + 1, t + 3))
    a.I('buffer_store_dwordx4 %s, v%d, %s, %s offen sc1' % (vr(t, 4), t + 4, WS, so), tag)


def tile_via_lds(b, nch, pitch, base, RW, PK, nt, vW, vR, t):
    b.I('s_mul_i32 s3, %s, %d' % (sW, 16 * pitch))
    b.I('s_add_u32 s3, s3, %d' % base)
    b.I('v_lshrrev_b32 v%d, 3, v0' % vW)
    b.I('v_mul_u32_u24 v%d, %d, v%d' % (vW, pitch, vW))
    b.I('v_and_b32 v%d, 7, v0' % t)
    b.I('v_lshl_add_u32 v%d, v%d, 4, v%d' % (vW, t, vW))
    b.I('v_add_u32 v%d, s3, v%d' % (vW, vW))
    b.I('v_and_b32 v%d, 15, v0' % vR)
    b.I('v_mul_u32_u24 v%d, %d, v%d' % (vR, pitch, vR))
    b.I('v_lshrrev_b32 v%d, 4, v0' % t)
    b.I('v_mad_u32_u24 v%d, v%d, 40, v%d' % (vR, t, vR))
    b.I('v_add_u32 v%d, s3, v%d' % (vR, vR))
    b.I('s_mul_i32 s3, %s, 160' % sJJ)
    b.I('s_and_b32 s3, s3, 127')
    b.I('v_add_u32 v%d, s3, v%d' % (vR, vR))
    wr = ['ds_write_b128 v%d, %s offset:%d' % (vW, vr(RW + 8 * i + 4 * s, 4), 128 * i + 8 * pitch * s) for i in range(nch) for s in range(2)]
    rd = ['ds_read_b64 %s, v%d offset:%d' % (vr(PK + 12 * k + 2 * n, 2), vR, 160 * k + 8 * n) for k in range(nt) for n in range(5)]
    return wr + rd


class AT:
    def __init__(self, base, lds_z, lds_b):
        self.F = base
        self.ZW, self.ZR, self.BW = base + 8, base + 9, base + 10
        self.BR = (base + 11, base + 12, base + 13)
        self.GA = (base + 14, base + 15, base + 16)
        self.T = base + 17
        self.lds_z, self.lds_b = lds_z, lds_b
        self.GA2 = None

    def setup(self, a, sOut, sGo):
        T = self.T
        a.I('v_and_b32 v%d, 15, v0' % T)
        a.I('v_lshrrev_b32 v%d, 1, v%d' % (T + 1, T))
        a.I('v_mul_u32_u24 v%d, 336, v%d' % (self.BW, T + 1))
        a.I('s_lshl_b32 s3, %s, 3' % sW)
        a.I('v_add_u32 v%d, s3, v%d' % (T + 1, T + 1))
        a.I('v_and_b32 v%d, 1, v0' % (T + 2))
        a.I('v_lshl_add_u32 v%d, v%d, 3, v%d' % (self.BW, T + 2, self.BW))
        a.I('v_cvt_f32_u32 v%d, v%d' % (T + 3, T + 2))
        a.I('v_mul_f32 v%d, %s, v%d' % (T + 3, fl(0.25), T + 3))
        a.I('v_cmp_eq_u32 vcc, 0, v%d' % (T + 1))
        a.I('v_lshlrev_b32 v%d, 5, v%d' % (T + 2, T + 2))
        a.I('v_lshrrev_b32 v%d, 5, v0' % (T + 4))
        a.I('v_cndmask_b32 v%d, v%d, v%d, vcc' % (T + 1, T + 1, T + 2))
        a.I('v_cndmask_b32_e64 v%d, v%d, 0, vcc' % (T + 3, T + 3))
        a.I('v_cvt_f32_u32 v%d, v%d' % (T + 1, T + 1))
        a.I('v_mul_f32 v%d, %s, v%d' % (T + 1, fl(1.0 / 64), T + 1))
        a.I('v_bfe_u32 v%d, v0, 4, 1' % (T + 2))
        a.I('v_lshlrev_b32 v%d, 5, v%d' % (T + 2, T + 2))
        a.I('v_lshl_add_u32 v%d, v%d, 1, v%d' % (T + 2, T + 4, T + 2))
        a.I('v_cvt_f32_u32 v%d, v%d' % (T + 2, T + 2))
        a.I('v_fma_f32 v%d, v%d, v%d, v%d' % (T + 3, T + 1, T + 2, T + 3))
        prev = None
        for ks in range(2):
            for p in range(4):
                d = self.F + 4 * ks + p
                tt = T + 2 + 2 * (p & 1)
                k = lambda j: 8 * (j & 3) + 4 * (j >> 2) + ks
                a.I('v_fmamk_f32 v%d, v%d, %s, v%d' % (d, T + 1, fl(k(2 * p)), T + 3))
                a.I('v_fmamk_f32 v%d, v%d, %s, v%d' % (tt, T + 1, fl(k(2 * p + 1)), T + 3))
                if prev:
                    a.I(prev)
                a.I('v_cos_f32 v%d, v%d' % (d, d))
                a.I('v_cos_f32 v%d, v%d' % (tt, tt))
                prev = 'v_cvt_pk_bf16_f32 v%d, v%d, v%d' % (d, d, tt)
        a.I('s_lshl_b32 s3, %s, 4' % sW)
        a.I(prev)
        a.I('v_add_u32 v%d, s3, v%d' % (T, T))
        a.I('v_mul_u32_u24 v%d, 168, v%d' % (self.ZW, T))
        a.I('v_lshrrev_b32 v%d, 4, v0' % T)
        a.I('v_mad_u32_u24 v%d, v%d, 40, v%d' % (self.ZW, T, self.ZW))
        a.I('v_and_b32 v%d, 28, v0' % (T + 1))
        a.I('v_lshrrev_b32 v%d, 5, v0' % (T + 2))
        a.I('v_add_u32 v%d, v%d, v%d' % (T + 1, T + 1, T + 2))
        a.I('v_mul_u32_u24 v%d, 168, v%d' % (T + 1, T + 1))
        a.I('v_and_b32 v%d, 3, v0' % (T + 2))
        a.I('v_lshl_add_u32 v%d, v%d, 3, v%d' % (self.ZR, T + 2, T + 1))
        if self.lds_z:
            a.I('v_add_u32 v%d, 0x%x, v%d' % (self.ZW, self.lds_z, self.ZW))
            a.I('v_add_u32 v%d, 0x%x, v%d' % (self.ZR, self.lds_z, self.ZR))
        a.I('s_and_b32 s3, %s, 3' % sG)
        a.I('v_xor_b32 v%d, s3, v%d' % (T, T))
        a.I('v_lshl_add_u32 v%d, v%d, 4, v%d' % (self.BW, T, self.BW))
        a.I('s_mul_i32 s3, %s, 2688' % sW)
        a.I('s_add_u32 s3, s3, 0x%x' % self.lds_b)
        a.I('v_add_u32 v%d, s3, v%d' % (self.BW, self.BW))
        a.I('s_mul_i32 %s, %s, 5' % (sGo, sJJ))
        GAs = [self.GA] + ([self.GA2] if self.GA2 else [])
        for it in range(3):
            a.I('v_add_u32 v%d, %d, v0' % (T, 64 * it))
            a.I('v_mul_u32_u24 v%d, 205, v%d' % (T + 1, T))
            a.I('v_lshrrev_b32 v%d, 12, v%d' % (T + 1, T + 1))
            a.I('v_add_u32 v%d, v%d, v%d' % (T + 2, T, T + 1))
            a.I('v_lshl_add_u32 v%d, v%d, 4, s3' % (self.BR[it], T + 2))
            a.I('v_mul_u32_u24 v%d, 5, v%d' % (T + 2, T + 1))
            a.I('v_lshrrev_b32 v%d, 2, v%d' % (T + 3, T))
            a.I('v_sub_u32 v%d, v%d, v%d' % (T + 2, T + 3, T + 2))
            a.I('v_add_u32 v%d, %s, v%d' % (T + 2, sGo, T + 2))
            a.I('v_mul_u32_u24 v%d, 81920, v%d' % (T + 1, T + 1))
            a.I('v_and_b32 v%d, 3, v0' % T)
            a.I('v_lshl_add_u32 v%d, v%d, 4, v%d' % (T + 1, T, T + 1))
            if it == 2:
                a.I('v_lshrrev_b32 v%d, 5, v0' % T)
                a.I('v_lshl_add_u32 v%d, v%d, 31, v%d' % (T + 1, T, T + 1))
            for k, GA in enumerate(GAs):
                if k:
                    a.I('v_add_u32 v%d, 5, v%d' % (T + 2, T + 2))
                a.I('v_bfe_u32 v%d, v%d, 2, 1' % (T + 3, T + 2))
                a.I('v_xor_b32 v%d, v%d, v%d' % (T + 3, T + 2, T + 3))
                a.I('v_lshl_add_u32 v%d, v%d, 6, v%d' % (GA[it], T + 3, T + 1))
        a.I('s_lshl_b32 %s, %s, 4' % (sGo, sHB))
        a.I('s_add_u32 %s, %s, %s' % (sGo, sGo, sG))
        a.I('s_mul_i32 %s, %s, 2560' % (sGo, sGo))
        a.I('s_mul_i32 s3, %s, %d' % (sW, 8 * 81920))
        a.I('s_add_u32 %s, %s, s3' % (sGo, sGo))
        a.I('s_add_u32 %s, %s, %s' % (sGo, sGo, sOut))

    def main(self, a, X, vS, vQ, W, sGo, tag=None, nt=1):
        T = self.T + (self.T & 1)
        ln_coef(a, vS, vQ, T, T + 2, None)
        for k in range(nt):
            Xk, Wk = X + 20 * k, W + 60 * k
            for n in range(5):
                for i in range(2):
                    x = vr(Xk + 4 * n + 2 * i, 2)
                    a.I('v_pk_fma_f32 %s, %s, %s, %s op_sel_hi:[1,0,0]' % (x, x, vr(T, 2), vr(T + 2, 2)))
            for n in range(10):
                a.I('v_cvt_pk_bf16_f32 v%d, v%d, v%d' % (Wk + n, Xk + 2 * n, Xk + 2 * n + 1))
            for n in range(5):
                a.I('ds_write_b64 v%d, %s offset:%d' % (self.ZW, vr(Wk + 2 * n, 2), 8 * n + 10752 * k))
        a.I('s_waitcnt lgkmcnt(0)')
        a.I('s_barrier')
        rds = ['ds_read_b64_tr_b16 %s, v%d offset:%d' % (vr(W + 60 * k + 8 * t + 4 * ks + 2 * rd, 2), self.ZR, (32 * ks + 2 * rd) * 168 + 32 * t + 10752 * k)
               for k in range(nt) for t in range(5) for ks in range(2) for rd in range(2)]
        mf = []
        for k in range(nt):
            D = W + 60 * k + 40
            for t in range(5):
                mf.append('v_mfma_f32_16x16x32_bf16 %s, %s, %s, 0' % (vr(D + 4 * t, 4), vr(D - 40 + 8 * t, 4), vr(self.F, 4)))
                mf.append('v_mfma_f32_16x16x32_bf16 %s, %s, %s, %s' % (vr(D + 4 * t, 4), vr(D - 36 + 8 * t, 4), vr(self.F + 4, 4), vr(D + 4 * t, 4)))
        cv = lambda k: ['v_cvt_pk_bf16_f32 v%d, v%d, v%d' % (X + 20 * k + n, W + 60 * k + 40 + 2 * n, W + 60 * k + 41 + 2 * n) for n in range(10)]
        a.ext(rds[:12])
        ncv = 4 if nt == 1 else 10
        a.ext(weave(mf[:-2] if nt == 1 else mf[:14], rds[12:], 0, 2))
        a.ext(weave(mf[-2:] if nt == 1 else mf[14:], cv(0)[:ncv], 0, 2))
        for k in range(nt):
            a.ext(cv(k)[ncv if k == 0 else 0:])
            for t in range(5):
                a.I('ds_write_b64 v%d, %s offset:%d' % (self.BW, vr(X + 20 * k + 2 * t, 2), 64 * t + 10752 * k))
            for it in range(3):
                a.I('ds_read_b128 %s, v%d offset:%d' % (vr(W + 60 * k + 4 * it, 4), self.BR[it], 10752 * k))
        for k in range(nt):
            for it in range(3):
                a.I('buffer_store_dwordx4 %s, v%d, %s, %s offen sc1' % (vr(W + 60 * k + 4 * it, 4), (self.GA, self.GA2)[k][it], WS, sGo), tag)
```

```python
from common8 import *

vL16, vFl = 14, 12
N_WD, N_W1 = 108, 135


def phase0(a, st, name, hop, timed, take, stage_a_tables):
    a.raw('.globl %s\n.p2align 8\n.type %s,@function' % (name, name))
    a.label(name)
    a.I('s_cmp_ge_u32 s2, 256')
    a.I('s_cbranch_scc1 ffn_end')
    a.I('s_load_dwordx2 s[52:53], s[0:1], 88')
    a.I('s_load_dwordx2 s[54:55], s[0:1], 0')
    a.I('s_load_dwordx8 s[56:63], s[0:1], 48')
    a.I('s_load_dwordx2 s[22:23], s[0:1], 80')
    a.I('s_getpc_b64 s[46:47]')
    a.raw('.Lpc0:')
    a.I('s_add_u32 s46, s46, ffn_body-.Lpc0')
    a.I('s_addc_u32 s47, s47, 0')
    a.I('v_min_u32 v21, %d, v0' % opt('pf0', 80))
    a.I('v_lshlrev_b32 v21, 7, v21')
    a.I('global_load_dword v21, v21, s[46:47]')
    a.raw('    s_branch ffn_body\n.p2align 12\nffn_body:')
    if STAMP:
        a.I('s_mov_b32 s51, 0x80000\ns_mov_b32 s96, 0\ns_mov_b32 s97, 0')
    st(a, 'PQ')
    a.I('v_lshrrev_b32 v1, 6, v0')
    a.I('v_and_b32 v0, 63, v0')
    a.I('v_readfirstlane_b32 %s, v1' % sW)
    a.I('s_and_b32 %s, s2, 15' % sG)
    a.I('s_bfe_u32 %s, s2, 0x10004' % sHB)
    a.I('s_lshr_b32 %s, s2, 5' % sJJ)
    a.I('s_lshr_b32 %s, s2, 4' % sMU)
    a.I('v_lshlrev_b32 v%d, 4, v0' % vL16)
    WO = 'a'
    sW0, sW1 = sT[16], sT[17]
    RW, PK, S = 176, 64, 44
    at = AT(76, 61440, 139264)
    X = 24
    sR0, sR, sRe, sTl = sT[8], sT[9], sT[10], sT[11]
    row_nat_soff(a, sR0)
    a.I('v_lshrrev_b32 v16, 3, v0')
    a.I('v_mul_u32_u24 v16, 81920, v16')
    a.I('v_and_b32 v17, 7, v0')
    a.I('v_lshl_add_u32 v16, v17, 4, v16')
    a.I('v_add_u32 v17, 0x%x, v16' % (512 * 1280))
    a.I('s_mul_i32 %s, %s, 160' % (sTl, sJJ))
    a.I('s_and_b32 %s, %s, 0xffffff80' % (sR, sTl))
    a.I('s_add_u32 %s, %s, %s' % (sTl, sTl, sR0))
    a.I('s_add_u32 %s, %s, %s' % (sR, sR, sR0))
    a.I('s_add_u32 %s, %s, 1280' % (sRe, sR0))
    q = []
    for i in range(10):
        for s in range(2):
            q.append([Ins('buffer_load_dwordx4 %s, v%d, %s, %s offen' % (vr(RW + 8 * i + 4 * s, 4), 16 + s, SA, sR), 'x%d' % i)])
        if i < 9:
            q[-1] += [Ins('s_add_u32 %s, %s, 128' % (sR, sR)), Ins('s_cmp_eq_u32 %s, %s' % (sR, sRe)), Ins('s_cselect_b32 %s, %s, %s' % (sR, sR0, sR))]
    a.I('s_waitcnt lgkmcnt(0)')
    srd(a, 8, 54, XB)
    NX0 = opt('x0', 4)
    a.ext(take(q, 2))
    srd(a, 4, 52, WS_BYTES)
    sOwn = sT[18]
    a.I('s_or_b32 %s, %s, %s' % (sOwn, sMU, sW))
    a.I('s_cbranch_scc1 p0_noown')
    c = Asm()
    c.I('s_lshl_b32 s3, %s, 2' % sG)
    c.I('s_add_u32 s3, s3, 448')
    c.I('v_add_u32 v8, s3, v0')
    c.I('s_add_u32 s3, %s, 384' % sG)
    c.I('v_mov_b32 v9, s3')
    c.I('v_cmp_gt_u32 vcc, 4, v0')
    c.I('v_mov_b32 v10, 0')
    c.I('s_mov_b32 s3, 0x%x' % (LB0 + oFL))
    c.I('v_cndmask_b32 v8, v9, v8, vcc')
    c.I('v_lshlrev_b32 v8, 7, v8')
    c.I('s_mov_b64 exec, 31')
    c.I('buffer_store_dword v10, v8, %s, s3 offen sc1' % WS)
    c.I('s_mov_b64 exec, -1')
    a.raw(c.finalize().rstrip('\n'))
    a.label('p0_noown')
    a.ext(take(q, NX0 - 2))
    a.I('s_cmp_lt_u32 s2, %d' % N_WD)
    a.I('s_cbranch_scc1 p0_wd')
    a.I('s_sub_u32 %s, s2, %d' % (sT[0], N_WD))
    a.I('s_lshl_b32 %s, %s, 2' % (sT[0], sT[0]))
    a.I('s_add_u32 %s, %s, %s' % (sT[0], sT[0], sW))
    a.I('s_lshl_b32 %s, %s, 1' % (sT[0], sT[0]))
    a.I('s_cmp_ge_u32 %s, 1080' % sT[0])
    a.I('s_cselect_b32 %s, 0x80000000, 0' % sT[6])
    a.I('s_cmp_ge_u32 %s, 540' % sT[0])
    a.I('s_cselect_b32 s56, s58, s56')
    a.I('s_cselect_b32 s57, s59, s57')
    a.I('s_cselect_b32 %s, 5120, 0' % sT[7])
    a.I('s_cselect_b32 s3, 540, 0')
    a.I('s_sub_u32 %s, %s, s3' % (sT[0], sT[0]))
    srd(a, 12, 56, W1B)
    a.I('v_lshrrev_b32 v1, 3, v0')
    a.I('v_mul_u32_u24 v4, 3456, v1')
    a.I('v_and_b32 v2, 7, v0')
    a.I('v_lshl_add_u32 v4, v2, 4, v4')
    a.I('v_lshrrev_b32 v3, 2, v1')
    a.I('v_mul_u32_u24 v3, %d, v3' % (16 * 3456))
    a.I('v_add_u32 v4, %s, v4' % sT[6])
    a.I('v_add_u32 v5, v4, v3')
    a.I('s_lshl_b32 %s, %s, 13' % (sT[5], sW))
    for u in range(2):
        sD = (sW0, sW1)[u]
        a.I('s_mul_i32 %s, %s, 2428' % (sT[1], sT[0]))
        a.I('s_lshr_b32 %s, %s, 16' % (sT[1], sT[1]))
        a.I('s_mul_i32 s3, %s, 27' % sT[1])
        a.I('s_sub_u32 %s, %s, s3' % (sT[4], sT[0]))
        a.I('s_mul_i32 %s, %s, %d' % (sT[2], sT[1], 32 * 3456))
        a.I('s_lshl_b32 s3, %s, 7' % sT[4])
        a.I('s_add_u32 %s, %s, s3' % (sT[2], sT[2]))
        a.I('s_mul_i32 s3, %s, 205' % sT[1])
        a.I('s_lshr_b32 s3, s3, 10')
        a.I('s_mul_i32 s3, s3, 5')
        a.I('s_add_u32 %s, s3, %s' % (sD, sT[1]))
        a.I('s_add_u32 s3, s3, 5')
        a.I('s_sub_u32 %s, s3, %s' % (sT[3], sT[1]))
        for k in range(4):
            a.I('s_cmp_eq_u32 %s, 5' % sT[3])
            a.I('s_cselect_b32 %s, 0, %s' % (sT[3], sT[3]))
            a.I('s_cmp_ge_u32 %s, 3' % sT[3])
            a.I('s_cselect_b32 s3, %d, %d' % (8 * 3456 * k - 4 * 3456, 0) if k == 0 else 's_cselect_b32 s3, %d, 0' % (-4 * 3456))
            a.I('s_add_u32 s3, %s, s3' % sT[2])
            a.I('s_cmp_eq_u32 %s, 2' % sT[3])
            a.I('s_cselect_b64 vcc, -1, 0')
            a.I('s_add_u32 m0, %s, %d' % (sT[5], u * 4096 + k * 1024))
            a.I('v_cndmask_b32 v6, v4, v5, vcc')
            a.I('buffer_load_dwordx4 v6, %s, s3 offen lds' % SB, tag='wdma')
            if k < 3:
                a.I('s_add_u32 %s, %s, %d' % (sT[2], sT[2], 8 * 3456))
                a.I('s_add_u32 %s, %s, 1' % (sT[3], sT[3]))
        a.I('s_lshl_b32 %s, %s, 10' % (sD, sD))
        a.I('s_mul_i32 s3, %s, %d' % (sT[4], 4 * 40960))
        a.I('s_add_u32 %s, %s, s3' % (sD, sD))
        a.I('s_add_u32 %s, %s, %s' % (sD, sD, sT[7]))
        if u == 0:
            a.I('s_add_u32 %s, %s, 1' % (sT[0], sT[0]))
    a.I('s_branch p0_rows')

    a.label('p0_wd')
    c = Asm()
    c.I('s_and_b32 %s, s2, 1' % sT[1])
    c.I('s_lshr_b32 %s, s2, 1' % sT[0])
    c.I('s_lshr_b32 %s, %s, 1' % (sT[5], sW))
    c.I('s_mul_i32 %s, %s, 43' % (sT[4], sT[0]))
    c.I('s_lshr_b32 %s, %s, 9' % (sT[4], sT[4]))
    c.I('s_and_b32 s3, %s, 3' % sT[0])
    c.I('s_mul_i32 %s, s3, 7' % sT[2])
    c.I('s_lshr_b32 s3, %s, 2' % sT[0])
    c.I('s_lshl_b32 s3, s3, 1')
    c.I('s_add_u32 %s, %s, s3' % (sT[2], sT[2]))
    c.I('s_mul_i32 s3, %s, 21' % sT[4])
    c.I('s_add_u32 %s, %s, s3' % (sT[2], sT[2]))
    c.I('s_add_u32 %s, %s, %s' % (sT[2], sT[2], sT[5]))
    c.I('s_lshl_b32 %s, %s, 1' % (sT[4], sT[0]))
    c.I('s_add_u32 %s, %s, %s' % (sT[4], sT[4], sT[5]))
    c.I('s_sub_u32 %s, %s, 96' % (sT[4], sT[4]))
    c.I('s_mul_i32 s3, %s, 86' % sT[4])
    c.I('s_lshr_b32 s3, s3, 8')
    c.I('s_mul_i32 s3, s3, 6')
    c.I('s_mul_i32 %s, %s, 7' % (sT[4], sT[4]))
    c.I('s_add_u32 %s, %s, s3' % (sT[4], sT[4]))
    c.I('s_add_u32 %s, %s, 6' % (sT[4], sT[4]))
    c.I('s_cmp_ge_u32 %s, 48' % sT[0])
    c.I('s_cselect_b32 %s, %s, %s' % (sT[2], sT[4], sT[2]))
    c.I('s_lshl_b32 %s, %s, 1' % (sT[2], sT[2]))
    c.I('s_and_b32 s3, %s, 1' % sW)
    c.I('s_add_u32 %s, %s, s3' % (sT[2], sT[2]))
    c.I('s_mul_i32 %s, %s, 10240' % (sT[2], sT[2]))
    c.I('s_mul_i32 s3, %s, 640' % sT[1])
    c.I('s_add_u32 %s, %s, s3' % (sT[2], sT[2]))
    c.I('s_mul_i32 %s, %s, 5120' % (sT[3], sW))
    srd(c, 12, 60, W1B)
    for it in range(5):
        c.I('v_add_u32 v2, %d, v0' % (64 * it))
        c.I('v_mul_u32_u24 v3, 1639, v2')
        c.I('v_lshrrev_b32 v3, 16, v3')
        c.I('v_mul_u32_u24 v3, 640, v3')
        c.I('s_add_u32 m0, %s, %d' % (sT[3], it * 1024))
        c.I('v_lshl_add_u32 v3, v2, 4, v3')
        c.I('buffer_load_dwordx4 v3, %s, %s offen lds' % (SB, sT[2]))
    c.I('v_mov_b32 v2, 0x80000000')
    for it in range(3):
        c.I('buffer_load_dword v%d, v2, %s, 0 offen' % ((20, 22, 23)[it], SB))
    a.raw(c.finalize().rstrip('\n'))

    a.label('p0_rows')
    a.ext(take(q, opt('x1', 0)))
    st(a, 'Q')
    tp = opt('tp', 0)
    if tp == 1:
        a.I('v_min_u32 v110, 24, v0')
        a.I('v_lshlrev_b32 v110, 21, v110')
        a.I('v_add_u32 v110, 0x1ff000, v110')
        a.I('buffer_load_dword v110, v110, %s, 0 offen' % WS)
    if tp == 2:
        a.I('s_lshr_b32 s3, s2, 3')
        a.I('s_min_u32 s3, s3, 24')
        a.I('s_lshl_b32 s3, s3, 21')
        a.I('s_add_u32 s3, s3, 0x1ff000')
        a.raw('    s_load_dword s21, s[52:53], s3\n    s_load_dword s21, s[62:63], 0')
    if opt('spf', 1):
        a.I('s_lshr_b32 s3, s2, 3')
        a.I('s_lshl_b32 s3, s3, 2')
        a.I('s_add_u32 s3, s3, %s' % sW)
        a.I('s_lshl_b32 s3, s3, 9')
        a.I('s_min_u32 s3, s3, ffn_end-ffn_body-512')
        a.I('s_add_u32 s46, s46, s3')
        a.I('s_addc_u32 s47, s47, 0')
        a.raw('\n'.join('    s_load_dword s21, s[46:47], %d' % (64 * i) for i in range(8)))
    hop(a, 0)
    a.label('hop0_ret')
    b = Asm()
    tl = tile_via_lds(b, 2, 272, 32768, RW, PK, 1, 18, 19, 4)
    b.I('v_min_u32 v%d, 1, v0' % vFl)
    b.I('v_lshlrev_b32 v%d, 31, v%d' % (vFl, vFl))
    sI0, sI1, sI2 = sT[12], sT[13], sT[14]
    set_wave_index(b, sI0)
    b.I('s_lshl_b32 %s, %s, 3' % (sI0, sI0))
    b.I('s_add_u32 %s, %s, %s' % (sI0, sI0, sJJ))
    b.I('s_lshl_b32 %s, %s, 7' % (sI0, sI0))
    b.I('s_add_u32 %s, %s, 0x%x' % (sI0, sI0, LB0 + LBS + oST))
    b.I('v_lshrrev_b32 v4, 5, v0')
    b.I('v_lshlrev_b32 v5, 2, v0')
    b.I('v_lshl_add_u32 v4, v4, 31, v5')
    b.I('v_mov_b32 v5, -1')
    b.I('v_mov_b32 v6, 0')
    b.I('s_lshr_b32 %s, %s, 1' % (sI1, sW))
    b.I('s_lshl_b32 %s, %s, 8' % (sI1, sI1))
    b.I('s_add_u32 %s, %s, s2' % (sI1, sI1))
    b.I('s_and_b32 s3, %s, 1' % sW)
    b.I('s_lshl_b32 %s, s3, 9' % sI2)
    b.I('s_add_u32 %s, %s, 384' % (sI2, sI2))
    b.items.append([Ins('s_cmp_ge_u32 %s, %s' % (sI1, sI2)), Ins('s_cselect_b32 %s, 0x80000000, 0' % sI2)])
    b.I('v_or_b32 v7, %s, v4' % sI2)
    b.I('s_lshl_b32 %s, %s, 7' % (sI1, sI1))
    b.I('s_mul_i32 s3, s3, 0x%x' % LBS)
    b.I('s_add_u32 %s, %s, s3' % (sI1, sI1))
    b.I('s_add_u32 %s, %s, 0x%x' % (sI1, sI1, LB0 + oFL))
    at.setup(b, '0x%x' % LB0, sT[15])
    b.I('v_mov_b32 v%d, 0x3f803f80' % (S + 4))
    for i in range(4):
        b.I('v_mov_b32 v%d, 0' % (S + i))
    dots = []
    for i in range(10):
        for r in range(4):
            for s in range(2):
                v = RW + 8 * i + 4 * s + r
                dots.append('v_dot2c_f32_bf16 v%d, v%d, v%d' % (S + 2 * s, v, S + 4))
                dots.append('v_dot2c_f32_bf16 v%d, v%d, v%d' % (S + 2 * s + 1, v, v))
    a.ext(timed(b.items + (stage_a_tables(50, 24) if opt('hoist0', opt('hoist', 0)) else []), q, opt('xp', 64), -opt('xd', 0)))
    nd = opt('nd', 7)
    assert len(q) <= 16
    a.wait_vm('x1')
    a.I('s_cmp_lg_u32 %s, 0' % sOwn)
    a.I('s_cbranch_scc1 p0_norep')
    a.raw('    v_mov_b32 v10, 1\n    s_mov_b64 exec, 1\n    global_atomic_add v6, v10, s[22:23] sc1\n    s_mov_b64 exec, -1')
    a.label('p0_norep')
    a.ext(timed(tl + dots[:16 * nd], q, 32))
    a.ext(take(q, 99))
    a.I('buffer_store_dword v5, v4, %s, %s offen sc1' % (WS, sI0))
    a.I('buffer_store_dword v6, v7, %s, %s offen sc1' % (WS, sI1))
    st(a, 'Q')
    def wstore():
        a.wait_vm('wdma')
        a.I('s_barrier')
        a.I('s_cmp_lt_u32 s2, %d' % N_WD)
        a.I('s_cbranch_scc0 p0_w1b')
        c = Asm()
        c.I('v_lshrrev_b32 v1, 2, v0')
        c.I('v_mul_u32_u24 v1, 640, v1')
        c.I('v_and_b32 v2, 3, v0')
        c.I('v_mul_u32_u24 v2, 40, v2')
        c.I('s_mul_i32 s3, %s, 160' % sW)
        c.I('v_add3_u32 v1, v1, v2, s3')
        for n in range(5):
            for rd in range(2):
                c.I('ds_read_b64_tr_b16 %s, v1 offset:%d' % (vr(4 * n + 2 * rd, 2, 'a'), rd * 10240 + n * 8))
        c.I('s_lshl_b32 %s, %s, 2' % (sT[1], sT[1]))
        c.I('s_add_u32 %s, %s, %s' % (sT[1], sT[1], sW))
        c.I('s_mul_i32 %s, %s, 276480' % (sT[1], sT[1]))
        c.I('s_mul_i32 s3, %s, 5120' % sT[0])
        c.I('s_add_u32 %s, %s, s3' % (sT[1], sT[1]))
        c.I('s_add_u32 %s, %s, 0x%x' % (sT[1], sT[1], WDP))
        c.I('s_add_u32 %s, %s, 4096' % (sT[2], sT[1]))
        c.I('v_mov_b32 v2, 0x80000000')
        for n in range(5):
            c.I('buffer_store_dwordx4 %s, v%d, %s, %s offen offset:%d sc1' % (vr(4 * n, 4, 'a'), vL16, WS, sT[2] if n == 4 else sT[1], (n % 4) * 1024))
        for n in range(3):
            c.I('buffer_store_dword v2, v2, %s, 0 offen' % WS)
        c.I('s_branch p0_stat')
        a.raw(c.finalize().rstrip('\n'))
        a.label('p0_w1b')
        a.I('v_lshrrev_b32 v1, 4, v0')
        a.I('v_lshlrev_b32 v1, 10, v1')
        a.I('v_bfe_u32 v2, v0, 2, 2')
        a.I('v_lshl_add_u32 v1, v2, 7, v1')
        a.I('v_and_b32 v2, 3, v0')
        a.I('v_lshl_add_u32 v1, v2, 3, v1')
        a.I('v_add_u32 v1, %s, v1' % sT[5])
        for k in range(2):
            for ft in range(4):
                for rd in range(2):
                    a.I('ds_read_b64_tr_b16 %s, v1 offset:%d' % (vr(16 * k + 4 * ft + 2 * rd, 2, 'a'), k * 4096 + rd * 512 + ft * 32))
        a.I('v_add_u32 v2, %s, v%d' % (sT[6], vL16))
        for k in range(2):
            sD = (sW0, sW1)[k]
            for ft in range(4):
                a.I('buffer_store_dwordx4 %s, v2, %s, %s offen sc1' % (vr(16 * k + 4 * ft, 4, 'a'), WS, sD), tag='gs')
                if ft < 3:
                    a.I('s_add_u32 %s, %s, 40960' % (sD, sD))
        a.label('p0_stat')
    if not opt('wpos', 0):
        wstore()
    a.ext(dots[16 * nd:])
    st(a, 'Q')
    a.I('v_and_b32 v3, 1, v0')
    a.I('v_cmp_eq_u32 vcc, 1, v3')
    a.I('v_and_b32 v3, 7, v0')
    for m in ('quad_perm:[1,0,3,2]', 'quad_perm:[2,3,0,1]', 'row_half_mirror'):
        for i in range(4):
            a.I('v_add_f32_dpp v%d, v%d, v%d %s row_mask:0xf bank_mask:0xf' % (S + i, S + i, S + i, m))
    a.I('v_bfe_u32 v%d, v0, 3, 1' % (S + 4))
    a.I('v_lshl_add_u32 v3, v3, 3, v%d' % (S + 4))
    a.I('v_lshlrev_b32 v3, 2, v3')
    a.I('v_cndmask_b32 v%d, v%d, v%d, vcc' % (S, S, S + 2))
    a.I('v_cndmask_b32 v%d, v%d, v%d, vcc' % (S + 1, S + 1, S + 3))
    a.I('ds_bpermute_b32 v%d, v3, v%d' % (S + 2, S))
    a.I('ds_bpermute_b32 v%d, v3, v%d' % (S + 3, S + 1))
    a.ext(unpack(range(PK, PK + 10), lambda i: X + i))
    at.main(a, X, S + 2, S + 3, 176, sT[15], 'gs')
    if opt('wpos', 0):
        wstore()
    decode(a, False)
```

```python
from common8 import *
from sched import Sched
import asmlib

M16 = 'v_mfma_f32_16x16x32_bf16'
M32 = 'v_mfma_f32_32x32x16_bf16'
L_V, L_X = 126976, 151552
L_P = 0
PERS = 1
KNAME = 'interleave_layers__spectral_fnet__swiglu_ffn__prompt_kernel'
sDBG = 's[22:23]'
SPIN = 20000

vL16, vD0, vFl, vDt, vWa = 14, 11, 12, 13, 15
sZF, sHF, sHC = sT[21], sT[22], sT[23]
sCK, sSP = sT[24], sT[25]
slow = []


def lst(f, *args):
    b = Asm()
    f(b, *args)
    return b.items


def dma(vbase, sbase, lds, n, tag):
    o = []
    for i in range(n):
        g = []
        if i % 4 == 0:
            g.append(Ins('s_add_u32 m0, %s, %d' % (sbase, lds + i * 1024)))
            g.append(Ins('v_add_u32 v%d, m0, v%d' % (vDt, vbase)))
        g.append(Ins('buffer_load_dwordx4 v%d, %s, 0 offen offset:%d sc1 lds' % (vDt, WS, (i % 4) * 1024), tag))
        o.append(g)
    return link(o)


def wda_loads(n=54):
    o = []
    for i in range(n):
        g = []
        if i and i % 4 == 0:
            g.append(Ins('v_add_u32 v%d, 4096, v%d' % (vWa, vWa)))
        g.append(Ins('buffer_load_dwordx4 %s, v%d, %s, 0 offen offset:%d sc1' % (vr(4 * i + (40 if i >= 40 else 0), 4, 'a'), vWa, WS, (i % 4) * 1024), 'wda'))
        o.append(g)
    return o


def est(x):
    if isinstance(x, tuple):
        return 0 if x[0] in ('label', 'raw') else 30
    if x.kind == 'mfma':
        return 4 * x.passes
    if x.op == 's_barrier':
        return 40
    if x.op == 's_waitcnt':
        return 40
    if x.op.startswith(('v_sin', 'v_cos', 'v_exp', 'v_r', 'v_pk', 'ds_write')):
        return 8
    return 4


def timed(items, q, period, t=0):
    out = []
    for x in items:
        x = Ins(x) if isinstance(x, str) else x
        if isinstance(x, list):
            out += x
            t += 4 * len(x)
        else:
            out.append(x)
            t += est(x)
        if t >= period and q:
            g = q.pop(0)
            out += g
            t += 4 * len(g) - period
    return out


def link(groups):
    last = {}
    for g in groups:
        for x in g:
            if isinstance(x, Ins):
                if x.kind == 'vmem':
                    for r in ('m0',):
                        if r in x.src and r in last:
                            x.dep = last[r]
                for r in x.dst:
                    last[r] = x
    return groups


def weave_groups(main, groups, every, start=0):
    out, gi = [], 0
    for i, m in enumerate(main):
        out.append(m)
        if i >= start and (i - start) % every == every - 1 and gi < len(groups):
            out += groups[gi]
            gi += 1
    return out, groups[gi:]


def check_issue(vC, so):
    return [Ins('v_mov_b32 v%d, 0' % vC), Ins('buffer_atomic_add v%d, v%d, %s, %s offen sc0 sc1' % (vC, vFl, WS, so), 'ck')]


def check_test(vC, so, bit, name):
    slow.append((vC, so, bit, name))
    return [Ins('v_readfirstlane_b32 %s, v%d' % (sCK, vC)),
            [Ins('s_bitcmp1_b32 %s, %d' % (sCK, bit)), Ins('s_cbranch_scc0 %s_slow' % name), ('label', name + '_ok')]]


polls = []


def poll_test(regs, so, bit, name):
    polls.append((regs, so, bit, name))
    return [Ins('v_readfirstlane_b32 %s, v%d' % (sCK, regs[0])), Ins('s_bitcmp1_b32 %s, %d' % (sCK, bit)),
            Ins('s_cbranch_scc0 %s_slow' % name), ('label', name + '_ok')]


def emit_polls(a):
    for k, (regs, so, bit, name) in enumerate(polls):
        a.label(name + '_slow')
        a.reset()
        a.I('s_mov_b32 %s, 0' % sSP)
        a.label(name + '_spin')
        for r in range(3):
            a.reset()
            if STAMP:
                a.I('s_add_u32 s97, s97, 0x%x' % (1 << (5 * (2 + k))))
            a.ext(check_issue(regs[r], so))
            a.I('s_waitcnt vmcnt(2)')
            a.I('v_readfirstlane_b32 %s, v%d' % (sCK, regs[(r + 1) % 3]))
            a.I('s_bitcmp1_b32 %s, %d' % (sCK, bit))
            a.I('s_cbranch_scc1 %s_ok' % name)
        a.I('s_add_u32 %s, %s, 1' % (sSP, sSP))
        a.I('s_cmp_lt_u32 %s, %d' % (sSP, SPIN))
        a.I('s_cbranch_scc1 %s_spin' % name)
        a.I('s_branch %s_ok' % name)


def emit_slow(a):
    for k, (vC, so, bit, name) in enumerate(slow):
        a.label(name + '_slow')
        a.reset()
        a.I('s_mov_b32 %s, 0' % sSP)
        a.label(name + '_spin')
        if STAMP:
            sys.stderr.write('slow %d = %s\n' % (k, name))
            a.I('s_add_u32 s%d, s%d, 0x%x' % (96 + k // 6, 96 + k // 6, 1 << (5 * (k % 6))))
        if vC is None:
            a.I('s_load_dword %s, s[52:53], %s glc' % (sCK, so))
            a.I('s_add_u32 %s, %s, 1' % (sSP, sSP))
            a.I('s_waitcnt lgkmcnt(0)')
        else:
            a.ext(check_issue(vC, so))
            a.I('s_add_u32 %s, %s, 1' % (sSP, sSP))
            a.I('s_waitcnt vmcnt(0)')
            a.I('v_readfirstlane_b32 %s, v%d' % (sCK, vC))
        a.I('s_bitcmp1_b32 %s, %d' % (sCK, bit))
        a.I('s_cbranch_scc1 %s_ok' % name)
        a.I('s_cmp_lt_u32 %s, %d' % (sSP, SPIN))
        a.I('s_cbranch_scc1 %s_spin' % name)
        a.I('s_branch %s_ok' % name)


def take(q, n):
    r = []
    for g in q[:n]:
        r += g
    del q[:n]
    return r


def stream_bases(b):
    b.I('s_lshr_b32 s3, %s, 2' % sMU)
    b.I('s_sub_u32 s3, %s, s3' % sMU)
    b.I('s_mul_i32 %s, %s, 6' % (sCK, sMU))
    b.I('s_add_u32 s3, s3, %s' % sCK)
    b.I('s_mul_i32 s3, s3, 40960')
    b.I('v_add_u32 v%d, s3, v%d' % (vD0, vL16))
    b.I('s_mul_i32 s3, %s, 276480' % sJJ)
    b.I('s_mul_i32 %s, %s, 61440' % (sCK, sW))
    b.I('s_add_u32 s3, s3, %s' % sCK)
    b.I('s_add_u32 s3, s3, 0x%x' % WDP)
    b.I('v_add_u32 v%d, s3, v%d' % (vWa, vL16))
    b.I('s_mul_i32 %s, %s, 11264' % (sW11, sW))


sW11 = sT[20]
EZL, EG = (opt('ez0', 0), opt('ez1', 1)), opt('eg', 1)
VAL = opt('val', 1)
slow3 = []
NRE = opt('nre', 0)


def stage_a_tables(T, R0, TA=112):
    b = Asm()
    K = T + 2
    b.I('v_and_b32 v%d, 15, v0' % T)
    b.I('v_cvt_f32_u32 v%d, v%d' % (T, T))
    b.I('v_mul_f32 v%d, %s, v%d' % (T, fl(1.0 / 640), T))
    b.I('s_lshl_b32 s3, %s, 3' % sW)
    b.I('v_cos_f32 v%d, v%d' % (K, T))
    b.I('v_cvt_f32_u32 v%d, s3' % (T + 1))
    b.I('v_lshrrev_b32 v%d, 4, v0' % (T + 3))
    b.I('v_cvt_f32_u32 v%d, v%d' % (T + 3, T + 3))
    b.I('v_fmamk_f32 v%d, v%d, %s, v%d' % (T + 1, T + 3, fl(32), T + 1))
    b.I('v_mul_f32 v%d, v%d, v%d' % (T + 1, T, T + 1))
    b.I('v_add_f32 v%d, v%d, v%d' % (K, K, K))
    for ib in range(8):
        C, Sn = TA + 8 * ib, TA + 8 * ib + 4
        cur, oth = R0 + 10 * (ib & 1), R0 + 10 * ((ib + 1) & 1)
        for j in range(5):
            r = cur + 2 * j
            if ib < 2:
                b.I('v_fmamk_f32 v%d, v%d, %s, v%d' % (r + 1, T, fl(128 * j + ib), T + 1))
                b.I('v_cos_f32 v%d, v%d' % (r, r + 1))
                b.I('v_sin_f32 v%d, v%d' % (r + 1, r + 1))
            else:
                b.I('v_pk_fma_f32 %s, %s, %s, %s op_sel_hi:[0,1,1] neg_lo:[0,0,1] neg_hi:[0,0,1]' % (vr(r, 2), vr(K, 2), vr(oth + 2 * j, 2), vr(r, 2)))
        for e, d in ((0, C), (1, Sn)):
            b.I('v_cvt_pk_bf16_f32 v%d, v%d, v%d' % (d, cur + e, cur + 2 + e))
            b.I('v_cvt_pk_bf16_f32 v%d, v%d, v%d' % (d + 1, cur + 4 + e, cur + 6 + e))
            b.I('v_cvt_pk_bf16_f32 v%d, v%d, 0' % (d + 2, cur + 8 + e))
    for ib in range(8):
        b.I('v_mov_b32 v%d, 0' % (TA + 8 * ib + 3))
        b.I('v_mov_b32 v%d, 0' % (TA + 8 * ib + 7))
    return b.items


def kb(a, st, layer, q):
    LB = LB0 + layer * LBS
    EZ = EZL[layer]
    FS, TA, TB, AP, AM, WA, WD = 16, 112, 24, 176, 192, 72, 208
    vRS, vVW, vVR, vA0, vA2 = (1, 2), (3, 4), (5, 6, 7, 8), 9, 10
    vZS, vRB, vGs, vXs, vRo = (248, 249, 250), 251, 252, 253, 254
    T, R0 = AP + 20, AP
    sT1, sCLS, sQ, sW10, sBLK, sW25 = sT[0], sT[1], sT[2], sT[3], sT[4], sT[5]
    sSig, sAmp, sZS, sRS, sW9, sW20 = sT[6], sT[7], sT[8], sT[9], sT[10], sT[11]
    PER = opt('per%d' % layer, opt('per', 52))
    b = Asm()
    b.I('s_lshr_b32 %s, %s, 2' % (sT1, sMU))
    b.I('s_sub_u32 s3, 3, %s' % sT1)
    b.items.append([Ins('s_cmp_gt_u32 %s, 8' % sG), Ins('s_cselect_b32 %s, s3, %s' % (sT1, sT1))])
    b.I('s_and_b32 s3, %s, 1' % sT1)
    b.I('s_lshl_b32 %s, %s, 1' % (sCLS, sG))
    b.I('s_add_u32 %s, %s, s3' % (sCLS, sCLS))
    b.I('s_lshl_b32 %s, %s, 1' % (sCLS, sCLS))
    b.I('s_lshr_b32 s3, %s, 1' % sT1)
    b.I('s_add_u32 %s, %s, s3' % (sCLS, sCLS))
    b.I('s_lshl_b32 %s, %s, 4' % (sT1, sT1))
    b.I('s_add_u32 %s, %s, %s' % (sT1, sT1, sG))
    b.I('s_sub_u32 s3, 64, %s' % sT1)
    b.I('s_min_u32 s3, s3, %s' % sT1)
    b.I('s_and_b32 s3, s3, 31')
    b.I('s_mul_i32 s3, s3, 81920')
    b.I('s_add_u32 s3, s3, 0x%x' % (LB + oG))
    b.I('v_add_u32 v%d, s3, v%d' % (vGs, vL16))
    b.I('s_mul_i32 %s, %s, 10240' % (sW10, sW))
    sc0 = b.items
    b = Asm()
    b.I('s_and_b32 %s, %s, 3' % (sQ, sMU))
    b.I('s_lshl_b32 %s, %s, 2' % (sBLK, sCLS))
    b.I('s_add_u32 %s, %s, %s' % (sBLK, sBLK, sQ))
    b.I('s_mul_i32 s3, %s, 10240' % sBLK)
    b.I('s_add_u32 s3, s3, 0x%x' % (LB + oXA - L_X))
    b.I('v_add_u32 v%d, s3, v%d' % (vXs, vL16))
    b.I('s_mul_i32 %s, %s, 2560' % (sW25, sW))
    b.items.append([Ins('s_cmp_lt_u32 %s, 32' % sT1), Ins('s_cselect_b32 %s, %s, 0' % (sSig, fl(-0.25)))])
    b.items.append([Ins('s_cmp_gt_u32 %s, 32' % sT1), Ins('s_cselect_b32 %s, %s, %s' % (sSig, fl(0.25), sSig))])
    b.items.append([Ins('s_cmp_eq_u32 %s, 0' % sT1), Ins('s_cselect_b32 %s, 0xffff, -1' % sAmp)])
    b.items.append([Ins('s_cmp_eq_u32 %s, 32' % sT1), Ins('s_cselect_b32 %s, 0xffff0000, %s' % (sAmp, sAmp))])
    b.I('v_and_b32 v%d, 31, v0' % T)
    b.I('s_lshr_b32 s3, %s, 1' % sW)
    b.I('v_add_u32 v%d, s3, v%d' % (T, T))
    b.I('v_cvt_f32_u32 v%d, v%d' % (T, T))
    b.I('v_mul_f32 v%d, %s, v%d' % (T, fl(1.0 / 32), T))
    b.I('s_and_b32 s3, %s, 1' % sW)
    b.I('s_lshl_b32 s3, s3, 4')
    b.I('v_cos_f32 v%d, v%d' % (T + 2, T))
    b.I('v_lshrrev_b32 v%d, 5, v0' % (T + 1))
    b.I('v_lshl_add_u32 v%d, v%d, 3, s3' % (T + 1, T + 1))
    b.I('v_cvt_f32_u32 v%d, v%d' % (T + 1, T + 1))
    b.I('v_mul_f32 v%d, v%d, v%d' % (R0 + 1, T, T + 1))
    b.I('v_add_f32 v%d, v%d, v%d' % (R0 + 3, R0 + 1, T))
    b.I('v_add_f32 v%d, v%d, v%d' % (T + 2, T + 2, T + 2))
    for j in range(2):
        b.I('v_cos_f32 v%d, v%d' % (R0 + 2 * j, R0 + 2 * j + 1))
        b.I('v_sin_f32 v%d, v%d' % (R0 + 2 * j + 1, R0 + 2 * j + 1))
    b.I('s_lshl_b32 s3, %s, 11' % sW)
    b.I('v_add_u32 v%d, 0x%x, v%d' % (vRB, L_V, vL16))
    b.I('v_add_u32 v%d, s3, v%d' % (T + 1, vRB))
    for j in range(2, 8):
        b.I('v_pk_fma_f32 %s, %s, %s, %s op_sel_hi:[0,1,1] neg_lo:[0,0,1] neg_hi:[0,0,1]' % (vr(R0 + 2 * j, 2), vr(T + 2, 2), vr(R0 + 2 * j - 2, 2), vr(R0 + 2 * j - 4, 2)))
    for e in range(2):
        for p in range(4):
            b.I('v_cvt_pk_bf16_f32 v%d, v%d, v%d' % (TB + 4 * e + p, R0 + 4 * p + e, R0 + 4 * p + 2 + e))
        b.I('ds_write_b128 v%d, %s offset:%d' % (T + 1, vr(TB + 4 * e, 4), 1024 * e))
    b.I('s_lshl_b32 s3, %s, 9' % sQ)
    b.I('s_add_u32 s3, s3, %s' % sT1)
    b.I('v_bfe_u32 v%d, v0, 1, 3' % T)
    b.I('v_lshl_add_u32 v%d, v%d, 6, s3' % (T, T))
    b.I('v_cvt_f32_u32 v%d, v%d' % (T, T))
    b.I('v_mul_f32 v%d, %s, v%d' % (T, fl(1.0 / 2048), T))
    b.I('v_lshrrev_b32 v%d, 4, v0' % (T + 1))
    b.I('v_cvt_f32_u32 v%d, v%d' % (T + 5, T + 1))
    b.I('v_add_f32 v%d, v%d, v%d' % (T + 1, T + 5, T + 5))
    b.I('v_and_b32 v%d, 1, v0' % (T + 2))
    b.I('v_cvt_f32_u32 v%d, v%d' % (T + 2, T + 2))
    b.I('v_mul_f32 v%d, %s, v%d' % (T + 2, fl(0.25), T + 2))
    b.I('v_fma_f32 v%d, v%d, v%d, v%d' % (T + 1, T, T + 1, T + 2))
    for i in range(8):
        k = 16 * (i >> 2) + 8 * ((i >> 1) & 1) + (i & 1)
        b.I('v_fmamk_f32 v%d, v%d, %s, v%d' % (FS + i, T, fl(k), T + 1))
        b.I('v_add_f32 v%d, %s, v%d' % (R0 + i, sSig, FS + i))
        b.I('v_cos_f32 v%d, v%d' % (FS + i, FS + i))
        b.I('v_cos_f32 v%d, v%d' % (R0 + i, R0 + i))
    for i in range(8):
        b.I('v_cvt_pk_bf16_f32 v%d, v%d, v%d' % (FS + i, FS + i, R0 + i))
        b.I('v_and_b32 v%d, %s, v%d' % (FS + i, sAmp, FS + i))
    b.I('v_lshrrev_b32 v%d, 3, v0' % T)
    b.I('v_mul_u32_u24 v%d, 2560, v%d' % (T + 1, T))
    b.I('v_bfe_u32 v%d, v0, 2, 1' % (T + 2))
    b.I('v_lshl_add_u32 v%d, v%d, 3, v%d' % (T + 1, T + 2, T + 1))
    b.I('v_and_b32 v%d, 3, v0' % (T + 2))
    b.I('v_lshl_add_u32 v%d, v%d, 7, v%d' % (T + 1, T + 2, T + 1))
    b.I('v_and_b32 v%d, 3, v%d' % (T, T))
    b.I('v_and_b32 v%d, 2, v0' % (T + 2))
    b.I('v_lshl_or_b32 v%d, v%d, 1, v%d' % (T, T + 2, T))
    b.I('s_lshl_b32 s3, %s, 1' % sW)
    b.I('v_xor_b32 v%d, s3, v%d' % (T, T))
    b.I('v_lshl_add_u32 v%d, v%d, 4, v%d' % (vRS[0], T, T + 1))
    b.I('v_xor_b32 v%d, 16, v%d' % (vRS[1], vRS[0]))
    tab1 = b.items
    b = Asm()
    b.I('s_lshl_b32 s3, %s, 1' % sW)
    b.I('v_and_b32 v%d, 31, v0' % (T + 2))
    b.I('v_lshrrev_b32 v%d, 5, v0' % (T + 4))
    b.I('v_add_u32 v%d, s3, v%d' % (T + 3, T + 4))
    xr_addr(b, vA0, vA2, T + 2, T + 3, T)
    b.I('v_add_u32 v%d, 0x%x, v%d' % (vA0, L_X, vA0))
    b.I('v_add_u32 v%d, 0x%x, v%d' % (vA2, L_X, vA2))
    b.I('v_bfe_u32 v%d, v0, 3, 2' % (T + 1))
    b.I('v_cmp_eq_u32 vcc, 3, v%d' % (T + 1))
    b.I('v_bfe_u32 v%d, v0, 2, 1' % T)
    b.I('v_add_u32 v%d, s3, v%d' % (T, T))
    b.I('v_and_b32 v%d, 3, v0' % (T + 2))
    b.I('v_cndmask_b32_e64 v%d, v%d, 0, vcc' % (T + 1, T + 1))
    b.I('v_lshl_add_u32 v%d, v%d, 2, v%d' % (T + 1, T + 1, T + 2))
    b.I('v_mad_u32_u24 v%d, v%d, 12, v%d' % (T + 2, T, T + 1))
    b.I('v_lshlrev_b32 v%d, 7, v%d' % (T + 2, T + 2))
    b.I('v_lshrrev_b32 v%d, 1, v%d' % (T + 1, T + 1))
    b.I('v_and_b32 v%d, 3, v%d' % (T, T))
    b.I('v_xor_b32 v%d, v%d, v%d' % (T, T, T + 1))
    b.I('v_xor_b32 v%d, v%d, v%d' % (T, T, T + 4))
    b.I('v_lshl_add_u32 v%d, v%d, 4, v%d' % (T, T, T + 2))
    b.I('v_add_u32 v%d, 0x%x, v%d' % (vVR[0], L_V, T))
    for k in range(1, 4):
        b.I('v_xor_b32 v%d, %d, v%d' % (vVR[k], 32 * k, vVR[0]))
    b.I('v_bfe_u32 v%d, v0, 1, 3' % T)
    b.I('v_lshrrev_b32 v%d, 4, v0' % (T + 1))
    b.I('v_mad_u32_u24 v%d, v%d, 3, v%d' % (T + 2, T, T + 1))
    b.I('v_lshlrev_b32 v%d, 9, v%d' % (T + 2, T + 2))
    b.I('v_add_u32 v%d, 1, v%d' % (T + 3, T + 1))
    b.I('v_lshrrev_b32 v%d, 2, v%d' % (T + 3, T + 3))
    b.I('v_lshl_add_u32 v%d, v%d, 16, v%d' % (T + 2, T + 3, T + 2))
    b.I('v_and_b32 v%d, 3, v%d' % (T, T))
    b.I('v_lshlrev_b32 v%d, 1, v%d' % (T + 1, T + 1))
    b.I('v_xor_b32 v%d, v%d, v%d' % (T, T, T + 1))
    b.I('v_and_b32 v%d, 1, v0' % (T + 1))
    b.I('v_lshl_or_b32 v%d, v%d, 2, %s' % (T + 1, T + 1, sW))
    b.I('v_xor_b32 v%d, v%d, v%d' % (T, T, T + 1))
    b.I('v_lshl_add_u32 v%d, v%d, 4, v%d' % (T, T, T + 2))
    b.I('v_add_u32 v%d, 0x%x, v%d' % (vVW[0], L_V, T))
    b.I('v_xor_b32 v%d, 16, v%d' % (vVW[1], vVW[0]))
    b.I('s_mul_i32 %s, %s, 5120' % (sW20, sW))
    addr = b.items

    b = Asm()
    U = T
    b.I('s_mul_i32 s3, %s, 20' % sW)
    b.I('v_lshrrev_b32 v%d, 3, v0' % U)
    b.I('v_add_u32 v%d, s3, v%d' % (U, U))
    for it in range(3):
        if it:
            b.I('v_add_u32 v%d, 8, v%d' % (U, U))
        b.I('v_mul_u32_u24 v%d, 205, v%d' % (U + 1, U))
        b.I('v_lshrrev_b32 v%d, 9, v%d' % (U + 1, U + 1))
        b.I('v_xor_b32 v%d, v%d, v0' % (U + 1, U + 1))
        b.I('v_and_b32 v%d, 7, v%d' % (U + 1, U + 1))
        b.I('v_lshlrev_b32 v%d, 9, v%d' % (U + 2, U))
        b.I('v_lshl_add_u32 v%d, v%d, 4, v%d' % (vZS[it], U + 1, U + 2))
    b.I('v_lshrrev_b32 v%d, 5, v0' % U)
    b.I('v_lshl_add_u32 v%d, v%d, 31, v%d' % (vZS[2], U, vZS[2]))
    b.I('s_mul_i32 %s, %s, 40960' % (sZS, sCLS))
    b.I('s_lshl_b32 s3, %s, 7' % sQ)
    b.I('s_add_u32 %s, %s, s3' % (sZS, sZS))
    b.I('s_add_u32 %s, %s, 0x%x' % (sZS, sZS, LB + oZ))
    b.I('s_add_u32 s3, %s, 0x%x' % (sW25, L_X))
    b.I('v_add_u32 v%d, s3, v%d' % (vRB, vL16))
    b.I('v_and_b32 v%d, 31, v0' % (U + 1))
    b.I('v_min_u32 v%d, 1, v%d' % (U + 1, U + 1))
    b.I('v_lshlrev_b32 v%d, 31, v%d' % (U + 1, U + 1))
    b.I('v_lshl_add_u32 v%d, v%d, 3, v%d' % (vRo, U, U + 1))
    b.I('s_lshl_b32 %s, %s, 2' % (sRS, sBLK))
    b.I('s_add_u32 %s, %s, %s' % (sRS, sRS, sW))
    b.I('s_lshl_b32 %s, %s, 4' % (sRS, sRS))
    b.I('s_add_u32 %s, %s, 0x%x' % (sRS, sRS, LB + oRS))
    b.I('s_lshl_b32 %s, %s, 9' % (sZF, sCLS))
    b.I('s_add_u32 %s, %s, 0x%x' % (sZF, sZF, LB + oFL))
    late = b.items

    tbr = ['ds_read_b128 %s, v%d offset:%d' % (vr(TB + 24 * (w >> 1) + 8 * e + 4 * (w & 1), 4), vRB, 2048 * w + 1024 * e) for w in range(4) for e in range(2)]
    neg = ['v_xor_b32 v%d, 0x80008000, v%d' % (TB + 16 + i, TB + 8 + i) for i in range(8)] + \
          ['v_xor_b32 v%d, 0x80008000, v%d' % (TB + 40 + i, TB + 24 + i) for i in range(8)]
    XE = lambda e: AP + e if e < 10 else AM + 20 - e
    rds = lambda ks: ['ds_read_b64_tr_b16 %s, v%d offset:%d' % (vr(WA + 20 * bg + 4 * t + 2 * rd, 2), vRS[bg], (16 * ks + 8 * rd) * 2560 + 512 * t)
                      for bg in range(2) for t in range(5) for rd in range(2)]
    mf = lambda ks: ['%s %s, %s, %s, %s' % (M16, vr(WD + 4 * i, 4), vr(WA + 4 * i, 4), vr(FS + 4 * ks, 4), vr(WD + 4 * i, 4) if ks else '0') for i in range(10)]
    gq = dma(vGs, sW10, 0, 10, 'g0') + dma(vGs, sW10, 40960, 10, 'g1')
    xd = dma(vXs, sW25, L_X, 3, 'xa')
    xd[2] = [Ins('s_mov_b32 exec_hi, 0')] + xd[2] + [Ins('s_mov_b32 exec_hi, -1')]
    early = dma(vD0, sW11, 81920, 11, 'w')

    ly = str(layer)
    O = lambda name, d0, d1: opt(name + ly, opt(name, d1 if layer else d0))
    vAr, vRp, vCk = WD + 32, WD + 33, WD + 34
    sAr, sRp = sT[12], sT[13]
    XP = WD + 8
    ntb = [i for i, x in enumerate(tab1) if isinstance(x, Ins) and x.op == 'ds_write_b128'][-1] + 1
    zf = Asm()
    zf.I('s_mul_i32 %s, %s, 40960' % (sZS, sCLS))
    zf.I('s_lshl_b32 s3, %s, 7' % sQ)
    zf.I('s_add_u32 %s, %s, s3' % (sZS, sZS))
    zf.I('s_add_u32 %s, %s, %s' % (sZS, sZS, sW10))
    zf.I('s_add_u32 %s, %s, 0x%x' % (sZS, sZS, LB + oZ))
    zf.I('v_lshrrev_b32 v248, 3, v0')
    zf.I('v_and_b32 v249, 7, v0')
    zf.I('v_lshlrev_b32 v249, 4, v249')
    zf.I('v_lshl_add_u32 v248, v248, 9, v249')
    zf.I('v_add_u32 v249, 4096, v248')
    zf.I('v_lshrrev_b32 v250, 5, v0')
    zf.I('v_lshl_add_u32 v250, v250, 31, v249')
    zf.I('v_add_u32 v250, 4096, v250')
    for i in range(4):
        zf.I('v_mov_b32 v%d, -1' % (WA + i))
    for i in range(3):
        zf.I('buffer_store_dwordx4 %s, v%d, %s, %s offen sc1' % (vr(WA, 4), 248 + i, WS, sZS))
    if layer and EG:
        q[:0] = early
        work = sc0 + tab1 + tbr + addr + neg + late
        a.I('v_readfirstlane_b32 %s, v%d' % (sCK, vCk))
        st(a, 'Y')
        a.I('s_cmp_lg_u32 %s, 15' % sCK)
        a.I('s_cbranch_scc1 a2a_notlast' + ly)
        a.raw('    buffer_atomic_add v%d, v%d, %s, %s offen sc1' % (vAr, vRp, WS, sAr))
        a.label('a2a_notlast' + ly)
        qa = take1(q, opt('a3e', 8))
        n4 = min(len(sc0) + len(tab1), max(len(sc0) + ntb, opt('t3e', 120)))
        rest = timed(work[:n4], qa, 64)
    else:
        b = Asm()
        if layer:
            q[:0] = early
        else:
            a.I('v_mov_b32 v246, 0')
            a.I('global_load_dword v247, v246, %s sc1' % sDBG, tag='gs')
            stream_bases(b)
        b.I('s_lshl_b32 %s, %s, 7' % (sAr, sG))
        b.I('s_add_u32 %s, %s, 0x%x' % (sAr, sAr, LB + oFL + 384 * 128))
        b.I('s_min_u32 s3, %s, 1' % sW)
        b.I('s_lshl_b32 s3, s3, 31')
        b.I('v_or_b32 v%d, s3, v%d' % (vAr, vFl))
        b.I('v_mov_b32 v%d, 1' % vCk)
        qa = take1(q, opt('a1', 7))
        a.ext(take(qa, 2))
        a.ext(timed(b.items + sc0 + tab1[:ntb], qa, 60))
        a.ext(take(qa, 99))
        st(a, 'Y')
        a.items.append(('wait_both', 'gs'))
        st(a, 'Y')
        if not layer:
            a.I('v_readfirstlane_b32 %s, v247' % sT[14])
            a.I('s_cmp_lt_u32 %s, 16' % sT[14])
            a.I('s_cbranch_scc1 rdy_slow')
            a.label('rdy_ok')
        a.I('s_barrier')
        a.I('buffer_atomic_add v%d, v%d, %s, %s offen sc0 sc1' % (vCk, vAr, WS, sAr))
        st(a, 'Q' if layer == 0 else 'R')
        qa = take1(q, opt('a2', 8))
        b = Asm()
        if not layer:
            if EZ and VAL:
                b.ext(zf.items)
            b.I('s_lshl_b32 s3, %s, 2' % sQ)
            b.I('s_add_u32 s3, s3, %s' % sW)
            b.I('s_lshl_b32 s3, s3, 7')
            b.I('s_add_u32 s3, s3, %s' % sT1)
            b.I('s_mul_i32 s3, s3, 1280')
            b.I('v_lshrrev_b32 v%d, 5, v0' % vXs)
            b.I('v_mul_u32_u24 v%d, 81920, v%d' % (vXs, vXs))
            b.I('v_and_b32 v%d, 31, v0' % vRp)
            b.I('v_mad_u32_u24 v%d, v%d, 40, v%d' % (vXs, vRp, vXs))
            b.I('buffer_load_dwordx4 %s, v%d, %s, s3 offen' % (vr(XP, 4), vXs, SA))
            b.I('buffer_load_dwordx4 %s, v%d, %s, s3 offen offset:16' % (vr(XP + 4, 4), vXs, SA))
            b.I('buffer_load_dwordx2 %s, v%d, %s, s3 offen offset:32' % (vr(XP + 8, 2), vXs, SA))
        b.I('s_and_b32 %s, s2, 63' % sRp)
        b.I('v_mov_b32 v%d, v%d' % (vCk + 3, vAr))
        b.I('s_lshl_b32 %s, %s, 7' % (sRp, sRp))
        b.I('s_add_u32 %s, %s, 0x%x' % (sRp, sRp, LB + oFL + 448 * 128))
        b.I('s_mov_b32 %s, 0x%x' % (sAr, LB + oFL + 448 * 128))
        b.I('v_lshlrev_b32 v%d, 7, v0' % vRp)
        b.I('v_mov_b32 v%d, 1' % vAr)
        work = tab1[ntb:] + ([] if O('hoist', 0, 1) else stage_a_tables(T, R0)) + tbr + addr + neg + late + ([] if layer else unpack(range(XP, XP + 10), XE))
        n2 = O('t2', 50, 60)
        a.ext(timed(b.items + work[:n2], qa, 50))
        a.ext(take(qa, 99))
        st(a, 'Y')
        a.I('v_readfirstlane_b32 %s, v%d' % (sCK, vCk))
        st(a, 'Y')
        a.I('s_cmp_lg_u32 %s, 15' % sCK)
        a.I('s_cbranch_scc1 a2a_notlast' + ly)
        a.raw('    buffer_atomic_add v%d, v%d, %s, %s offen sc1' % (vAr, vRp, WS, sAr))
        a.label('a2a_notlast' + ly)
        qa = take1(q, opt('a3', 12))
        n4 = n2 + O('t3', 230, 110)
        rest = timed(work[n2:n4], qa, 64)
    pr = (vCk, vCk + 1, vCk + 2)
    n3 = len(rest) // 3
    for r in range(3):
        a.ext(rest[r * n3:(r + 1) * n3 if r < 2 else 9999])
        a.I('v_mov_b32 v%d, 0' % pr[r])
        a.I('buffer_atomic_add v%d, v%d, %s, %s offen sc0 sc1' % (pr[r], vCk + 3, WS, sRp))
    a.ext(take(qa, 99))
    if q and q[0][-1].tag == 'w':
        assert len(q[0]) == 3
    a.I('s_waitcnt lgkmcnt(0)')
    st(a, 'Y')
    hop(a, layer + 1)
    pt = poll_test(pr, sRp, 4, 'a2a' + ly)
    a.raw('    s_waitcnt vmcnt(2)\n    ' + pt[0].text + '\n    s_nop 1\n    ' + pt[1].text + '\n    ' + pt[2].text)
    a.label('a2a%s_ok' % ly)
    a.label('hop%d_ret' % (layer + 1))
    a.I('s_barrier')
    st(a, 'ABCDPQYZ')
    a.ext(take(gq, 11))
    a.ext(timed(work[n4:], gq, 64, -O('gd', 0, 150)))
    a.ext(take(gq, 20))
    if layer:
        q[:0] = xd
    else:
        q = early + wda_loads()
    late, neg = [], []
    st(a, 'BYZ')
    b = Asm()
    b.items.append(('wait_both', 'g0'))
    b.I('s_barrier')
    st(b, 'YZ')
    b.ext(rds(0)[:12])
    b.ext(weave(mf(0), rds(0)[12:], 0, 2))
    a.ext(timed(b.items, q, O('perB', 40, 60)))
    a.items.append(('wait_both', 'g1'))
    a.I('s_barrier')
    st(a, 'ABYZ')
    b = Asm()
    b.ext(rds(1)[:12])
    if layer and EZ and VAL:
        b.ext(['v_mov_b32 v%d, -1' % (AP + i) for i in range(4)])
        b.ext([Ins('buffer_store_dwordx4 %s, v%d, %s, %s offen sc1' % (vr(AP, 4), vZS[i], WS, sZS), 'zp') for i in range(3)])
    b.ext(neg[:6])
    b.ext(weave(mf(1), rds(1)[12:] + neg[6:], 0, 2))

    def ub(ib):
        d = lambda t: WD + 20 * (ib >> 2) + 4 * t + (ib & 3)
        u = WA + 4 * ib
        return ['v_cvt_pk_bf16_f32 v%d, v%d, v%d' % (u, d(0), d(1)), 'v_cvt_pk_bf16_f32 v%d, v%d, v%d' % (u + 1, d(2), d(3)),
                'v_cvt_pk_bf16_f32 v%d, v%d, 0' % (u + 2, d(4))]
    PQ = [[WD + 4 * ib for ib in range(8)], [TA + 8 * ib for ib in range(8)]]
    mP = ['%s %s, %s, %s, 0' % (M16, vr(PQ[0][ib], 4), vr(TA + 8 * ib, 4), vr(WA + 4 * ib, 4)) for ib in range(8)]
    mQ = ['%s %s, %s, %s, 0' % (M16, vr(PQ[1][ib], 4), vr(TA + 8 * ib + 4, 4), vr(WA + 4 * ib, 4)) for ib in range(8)]

    def vout(pq):
        o = []
        for r in range(4):
            t = (WA + 32, WA + 36, WD + 32, WD + 36)[r]
            for p in range(4):
                o.append('v_cvt_pk_bf16_f32 v%d, v%d, v%d' % (t + p, PQ[pq][2 * p] + r, PQ[pq][2 * p + 1] + r))
            o.append('ds_write_b128 v%d, %s offset:%d' % (vVW[r >> 1], vr(t, 4), pq * 12288 + r * 128))
        return o
    st(b, 'Z')
    ub03 = ub(0) + ub(1) + ub(2) + ub(3)
    if layer and EG and VAL:
        gv = ['v_add_f32 v255, v%d, v%d' % (WD, WD + 4)] + ['v_add_f32 v255, v255, v%d' % (WD + 4 * i) for i in range(2, 9)] + ['v_cmp_u_f32 vcc, v255, v%d' % (WD + 36)]
        b.items.append([Ins(x) for x in gv[:4] + ub03[:10] + gv[4:] + ub03[10:] + ['s_cbranch_vccnz g_slow']] + [('label', 'g_ok')])
        slow3.append((gv, ub03, rds, mf, vGs))
    else:
        b.ext(ub03)
    b.ext(weave(mP[:4] + mQ[:2], ub(4) + ub(5) + ub(6) + ub(7), 0, 2))
    b.ext(mP[4:])
    b.ext(weave(mQ[2:], vout(0), 1, 2))
    a.ext(timed(b.items, q, PER))
    assert not any(g is xd[2] or g[-1].tag == 'w' for g in q)
    a.items.append(('wait_both', 'xa'))
    a.I('s_barrier')
    st(a, 'BZ')
    q[:0] = dma(vD0, sW20, 0, 5, 'w') + dma(vD0, sW20, 40960, 5, 'w') + dma(vD0, sW20, 20480, 5, 'w2') + dma(vD0, sW20, 61440, 5, 'w2')

    def mb(pq, pm):
        o = []
        for k in range(4):
            ri, wh = k >> 1, k & 1
            tb = (((0, 8), (16, 0)), ((24, 32), (32, 40)))[pm][pq][ri]
            acc = vr((AP, AM)[pm], 16)
            o.append('%s %s, %s, %s, %s' % (M32, acc, vr(WA + 16 * pq + 4 * k, 4), vr(TB + tb + 4 * wh, 4), acc if (pq or pm or k or not layer) else '0'))
        return o
    vrd = lambda pq: ['ds_read_b128 %s, v%d offset:%d' % (vr(WA + 16 * pq + 4 * k, 4), vVR[k], pq * 12288) for k in range(4)]
    vq = vout(1)
    S, XU = WD, WD + 20

    def stat(es, first):
        o = []
        for e in es:
            if first:
                o.append('v_add_f32 v%d, v%d, v%d' % (S, XE(e), XE(e + 1)))
                o.append('v_mul_f32 v%d, v%d, v%d' % (S + 1, XE(e), XE(e)))
                first = False
            else:
                o.append('v_add_f32 v%d, v%d, v%d' % (S, S, XE(e)))
                o.append('v_fmac_f32 v%d, v%d, v%d' % (S + 1, XE(e), XE(e)))
                o.append('v_add_f32 v%d, v%d, v%d' % (S, S, XE(e + 1)))
            o.append('v_fmac_f32 v%d, v%d, v%d' % (S + 1, XE(e + 1), XE(e + 1)))
        return o
    un = unpack(range(XP, XP + 10), lambda e: XU + e if e < 10 else XE(e))
    radd = ['v_add_f32 v%d, v%d, v%d' % (AP + e, AP + e, XU + e) for e in range(10)]
    a.ext(vrd(0))
    if layer:
        a.I('ds_read_b128 %s, v%d offset:128' % (vr(XP + 4, 4), vA0))
        a.I('ds_read_b64 %s, v%d' % (vr(XP + 8, 2), vA2))
        a.I('ds_read_b128 %s, v%d' % (vr(XP, 4), vA0))
    else:
        un, radd = [], []
    a.ext(take(q, 1))
    a.ext(vq[:9])
    mm = mb(0, 0)
    a.ext([mm[0]] + vq[9:14] + [mm[1]] + vq[14:19] + [mm[2]] + vq[19:] + un[10:12] + [mm[3]] + take(q, 1) + un[12:])
    a.I('s_waitcnt lgkmcnt(0)')
    a.I('s_barrier')
    st(a, 'Z')
    mm = mb(0, 1) + mb(1, 0) + mb(1, 1)
    a.ext([mm[0]] + vrd(1) + un[:2] + [mm[1]] + un[2:8] + [mm[2]] + un[8:10] + radd[:4] + [mm[3]] + radd[4:])
    late = ['s_lshl_b32 s3, %s, 6' % sW, 'v_add_u32 v1, s3, v0', 'v_lshrrev_b32 v1, 2, v1', 'v_min_u32 v1, 1, v1', 'v_lshlrev_b32 v1, 31, v1',
            'v_lshl_add_u32 v1, v0, 7, v1', 'v_mov_b32 v2, 1']
    li = 0
    for i in range(4, 10):
        a.I(mm[i])
        a.ext(take(q, 1) if (i % 2 == 0 or O('sb', 1, 1)) else [])
        a.ext(late[li:li + 5 + i % 2])
        li += 5 + i % 2
    s0 = stat(range(0, 10, 2), True)
    a.I(mm[10])
    a.ext(take(q, 1) + s0[:5])
    a.I(mm[11])
    b = Asm()
    b.ext(s0[5:])
    st(b, 'BZ')
    b.ext(stat(range(10, 20, 2), False))
    red = []
    for m in ('quad_perm:[1,0,3,2]', 'quad_perm:[2,3,0,1]', 'row_half_mirror', 'row_mirror'):
        for i in range(2):
            red.append('v_add_f32_dpp v%d, v%d, v%d %s row_mask:0xf bank_mask:0xf' % (S + i, S + i, S + i, m))
    b.ext(weave(red, late[li:], 1, 0.5))
    b.I('v_mov_b32 v%d, v%d' % (S + 2, S))
    b.I('v_mov_b32 v%d, v%d' % (S + 3, S + 1))
    b.I('v_permlane16_swap_b32 v%d, v%d' % (S, S + 2))
    b.I('v_permlane16_swap_b32 v%d, v%d' % (S + 1, S + 3))
    b.I('v_add_f32 v%d, v%d, v%d' % (S, S, S + 2))
    b.I('v_add_f32 v%d, v%d, v%d' % (S + 1, S + 1, S + 3))
    ln_coef(b, S, S + 1, S + 2, S + 4, None, LOG2E)
    st(b, 'Z')
    ZP = WA
    pkf = lambda r: 'v_pk_fma_f32 %s, %s, %s, %s op_sel_hi:[1,0,0]' % (vr(r, 2), vr(r, 2), vr(S + 2, 2), vr(S + 4, 2))
    cz = lambda i: 'v_cvt_pk_bf16_f32 v%d, v%d, v%d' % (ZP + i, XE(2 * i), XE(2 * i + 1))
    for i in range(4):
        b.I(pkf(AP + 2 * i))
    for i in range(4):
        b.I(cz(i))
    b.I('ds_write_b128 v%d, %s' % (vA0, vr(ZP, 4)))
    for r in (AP + 8, AM + 10, AM + 8, AM + 6, AM + 4):
        b.I(pkf(r))
    for i in range(4, 8):
        b.I(cz(i))
    b.I('ds_write_b128 v%d, %s offset:128' % (vA0, vr(ZP + 4, 4)))
    b.I(pkf(AM + 2))
    b.I(pkf(AM))
    b.I(cz(8))
    b.I(cz(9))
    b.I('ds_write_b64 v%d, %s' % (vA2, vr(ZP + 8, 2)))
    qa = take1(q, O('nS', 3, 4))
    a.ext(timed(b.items, qa, PER))
    a.I('v_rcp_f32 v%d, v%d' % (S + 1, S + 2))
    a.I('v_mul_f32 v%d, %s, v%d' % (S, fl(1.0 / 640), S))
    a.items.append(('wait_both', 'zp'))
    a.I('s_barrier')
    st(a, 'Z')
    for it in range(3):
        a.I('ds_read_b128 %s, v%d offset:%d' % (vr(WD + 8 + 4 * it, 4), vRB, 1024 * it))
    if EZ == 1:
        a.I('buffer_atomic_add v2, v1, %s, %s offen sc1' % (WS, sZF))
    if opt('stress', 0):
        a.I('s_bitcmp1_b32 s2, 6\ns_cbranch_scc1 .Lst%d\ns_sleep 40' % layer)
        a.label('.Lst%d' % layer)
    a.I('buffer_store_dwordx2 %s, v%d, %s, %s offen sc1' % (vr(S, 2), vRo, WS, sRS), tag='zs')
    for it in range(3):
        a.I('buffer_store_dwordx4 %s, v%d, %s, %s offen sc1' % (vr(WD + 8 + 4 * it, 4), vZS[it], WS, sZS), tag='zs')
    a.I('s_barrier')
    if EZ == 2:
        a.I('buffer_atomic_add v2, v1, %s, %s offen sc1' % (WS, sZF))
    st(a, 'ABZ')
    a.I('s_mul_i32 %s, %s, 9216' % (sW9, sW))
    w1 = [g for g in q if g[-1].tag in ('w', 'w2')]
    rest = [g for g in q if g[-1].tag not in ('w', 'w2')]
    sys.stderr.write('layer %d after KB: w1 left %d, wda left %d\n' % (layer, len(w1), len(rest)))
    return w1, dma(vD0, sW9, L_V, 9, 't3'), rest


def gemms(a, st, layer, qw, q3, q):
    LB = LB0 + layer * LBS
    LN = LB + LBS
    EZ = EZL[layer]
    KEEP = layer == 0 and NRE == 0
    ly = str(layer)
    O = lambda name, d0, d1=None: opt(name + ly, opt(name, d0 if (layer == 0 or d1 is None or not PERS) else d1))
    vLD, vZ, vL8, vC, vSg, vH = (vL16, 1, 2), 3, 4, 5, 6, 7
    vS0, vS1 = 8, 9
    HP, ACC, ET, Z = 16, [24, 40, 56, 72], 88, 96
    WB = 160
    sZ, sZc, sHS, sH6, sW5, sT6, sC2 = sT[0], sT[1], sT[3], sT[4], sT[5], sT[6], sT[7]
    sQ, sZp = sT[2], sT[12]
    b = Asm()
    b.I('v_mov_b32 v%d, 1' % vSg)
    b.I('s_lshl_b32 %s, %s, 2' % (sZ, sG))
    b.I('s_add_u32 %s, %s, %s' % (sZ, sZ, sW))
    b.I('s_lshl_b32 %s, %s, 9' % (sZc, sZ))
    b.I('s_add_u32 %s, %s, 0x%x' % (sZc, sZc, LB + oFL))
    b.I('s_lshr_b32 %s, %s, 2' % (sZp, sMU))
    b.I('s_lshl_b32 %s, %s, 7' % (sZp, sZp))
    b.I('s_add_u32 %s, %s, %s' % (sZp, sZp, sZc))
    b.I('s_lshl_b32 s3, %s, 6' % sW)
    b.I('v_add_u32 v%d, s3, v0' % vH)
    b.I('v_lshrrev_b32 v%d, 2, v%d' % (vH, vH))
    b.I('v_min_u32 v%d, 1, v%d' % (vH, vH))
    b.I('v_lshlrev_b32 v%d, 31, v%d' % (vH, vH))
    b.I('v_lshl_add_u32 v%d, v0, 7, v%d' % (vH, vH))
    b.I('s_mul_i32 %s, %s, 110592' % (sHS, sZ))
    b.I('s_mul_i32 %s, %s, 40960' % (sZ, sZ))
    b.I('s_add_u32 %s, %s, 0x%x' % (sZ, sZ, LB + oZ))
    b.I('v_lshrrev_b32 v%d, 4, v0' % vZ)
    b.I('v_and_b32 v%d, 15, v0' % vL8)
    b.I('v_lshlrev_b32 v%d, 4, v%d' % (vL8, vL8))
    b.I('v_lshl_add_u32 v%d, v%d, 9, v%d' % (vZ, vZ, vL8))
    b.I('v_add_u32 v%d, %s, v%d' % (vZ, sZ, vZ))
    b.I('v_lshlrev_b32 v%d, 3, v0' % vL8)
    b.I('v_add_u32 v%d, 0x10000, v%d' % (vLD[1], vL16))
    b.I('v_add_u32 v%d, 0x20000, v%d' % (vLD[2], vL16))
    b.I('s_add_u32 %s, %s, 0x%x' % (sHS, sHS, LB + oH))
    b.I('s_lshr_b32 s3, %s, 2' % sMU)
    b.I('s_sub_u32 %s, %s, s3' % (sH6, sMU))
    b.I('s_lshl_b32 %s, %s, 10' % (sH6, sH6))
    b.I('s_add_u32 %s, %s, %s' % (sH6, sH6, sHS))
    b.I('s_add_u32 %s, %s, 98304' % (sH6, sH6))
    b.I('s_mul_i32 s3, s3, 24576')
    b.I('s_add_u32 %s, %s, s3' % (sHS, sHS))
    b.I('s_lshl_b32 s3, %s, 11' % sQ)
    b.I('s_add_u32 %s, %s, s3' % (sHS, sHS))
    b.I('s_mul_i32 %s, %s, 5120' % (sW5, sW))
    b.I('s_add_u32 %s, %s, 1' % (sT6, sQ))
    b.I('s_lshr_b32 %s, %s, 2' % (sT6, sT6))
    b.I('s_lshl_b32 %s, %s, 31' % (sT6, sT6))
    b.I('s_mov_b32 %s, %s' % (sC2, fl(LOG2E * LOG2E)))
    set1 = b.items
    b = Asm()
    b.I('s_lshl_b32 %s, %s, 2' % (sHF, sG))
    b.I('s_lshr_b32 s3, %s, 2' % sMU)
    b.I('s_add_u32 %s, %s, s3' % (sHF, sHF))
    b.I('s_lshl_b32 %s, %s, 1' % (sHF, sHF))
    b.I('s_lshr_b32 s3, %s, 1' % sW)
    b.I('s_add_u32 %s, %s, s3' % (sHF, sHF))
    b.I('s_lshl_b32 %s, %s, 7' % (sHF, sHF))
    b.I('s_add_u32 %s, %s, 0x%x' % (sHF, sHF, LB + oFL + 256 * 128))
    b.I('s_lshl_b32 %s, %s, 2' % (sHC, sG))
    b.I('s_add_u32 %s, %s, %s' % (sHC, sHC, sW))
    b.I('s_lshl_b32 %s, %s, 1' % (sHC, sHC))
    b.I('s_add_u32 %s, %s, %s' % (sHC, sHC, sHB))
    b.I('s_lshl_b32 %s, %s, 7' % (sHC, sHC))
    b.I('s_add_u32 %s, %s, 0x%x' % (sHC, sHC, LB + oFL + 256 * 128))
    sHP = sT[13:17]
    b.I('s_lshl_b32 %s, %s, 1' % (sT[17], sG))
    b.I('s_add_u32 %s, %s, %s' % (sT[17], sT[17], sHB))
    b.I('s_mul_i32 %s, %s, %d' % (sT[17], sT[17], 2 * 110592))
    b.I('s_mul_i32 s3, %s, 24576' % sW)
    b.I('s_add_u32 %s, %s, s3' % (sT[17], sT[17]))
    b.I('s_add_u32 %s, %s, 0x%x' % (sT[17], sT[17], LB + oH))
    for p in range(4):
        b.I('s_xor_b32 %s, %s, %d' % (sT[18], sW, 3 - p))
        b.I('s_lshr_b32 s3, %s, 1' % sT[18])
        b.I('s_mul_i32 s3, s3, 110592')
        b.I('s_add_u32 %s, %s, s3' % (sHP[p], sT[17]))
        b.I('s_and_b32 s3, %s, 1' % sT[18])
        b.I('s_lshl_b32 s3, s3, 10')
        b.I('s_add_u32 %s, %s, s3' % (sHP[p], sHP[p]))
    set2 = b.items

    NG = O('ng', 2)
    groups = [[(t, ks, m) for t in range(3) for m in range(2)] for ks in range(5 * NG)]
    for kg in range(NG, 4):
        tm = [(t, m) for t in range(3) for m in range(2)] if kg < 3 else [(t, m) for m in range(2) for t in range(3)]
        groups += [[(t, 5 * kg + i, m) for i in range(5)] for t, m in tm]
    groups += [[(t, 5 * kg + i, m) for i in range(5)] for t in range(3, 7) for m in range(2) for kg in range(4)]
    gstart = [0]
    for gr in groups:
        gstart.append(gstart[-1] + 2 * len(gr))
    DST = [0, 40960, 81920, 20480, 61440, 102400]
    accof = [0, 1, 2, 3, 0, 1, 2]
    wbuf = lambda gi, i: vr(WB + 20 * (gi & 1) + 4 * i, 4, 'a') if i < 5 else vr(ACC[3] + 4 * (gi & 1), 4)

    def grp_reads(n):
        o = []
        for i, (t, ks, m) in enumerate(groups[n]):
            kg = ks // 5
            off = t * 40960 + kg * 10240 if t < 4 else DST[2 * (t - 4) + (kg >> 1)] + (kg & 1) * 10240
            off += m * 5120 + (ks % 5) * 1024
            o.append('ds_read_b128 %s, v%d offset:%d' % (wbuf(n, i), vLD[off >> 16], off & 0xffff))
        return o

    q[:0] = qw + q3
    pr = (vC, vS0, vS1)
    if EZ:
        a.ext(take(q, max(O('nA', 2), len([g for g in q if g[-1].tag == 'w']))))
        st(a, 'Z')
        st(a, 'B')
        su = set1 + set2
        cut = [0, O('p1', 44), O('p2', 68), 999]
        for r in range(3):
            a.ext(su[cut[r]:cut[r + 1]])
            a.ext(check_issue(pr[r], sZp))
            a.ext(take(q, O('nC', 1, 1)))
        a.ext(take(q, O('nD', 2, 2)))
    else:
        nA = O('nA', 7)
        qa = take1(q, nA)
        a.ext(take(qa, 4))
        a.ext(timed(set1, qa, 24))
        a.ext(take(qa, 99))
        a.wait_vm('zs')
        st(a, 'Z')
        a.I('s_barrier')
        a.I('buffer_atomic_add v%d, v%d, %s, %s offen sc1' % (vSg, vH, WS, sZF))
        st(a, 'B')
        pr = (vC, vS0, vS1)
        a.ext(take(q, O('nB', 8, 1)))
        dB = O('dB', 16)
        for r in range(3):
            a.ext(set2[r * dB:(r + 1) * dB if r < 2 else 99])
            a.ext(check_issue(pr[r], sZp))
            a.ext(take(q, O('nC', 3, 1)))
        assert not any(g[-1].tag in ('w', 'w2') for g in q)
    sys.stderr.write('into GEMM1: left %d\n' % len(q))
    st(a, 'Z')
    a.wait_vm('w')
    a.I('s_barrier')
    a.ext(grp_reads(0))
    a.ext(poll_test(pr, sZp, 2, 'zf' + ly))
    st(a, 'ACPQZ')
    zq = []
    for ks in range(20):
        for rt in range(2):
            zq.append(([Ins('v_add_u32 v%d, 4096, v%d' % (vZ, vZ))] if (ks and ks % 2 == 0 and rt == 0) else []) +
                      [Ins('buffer_load_dwordx4 %s, v%d, %s, 0 offen offset:%d sc1' % (vr(Z + 8 * ks + 4 * rt, 4), vZ, WS, (ks & 1) * 2048 + rt * 256), 'z%d' % (ks if ks < 5 * NG else ks // 5 * 5))])
    a.ext(take(zq, O('nz', 11)))
    nzv = [0]

    def zval(kss):
        r = [Z + 8 * ks + 4 * rt for ks in kss for rt in range(2)]
        o = ['v_max_u32 v%d, v%d, v%d' % (ET, r[0], r[1])] + ['v_max3_u32 v%d, v%d, v%d, v%d' % (ET, ET, r[i], r[i + 1]) for i in range(2, len(r), 2)]
        nzv[0] += 1
        name = 'zv%s_%d' % (ly, nzv[0])
        slow3.append((name, ly))
        return o + ['v_cmp_eq_u32 vcc, -1, v%d' % ET], [Ins('s_cbranch_vccnz %s_slow' % name), ('label', name + '_ok')]
    if EZ and VAL:
        a.I('buffer_atomic_add v%d, v%d, %s, %s offen offset:8 sc1' % (vSg, vFl, WS, sZF))
        slow3.append(('zrel', ly, sZc, sZ, Z, ET))
        o, br = zval([0])
        a.ext(o)
        a.I('s_waitcnt lgkmcnt(0)')
        a.ext(br)
    a.I('s_waitcnt lgkmcnt(0)')
    w2 = [g for g in q if g[-1].tag == 'w2']
    del q[:len(w2)]
    for i, g in enumerate(w2):
        zq.insert(O('w2a', 2) + i * O('w2s', 2), g)

    prevd = [0]

    def half_dma(h):
        g = dma(vD0, sW5, DST[h], 5, 't%d' % (4 + h // 2))
        d = (8 + h) * 20480 - DST[h]
        pre = [Ins('v_add_u32 v%d, 0x%x, v%d' % (vD0, (d - prevd[0]) & 0xffffffff, vD0))]
        prevd[0] = d
        if h == 4:
            pre.append(Ins('v_add_u32 v%d, %s, v%d' % (vD0, sT6, vD0)))
        g[0] = pre + g[0]
        return g

    def epg(t):
        A = ACC[accof[t]]
        o = []
        for r in range(8):
            o.append('v_exp_f32_e64 v%d, -v%d' % (ET + r, A + r))
            o.append('v_fma_f32 v%d, v%d, %s, %s' % (ET + r, ET + r, sC2, sC2))
        for r in range(8):
            o.append('v_rcp_f32 v%d, v%d' % (ET + r, ET + r))
            o.append('v_mul_f32 v%d, v%d, v%d' % (A + r, A + r, ET + r))
        return o

    def epu(t):
        A = ACC[accof[t]]
        o = []
        for p in range(4):
            for r in (2 * p, 2 * p + 1):
                o.append('v_mul_f32 v%d, v%d, v%d' % (A + 8 + r, A + 8 + r, A + r))
            o.append('v_cvt_pk_bf16_f32 v%d, v%d, v%d' % (HP + 4 * (p >> 1) + 2 * (t & 1) + (p & 1), A + 8 + 2 * p, A + 9 + 2 * p))
        return o

    def hstore(e):
        if e < 3:
            return [Ins('buffer_store_dwordx4 %s, v%d, %s, %s offen offset:%d sc1' % (vr(HP + 4 * rt, 4), vL16, WS, sHS, 1024 * rt), 'hs%d' % e) for rt in range(2)] + \
                   [Ins('s_add_u32 %s, %s, 8192' % (sHS, sHS))]
        return [Ins('buffer_store_dwordx2 %s, v%d, %s, %s offen offset:%d sc1' % (vr(HP + 4 * rt, 2), vS0, WS, sH6, 512 * rt), 'hs3') for rt in range(2)]

    def signal(e):
        return [Ins('v_mov_b32 v%d, 0x%x' % (vSg, 1 << (8 * e) if e < 3 else 1)),
                [('wait_vm', 'hs%d' % e), Ins('buffer_atomic_add v%d, v%d, %s, %s offen offset:%d sc1' % (vSg, vFl, WS, sHF if e < 3 else sZc, 0 if e < 3 else 4))]]

    hs = [[('v', r + 4 * i) for r in (ACC[3], ACC[0], 144, 160) for i in range(4)],
          [('v', r + 4 * i) for r in (ACC[1], 96, 112, 128) for i in range(4)],
          [('a', 4 * i) for i in range(16)],
          [('v', 144 + 4 * i) for i in range(6)]]
    wsl = [('a', 184 + 4 * i) for i in range(4)] + [('a', 64 + 4 * i) for i in range(4)] + [('v', 168), ('v', 172)] + [('v', 96 + 4 * i) for i in range(8)] + [('a', 80 + 4 * i) for i in range(12)]
    if KEEP:
        hs[2] = [(k, r + 4 * i) for k, r in (('v', 144), ('v', 160), ('a', 184), ('v', 96)) for i in range(4)]
        hs[3] = [('v', 144 + 4 * i) for i in range(4)] + [('v', 48), ('v', 52)]
        wsl = [('v', 88)] + [('v', 112 + 4 * i) for i in range(8)] + [('v', 64 + 4 * i) for i in range(3)] + [('v', 160 + 4 * i) for i in range(4)] + \
              [('a', 184 + 4 * i) for i in range(4)] + [('v', 96 + 4 * i) for i in range(4)] + [('a', 160 + 4 * i) for i in range(6)]
    wb2 = [('a', 200 + 4 * i) for i in range(14)] + [('a', 160 + 4 * i) for i in range(6)]
    wd = lambda ps, i, n: ('a', 80 * ps + 20 * i + 4 * n) if ps < 2 else (wb2[5 * i + n] if ps == 2 else wsl[5 * i + n])
    R = lambda s, n=4, o=0: vr(s[1] + o, n, s[0])

    def hload(ps, p):
        o = []
        tag = 'h%d%d' % (ps, p)
        if ps < 3:
            for i in range(4):
                g = []
                if i % 2 == 0:
                    g += [Ins('v_add_u32 v%d, %s, v%d' % (vH, sHP[p], vL16)), Ins('s_add_u32 %s, %s, 4096' % (sHP[p], sHP[p]))]
                g.append(Ins('buffer_load_dwordx4 %s, v%d, %s, 0 offen offset:%d sc1' % (R(hs[ps][4 * p + i]), vH, WS, (i & 1) * 2048), tag))
                o.append(g)
        else:
            for i in range(12):
                g = [Ins('v_add_u32 v%d, 4096, v%d' % (vHs, vHs))] if i in (4, 8) else []
                g.append(Ins('buffer_load_dwordx2 %s, v%d, %s, 0 offen offset:%d sc1' % (R(hs[3][i >> 1], 2, 2 * (i & 1)), vHs, WS, (i % 4) * 1024), 'h3_%d' % (i >> 1)))
                o.append(g)
        return o

    sc = Sched()
    G = 560
    bar = {(110 if NG < 2 else 108): (None if NG < 2 else 'z9'), 230: 't4', 390: 't6', 470: 'sts'}
    if O('b4', 1):
        bar.update({230: 't3', 310: 't4'})
    for gi in range(1, len(groups)):
        n = gstart[gi]
        zw = (n <= 60 * NG or n in (120, 180))
        if zw and EZ and VAL:
            ks = groups[gi][0][1]
            o, br = zval([ks] if ks < 5 * NG else range(ks, ks + 5))
            m = n - 3 - len(o) // 2
            sc.add([('wait_vm', 'z%d' % ks), o[0]], m - 1, m - 1)
            sc.asap(o[1:], m - 1, n - 3)
            sc.add(br, n - 2, n - 2)
            sc.items[-1].dst -= {'vmq'}
        if n in bar:
            sc.add([('wait_both', 'w2' if (n < 120 and w2) else bar[n]), 's_barrier'], n - 1, n - 1)
        elif zw and not (EZ and VAL):
            sc.add([('wait_both', 'z%d' % groups[gi][0][1])], n - 1, n - 1)
        else:
            sc.add('s_waitcnt lgkmcnt(0)', n - 1, n - 1)
        for i, x in enumerate(grp_reads(gi)):
            sc.add(x, gstart[gi - 1], gstart[gi - 1] + 1 + (i * 3) // 4)

    def check(e, n0, n1):
        so = sHC if e < 3 else sC3
        if e == 2 and O('sck', 1):
            name = 'h%d%s' % (e, ly)
            slow.append((None, so, 8 * e + 3 if e < 3 else 4, name))
            sc.add('s_load_dword %s, s[52:53], %s glc' % (sCK, so), n0, n0 + 2)
            sc.add(['s_waitcnt lgkmcnt(0)', 's_bitcmp1_b32 %s, %d' % (sCK, 8 * e + 3 if e < 3 else 4), 's_cbranch_scc0 %s_slow' % name, ('label', name + '_ok')], n1, n1 + 3)
            return n1 + 1
        sc.asap(check_issue(vC, so), n0, n0 + 3)
        ct = check_test(vC, so, 8 * e + 3 if e < 3 else 4, 'h%d%s' % (e, ly))
        sc.add([('wait_vm', 'ck'), ct[0]], n1, n1 + 2)
        sc.add(ct[1], n1 + 2, n1 + 4)
        return n1 + 3
    SUM, TMP, PK, vA0, vA2, vRs, vHs = 24, 44, 64, 8, 9, 16, 17
    vPW, vPR, PO = (3, 10), (11, 22, 23), (0, 5120, 20480)
    sX1, sO, sC3, sRS = sT[0], sT[8], sT[9], sT[10]
    e0, e1, e2, e3 = O('e0', 290), O('e1', 376), O('e2', 497), G + O('e3', 13)
    ze = O('zend', 116) + 4 * len(w2)
    sc.paced(zq, 0, ze)
    q3l = [g for g in q if g[-1].tag == 't3']
    qd = [g for g in q if g[-1].tag != 't3']
    l1 = q3l + half_dma(0) + half_dma(1) + half_dma(2)
    r1 = O('r1', 42)
    n1 = max(0, (232 - ze) * 10 // r1 - len(l1))
    plan = n1 + O('n3', 14, 12) - (15 - (e0 - 232) * 10 // r1) + O('n4', 2, 2) + O('n5', 5, 4) + (O('n6', 10) if layer == 0 else 0)
    xs = max(0, -(-(len(qd) - plan) // 4))
    sys.stderr.write('extra per window %d\n' % xs)
    sc.paced(l1 + take1(qd, n1 + xs), ze, 232)
    l2 = half_dma(3) + half_dma(4) + half_dma(5)
    sc.paced(take1(l2, (e0 - 232) * 10 // r1), 232, e0)
    sts = dma(vS1, sT[19], 122880, 8, 'sts')
    sts[0] = [Ins('s_mul_i32 %s, %s, 7680' % (sT[19], sW)), Ins('s_mul_i32 s3, %s, 276480' % sJJ), Ins('s_add_u32 s3, s3, 0x%x' % (WDP + 245760 - 122880)),
              Ins('v_add_u32 v%d, s3, v%d' % (vS1, vL16))] + sts[0]
    l3 = l2 + qd
    ct0 = O('ct0', 436)
    n3 = take1(l3, O('n3', 14, 12) + xs)
    if n3:
        sc.paced(n3, e0 + 6, e1)
    sc.paced(sts + take1(l3, O('n4', 2, 2) + xs), O('s0', e1 + 6) if O('b4', 1) else 392, ct0 - O('s1', 8))
    sc.asap(epg(0), 196, 260)
    sc.asap(epg(1), 206, e0 - 6)
    sc.asap(epu(0), 226, e0 - 8)
    sc.asap(epu(1), 236, e0 + 2)
    sc.asap(hstore(0), e0, e0 + 6)
    sc.asap(epg(2), 240, 340)
    sc.asap(epu(2), e0 + 2, e1 - 8)
    sc.asap(epg(3), 286, e1 - 6)
    sc.asap(epu(3), 326, e1 + 2)
    sc.asap(signal(0), O('sg0', 348), O('sg0', 348) + 3)
    sc.asap(hstore(1), e1, e1 + 6)
    sc.asap(epg(4), 366, 430)
    sc.asap(epu(4), 406, 440)
    n = check(0, O('ck0', 384), ct0)
    sc.asap(signal(1), O('sg1', 434), O('sg1', 434) + 4)
    sSa = sT[19]
    hst = dma(vS1, sSa, 0, 8, 'hst')
    sc.asap([Ins('s_lshr_b32 %s, %s, 1' % (sSa, sW)), Ins('s_mul_i32 %s, %s, 20480' % (sSa, sSa)), Ins('s_mul_i32 s3, %s, 10240' % sW),
              Ins('s_add_u32 %s, %s, s3' % (sSa, sSa)), Ins('s_min_u32 s3, %s, %s' % (sHP[2], sHP[3])), Ins('s_sub_u32 s3, s3, %s' % sSa),
              Ins('v_add_u32 v%d, s3, v%d' % (vS1, vL16)), Ins('s_sub_u32 s3, %s, s3' % sHP[2]), Ins('v_add_u32 v10, s3, v%d' % vL16),
              Ins('s_add_u32 %s, %s, 8192' % (sHP[2], sHP[2])), Ins('s_add_u32 %s, %s, 8192' % (sHP[3], sHP[3]))], ct0, ct0 + 24)
    sc.paced(hload(0, 0) + hload(0, 1) + hst, n, O('h0e', e2 + 4))
    sc.asap(epg(5), 446, 490)
    sc.asap(epu(5), 486, e2 + 2)
    n = check(1, O('ck1', 470), O('ct1', 522))
    sc.asap(hstore(2), e2, e2 + 6)
    if l3:
        sc.paced(take1(l3, O('n5', 5, 4) + xs), e2 + 6, n)
    sc.asap(epg(6), 526, G + 6)
    sc.add('v_add_u32 v%d, %s, v%d' % (vS0, sT6, vL8), 500, 550)
    sc.asap(epu(6), G + 6, e3 + 2)
    sc.asap(signal(2), O('sg2', 558), O('sg2', 558) + 3)
    sc.asap(hstore(3), e3, e3 + 4)
    h1e = G + O('h1e', 40)
    sc.paced(hload(1, 0) + hload(1, 1) + hload(1, 2) + hload(1, 3), n, h1e)
    sc.add([('wait_vm', 'hst')], G - 1, G - 1)
    sc.asap(['ds_read_b128 %s, v10 offset:%d' % (R(hs[0][8 + i]), 2048 * i) for i in range(4)] + ['v_xor_b32 v10, 0x400, v10'] +
            ['ds_read_b128 %s, v10 offset:%d' % (R(hs[0][12 + i]), 2048 * i) for i in range(4)], G + 16, G + 28)
    sc.add('s_waitcnt lgkmcnt(0)', G + 38, G + 38)
    n = check(2, G + O('ck2', 44), G + O('ct2', 84))
    wl = []
    for i in range(54, 60):
        wl.append(([Ins('v_add_u32 v%d, 4096, v%d' % (vWa, vWa))] if i % 4 == 0 else []) +
                  [Ins('buffer_load_dwordx4 %s, v%d, %s, 0 offen offset:%d sc1' % (R(wb2[i - 40]), vWa, WS, (i % 4) * 1024))])
    assert len(l3) <= (14 if layer == 0 else max(0, NRE - 40))
    if layer and NRE < 54:
        wl[0] = [Ins('v_add_u32 v%d, %d, v%d' % (vWa, 4096 * (13 - max(NRE - 1, 0) // 4), vWa))] + wl[0]
    sc.paced(l3 + wl, h1e, G + O('wle', 70))
    sc.asap(signal(3), e3 + O('sg3', 56), e3 + O('sg3', 56) + 4)
    sc.paced(hload(2, 0) + hload(2, 1) + hload(2, 2) + hload(2, 3), max(n, G + 81), G + O('h2e', 150))
    srd_ = []
    for i in range(6):
        for c in range(5):
            off = 122880 + i * 5120 + c * 1024
            srd_.append('ds_read_b128 %s, v%d offset:%d' % (R(wd(3, i, c)), vLD[off >> 16], off & 0xffff))
    if KEEP:
        sc.paced(srd_[:5], G + 142, G + 160)
        sc.paced(srd_[5:9], G + 161, G + 169)
        sc.paced(srd_[9:16], G + 196, G + 218)
        sc.paced(srd_[16:20], G + 221, G + 229, G + 230)
        sc.asap(srd_[20:], G + 241, G + 248)
    else:
        sc.paced(srd_[:18], G + 92, G + 157, G + 158)
        sc.paced(srd_[18:], G + 161, G + 176, G + 178)
    n = check(3, G + O('ck3', 146), G + O('ct3', 190))
    sc.paced(hload(3, 3), n, n + O('h3n', 30))
    b = Asm()
    b.I('s_lshl_b32 %s, %s, 1' % (sC3, sG))
    b.I('s_add_u32 %s, %s, %s' % (sC3, sC3, sHB))
    b.I('s_lshl_b32 %s, %s, 2' % (sC3, sC3))
    b.I('s_add_u32 %s, %s, %s' % (sC3, sC3, sW))
    b.I('s_lshl_b32 %s, %s, 7' % (sRS, sC3))
    b.I('s_add_u32 %s, %s, 0x%x' % (sRS, sRS, LB + oRS))
    b.I('s_lshr_b32 %s, %s, 1' % (sC3, sC3))
    b.I('s_mul_i32 %s, %s, 40960' % (sX1, sC3))
    b.I('s_mul_i32 %s, %s, 110592' % (sO, sC3))
    b.I('s_lshl_b32 %s, %s, 9' % (sC3, sC3))
    b.I('s_add_u32 %s, %s, 0x%x' % (sC3, sC3, LB + oFL + 4))
    b.I('s_and_b32 %s, %s, 1' % (sT[3], sW))
    b.I('s_lshl_b32 %s, %s, 8' % (sT[3], sT[3]))
    b.I('s_add_u32 %s, %s, %s' % (sX1, sX1, sT[3]))
    b.I('s_add_u32 %s, %s, %s' % (sO, sO, sT[3]))
    b.I('s_add_u32 %s, %s, %s' % (sO, sO, sT[3]))
    b.I('s_add_u32 %s, %s, 0x%x' % (sO, sO, LB + oH + 98304))
    b.I('v_add_u32 v%d, %s, v%d' % (vHs, sO, vL8))
    b.I('s_mul_i32 %s, %s, 5120' % (sT[3], sJJ))
    b.I('s_add_u32 %s, %s, %s' % (sX1, sX1, sT[3]))
    b.I('s_add_u32 %s, %s, 0x%x' % (sX1, sX1, LB + oZ))
    b.I('v_and_b32 v%d, 15, v0' % ET)
    b.I('v_lshlrev_b32 v%d, 3, v%d' % (vRs, ET))
    b.I('v_lshrrev_b32 v%d, 5, v0' % (ET + 1))
    b.I('v_mul_u32_u24 v%d, 2560, v%d' % (ET + 1, ET + 1))
    b.I('v_lshl_add_u32 v%d, v%d, 4, v%d' % (ET, ET, ET + 1))
    b.I('v_bfe_u32 v%d, v0, 4, 1' % (ET + 1))
    b.I('v_lshl_add_u32 v%d, v%d, 3, v%d' % (vA2, ET + 1, ET))
    b.I('v_mul_u32_u24 v%d, 1536, v%d' % (ET + 1, ET + 1))
    b.I('v_add_u32 v%d, v%d, v%d' % (vA0, ET, ET + 1))
    for r, x in ((vPW[0], 0), (vPR[0], 3), (vPR[1], 2)):
        b.I('s_xor_b32 %s, %s, %d' % (sT[3], sW, x))
        b.I('s_and_b32 %s, %s, 2' % (sT[18], sT[3]))
        b.I('s_add_u32 %s, %s, %s' % (sT[3], sT[3], sT[18]))
        b.I('s_mul_i32 %s, %s, 10240' % (sT[3], sT[3]))
        b.I('v_add_u32 v%d, %s, v%d' % (r, sT[3], vL16))
    for r, x in ((vPW[1], 0), (vPR[2], 1)):
        b.I('s_xor_b32 %s, %s, %d' % (sT[3], sW, x))
        b.I('s_mul_i32 %s, %s, 5120' % (sT[3], sT[3]))
        b.I('v_add_u32 v%d, %s, v%d' % (r, sT[3], vL16))
    vOW, vOR, vOG = 18, (19, 20, 21), (ET + 3, ET + 4, ET + 5)
    if layer == 1:
        srd(b, 8, 62, XB)
        row_nat_soff(b, sO, sT[3])
        b.I('s_mul_i32 %s, %s, 160' % (sT[3], sJJ))
        b.I('s_add_u32 %s, %s, %s' % (sO, sO, sT[3]))
        b.I('s_mul_i32 %s, %s, 2816' % (sT[3], sW))
        b.I('s_add_u32 %s, %s, 61440' % (sT[3], sT[3]))
        b.I('v_and_b32 v%d, 15, v0' % ET)
        b.I('v_mul_u32_u24 v%d, 176, v%d' % (vOW, ET))
        b.I('v_lshrrev_b32 v%d, 4, v0' % ET)
        b.I('v_mad_u32_u24 v%d, v%d, 40, v%d' % (vOW, ET, vOW))
        b.I('v_add_u32 v%d, %s, v%d' % (vOW, sT[3], vOW))
        for it in range(3):
            b.I('v_add_u32 v%d, %d, v0' % (ET, 64 * it))
            b.I('v_mul_u32_u24 v%d, 205, v%d' % (ET + 1, ET))
            b.I('v_lshrrev_b32 v%d, 11, v%d' % (ET + 1, ET + 1))
            b.I('v_add_u32 v%d, v%d, v%d' % (ET + 2, ET, ET + 1))
            b.I('v_lshl_add_u32 v%d, v%d, 4, %s' % (vOR[it], ET + 2, sT[3]))
            b.I('v_mul_u32_u24 v%d, %d, v%d' % (ET + 1, 81920 - 160, ET + 1))
            b.I('v_lshl_add_u32 v%d, v%d, 4, v%d' % (vOG[it], ET, ET + 1))
        b.I('v_lshrrev_b32 v%d, 5, v0' % ET)
        b.I('v_lshl_add_u32 v%d, v%d, 31, v%d' % (vOG[2], ET, vOG[2]))
    else:
        sS = sT[11]
        set_wave_index(b, sS)
        b.I('s_mul_i32 %s, %s, 20480' % (sO, sS))
        b.I('s_add_u32 %s, %s, 0x%x' % (sO, sO, LN + oXA))
        b.I('s_lshl_b32 %s, %s, 10' % (sS, sS))
        b.I('s_add_u32 %s, %s, 0x%x' % (sS, sS, LN + oST))
        b.I('s_lshl_b32 %s, %s, 7' % (sT[12], sJJ))
        b.I('s_add_u32 %s, %s, %s' % (sT[12], sT[12], sS))
        b.I('v_lshrrev_b32 v%d, 4, v0' % ET)
        b.I('v_lshl_add_u32 v21, v%d, 8, v%d' % (ET, vRs))
        b.I('v_min_u32 v%d, 1, v%d' % (ET, ET))
        b.I('v_lshl_add_u32 v20, v%d, 31, v%d' % (ET, vL8))
        tile_xr_addr(b, 18, 19, ET, sT[3])
    sc.asap(b.items[:31], e3 + 8, G + 68)
    sc.asap(b.items[31:], G + 40, G + 140)
    if layer == 0:
        at = AT(76, 61440, 139264)
        at.GA, at.T, at.BR = (56, 57, 58), 59, (87, 94, 95)
        b = Asm()
        at.setup(b, '0x%x' % LN, sT[5])
        sc.asap(b.items, G + 60, G + 214)
        if EG and VAL:
            sc.asap(['v_mov_b32 v%d, -1' % (44 + i) for i in range(4)], G + 200, G + 220)
            sc.paced(['buffer_store_dwordx4 v[44:47], v%d, %s, %s offen sc1' % (at.GA[i], WS, sT[5]) for i in range(3)], G + O('gf', 232), G + O('gf', 232) + 6)
    sc.paced([Ins('buffer_load_dwordx2 %s, v%d, %s, %s offen sc1' % (vr(PK + 10, 2), vRs, WS, sRS), 'x1'),
              Ins('buffer_load_dwordx4 %s, v%d, %s, %s offen sc1' % (vr(PK, 4), vA0, WS, sX1), 'x1'),
              Ins('buffer_load_dwordx4 %s, v%d, %s, %s offen offset:512 sc1' % (vr(PK + 4, 4), vA0, WS, sX1), 'x1'),
              Ins('buffer_load_dwordx2 %s, v%d, %s, %s offen offset:1024 sc1' % (vr(PK + 8, 2), vA2, WS, sX1), 'x1')], G + O('wle', 70), G + O('wle', 70) + 12)
    sc.add([('wait_vm', 'x1')], G + 150, G + 150)
    un = unpack(range(PK, PK + 10), lambda i: SUM + i)
    sc.asap([x for i in range(20) for x in (un[i], 'v_fma_f32 v%d, v%d, v%d, v%d' % (SUM + i, SUM + i, PK + 11, PK + 10))], G + 151, G + 195)
    A2 = lambda p: 176 + 20 * p
    for p in range(3):
        for n in range(5):
            m = G + 170 + 20 * p + 4 * n
            sc.add('ds_write_b128 v%d, %s offset:%d' % (vPW[p >> 1], vr(A2(p) + 4 * n, 4), PO[p] + 1024 * n), m, m + 1)
    nb = G + O('rb', 232)
    sc.add(['s_waitcnt lgkmcnt(0)', 's_barrier'], nb, nb)
    rds = lambda p, r: ['ds_read_b128 %s, v%d offset:%d' % (vr(r + 4 * n, 4), vPR[p], PO[p] + n * 1024) for n in range(5)]
    add = lambda r: ['v_pk_add_f32 %s, %s, %s' % (vr(SUM + 2 * i, 2), vr(SUM + 2 * i, 2), vr(r + 2 * i, 2)) for i in range(10)]
    sc.asap(rds(0, A2(0)) + rds(1, A2(1)) + rds(2, A2(2)), nb + 1, nb + 9)
    sc.add('s_waitcnt lgkmcnt(%d)' % (10 if KEEP else 0), nb + 16, nb + 16)
    if KEEP:
        sc.add('s_waitcnt lgkmcnt(0)', G + 258, G + 258)
    sc.asap(['v_add_f32 v%d, v%d, v%d' % (A2(0) + i, A2(0) + i, A2(1) + i) for i in range(20)], nb + 17, 10 ** 6)
    nfin = O('nfin', 20)
    sc.asap(['v_add_f32 v%d, v%d, v%d' % (SUM + i, SUM + i, A2(2) + i) for i in range(nfin)], nb + 17, 10 ** 6 + 1)

    mf = []
    for gi, gr in enumerate(groups):
        for rt in range(2):
            for i, (t, ks, m) in enumerate(gr):
                A = vr(ACC[accof[t]] + 8 * m + 4 * rt, 4)
                mf.append('%s %s, %s, %s, %s' % (M16, A, wbuf(gi, i), vr(Z + 8 * ks + 4 * rt, 4), A if ks else '0'))
    for ps, p in [(ps, p) for ps in range(3) for p in range(4)]:
        if (ps, p) not in ((0, 0), (0, 2), (0, 3)):
            sc.add([('wait_vm', 'h%d%d' % (ps, p))], len(mf) - 1, len(mf) - 1)
        for c in range(5):
            for i in range(4):
                A = vr(A2(p) + 4 * c, 4)
                mf.append('%s %s, %s, %s, %s' % (M16, A, R(wd(ps, i, c)), R(hs[ps][4 * p + i]), A if (ps or i) else '0'))
    for i0 in range(0, 6, 2):
        sc.add([('wait_vm', 'h3_%d' % (i0 + 1))], len(mf) - 1, len(mf) - 1)
        for c in range(5):
            for i in (i0, i0 + 1):
                A = vr(A2(3) + 4 * c, 4)
                mf.append('%s %s, %s, %s, %s' % (M16, A, R(wd(3, i, c)), R(hs[3][i]), A))

    def hook(n):
        if n in range(opt('p0', 0), opt('p0', 0) + 15 * opt('dp', 10), opt('dp', 10)):
            st(a, 'X')
        for s, pts in (('Z', (0,)), ('A', (0, 559)), ('C', (0, 240, 400, 559)), ('D', (559, 639, 719, 799)), ('E', (0, 60, 120, 180, 240, 320, 400)), ('F', (400, 480, 559, 639, 719, 799))):
            if n in pts:
                st(a, s)
    r = sc.run(a, mf, hook)
    sys.stderr.write('sched overflow slots %d, left %d\n' % r)
    if STAMP == 'Y':
        st.on = layer == 0
    st(a, 'ACDFPY')
    a.ext(add(A2(2))[nfin // 2:] + add(A2(0)) + add(A2(3)))
    if layer == 1:
        for nn in range(5):
            a.I('v_cvt_pk_bf16_f32 v%d, v%d, v%d' % (PK + 2 * nn, SUM + 4 * nn, SUM + 4 * nn + 1))
            a.I('v_cvt_pk_bf16_f32 v%d, v%d, v%d' % (PK + 2 * nn + 1, SUM + 4 * nn + 2, SUM + 4 * nn + 3))
            a.I('ds_write_b64 v%d, %s offset:%d' % (vOW, vr(PK + 2 * nn, 2), 8 * nn))
        for it in range(3):
            a.I('ds_read_b128 %s, v%d' % (vr(TMP + 4 * it, 4), vOR[it]))
        for it in range(3):
            a.I('buffer_store_dwordx4 %s, v%d, %s, %s offen%s' % (vr(TMP + 4 * it, 4), vOG[it], SA, sO, ' sc1' if opt('osc', 1) else ''))
        return None

    T = 96
    a.I('v_pk_add_f32 %s, %s, %s' % (vr(T, 2), vr(SUM, 2), vr(SUM + 2, 2)))
    a.I('v_pk_mul_f32 %s, %s, %s' % (vr(T + 2, 2), vr(SUM, 2), vr(SUM, 2)))
    a.I('v_pk_fma_f32 %s, %s, %s, %s' % (vr(T + 2, 2), vr(SUM + 2, 2), vr(SUM + 2, 2), vr(T + 2, 2)))
    for e in range(4, 20, 2):
        a.I('v_pk_add_f32 %s, %s, %s' % (vr(T, 2), vr(T, 2), vr(SUM + e, 2)))
        a.I('v_pk_fma_f32 %s, %s, %s, %s' % (vr(T + 2, 2), vr(SUM + e, 2), vr(SUM + e, 2), vr(T + 2, 2)))
    a.I('v_add_f32 v%d, v%d, v%d' % (T, T, T + 1))
    a.I('v_add_f32 v%d, v%d, v%d' % (T + 1, T + 2, T + 3))
    pk = ['v_cvt_pk_bf16_f32 v%d, v%d, v%d' % (PK + i, SUM + 2 * i, SUM + 2 * i + 1) for i in range(10)]
    qr = lst(quad_reduce, T, T + 1, T + 2)
    a.ext(qr[:2] + pk[:1] + qr[2:8] + pk[1:2] + qr[8:])
    a.I('v_min_u32 v%d, -2, v%d' % (T, T))
    a.I('v_min_u32 v%d, -2, v%d' % (T + 1, T + 1))
    a.I('buffer_store_dwordx2 %s, v20, %s, %s offen sc1' % (vr(T, 2), WS, sT[12]), tag='ss')
    st(a, 'Y')
    stream_bases(a)
    q = wda_loads(NRE)
    a.ext(take(q, opt('b1', 2)))
    a.ext(pk[2:])
    ta = stage_a_tables(44, 236) if opt('hoist1', opt('hoist', 1)) else []
    nta = opt('nta', 200)
    a.ext(ta[:nta])
    st(a, 'Y')
    if opt('wss', 1):
        a.wait_vm('ss')
    st(a, 'DY')
    pl = ['buffer_load_dwordx2 %s, v21, %s, %s offen sc1' % (vr(T, 2), WS, sS), 'buffer_load_dwordx2 %s, v21, %s, %s offen offset:128 sc1' % (vr(T + 2, 2), WS, sS)]
    tst = ['v_max3_u32 v%d, v%d, v%d, v%d' % (T + 5, T, T + 1, T + 2), 'v_max_u32 v%d, v%d, v%d' % (T + 5, T + 5, T + 3), 'v_cmp_eq_u32 vcc, -1, v%d' % (T + 5), 's_nop 4']
    a.ext(pl)
    xa_store(a, PK, 18, 19, sO, T + 8, 'xs')
    a.ext(take(q, opt('b2', 4)))
    a.ext(ta[nta:])
    if EG:
        vAr, vRp, vCk, sAr, sRp = 240, 241, 242, sT[12], sT[13]
        a.I('s_lshl_b32 %s, %s, 7' % (sT[14], sG))
        a.I('s_add_u32 %s, %s, 0x%x' % (sT[14], sT[14], LN + oFL + 384 * 128))
        a.I('s_min_u32 s3, %s, 1' % sW)
        a.I('s_lshl_b32 s3, s3, 31')
        a.I('v_or_b32 v%d, s3, v%d' % (vCk + 3, vFl))
        a.I('v_mov_b32 v%d, 1' % vCk)
        a.I('s_and_b32 %s, s2, 63' % sRp)
        a.I('s_lshl_b32 %s, %s, 7' % (sRp, sRp))
        a.I('s_add_u32 %s, %s, 0x%x' % (sRp, sRp, LN + oFL + 448 * 128))
        a.I('s_mov_b32 %s, 0x%x' % (sAr, LN + oFL + 448 * 128))
        a.I('v_lshlrev_b32 v%d, 7, v0' % vRp)
        a.I('v_mov_b32 v%d, 1' % vAr)
    a.ext(tst)
    a.I('s_cbranch_vccnz st_slow')
    a.label('st_ok')
    st(a, 'Y')
    slow2.append((pl, tst))
    b = Asm()
    b.I('v_pk_add_f32 %s, %s, %s' % (vr(T, 2), vr(T, 2), vr(T + 2, 2)))
    quad_reduce(b, T, T + 1, T + 2)
    at.main(b, SUM, T, T + 1, 176, sT[5], 'gs')
    if EG:
        k = [i for i, x in enumerate(b.items) if x.op == 's_barrier'][0]
        c1, c2 = Asm(), Asm()
        st(c1, 'Y')
        st(c2, 'Y')
        b.items[k - 1:k + 1] = [c1.items + [('wait_both', 'xs'), b.items[k]] + c2.items]
        b.items.insert(k + opt('ard', 0), Ins('buffer_atomic_add v%d, v%d, %s, %s offen sc0 sc1' % (vCk, vCk + 3, WS, sT[14])))
    if opt('stress', 0):
        b.items[-3:-3] = [[Ins('s_cmp_eq_u32 %s, 0' % sW), Ins('s_cbranch_scc1 .Lstg'), Ins('s_bitcmp1_b32 s2, 5'), Ins('s_cbranch_scc1 .Lstg'), Ins('s_sleep 60'), ('label', '.Lstg')]]
    qa = take1(q, opt('b3', 2))
    a.ext(timed(b.items, qa, 100))
    st(a, 'Y')
    return q


slow2 = []


def take1(q, n):
    r = q[:n]
    del q[:n]
    return r


def emit_slow2(a):
    for pl, tst in slow2:
        a.label('st_slow')
        a.reset()
        a.I('s_mov_b32 %s, 0' % sSP)
        a.label('st_spin')
        if STAMP:
            a.I('s_add_u32 s97, s97, 0x%x' % (1 << 30))
        a.ext(pl)
        a.I('s_add_u32 %s, %s, 1' % (sSP, sSP))
        a.I('s_cmp_ge_u32 %s, %d' % (sSP, SPIN))
        a.I('s_waitcnt vmcnt(0)')
        a.I('s_cbranch_scc1 st_ok')
        a.ext(tst)
        a.I('s_cbranch_vccnz st_spin')
        a.I('s_branch st_ok')


def emit_slow3(a):
    for e in slow3:
        a.reset()
        if len(e) == 2:
            a.label(e[0] + '_slow')
            a.raw('    s_call_b64 s[98:99], zrel' + e[1])
            a.I('s_branch %s_ok' % e[0])
        elif e[0] == 'zrel':
            _, ly, sZc, sZ, Z, ET = e
            a.label('zrel' + ly)
            if STAMP:
                a.I('s_add_u32 s96, s96, 0x%x' % (1 << 30))
            a.I('s_mov_b32 %s, 0' % sSP)
            a.label('zrel_spin' + ly)
            a.I('v_mov_b32 v%d, 0' % ET)
            a.I('buffer_atomic_add v%d, v%d, %s, %s offen offset:8 sc0 sc1' % (ET, vFl, WS, sZc))
            a.I('s_add_u32 %s, %s, 1' % (sSP, sSP))
            a.I('s_waitcnt vmcnt(0)')
            a.I('v_readfirstlane_b32 %s, v%d' % (sCK, ET))
            a.I('s_bitcmp1_b32 %s, 4' % sCK)
            a.I('s_cbranch_scc1 zrel_go' + ly)
            a.I('s_cmp_lt_u32 %s, %d' % (sSP, SPIN))
            a.I('s_cbranch_scc1 zrel_spin' + ly)
            a.label('zrel_go' + ly)
            a.I('v_lshrrev_b32 v%d, 4, v0' % ET)
            a.I('v_and_b32 v%d, 15, v0' % (ET + 1))
            a.I('v_lshlrev_b32 v%d, 4, v%d' % (ET + 1, ET + 1))
            a.I('v_lshl_add_u32 v%d, v%d, 9, v%d' % (ET, ET, ET + 1))
            a.I('v_add_u32 v%d, %s, v%d' % (ET, sZ, ET))
            for ks in range(20):
                if ks and ks % 2 == 0:
                    a.I('v_add_u32 v%d, 4096, v%d' % (ET, ET))
                for rt in range(2):
                    a.I('buffer_load_dwordx4 %s, v%d, %s, 0 offen offset:%d sc1' % (vr(Z + 8 * ks + 4 * rt, 4), ET, WS, (ks & 1) * 2048 + rt * 256))
            a.I('s_waitcnt vmcnt(0)')
            a.I('s_setpc_b64 s[98:99]')
        else:
            gv, ub03, rds, mf, vGs = e
            a.label('g_slow')
            a.I('s_mov_b32 %s, 0' % sSP)
            a.I('s_mov_b32 s98, m0')
            a.label('g_spin')
            if STAMP:
                a.I('s_add_u32 s96, s96, 0x%x' % (1 << 30))
            a.I('s_mov_b32 m0, 0')
            a.label('g_copy')
            a.I('v_add_u32 v255, m0, v%d' % vGs)
            for i in range(4):
                a.I('buffer_load_dwordx4 v255, %s, 0 offen offset:%d sc1 lds' % (WS, 1024 * i))
            a.I('s_add_u32 m0, m0, 4096')
            a.I('s_cmp_lt_u32 m0, 81920')
            a.I('s_cbranch_scc1 g_copy')
            a.I('s_waitcnt vmcnt(0)')
            for ks in range(2):
                a.ext(rds(ks))
                a.ext(mf(ks))
                a.I('s_nop 7')
            a.ext(gv)
            a.I('s_add_u32 %s, %s, 1' % (sSP, sSP))
            a.I('s_cmp_ge_u32 %s, %d' % (sSP, 2000))
            a.I('s_cbranch_scc1 g_done')
            a.I('s_nop 2')
            a.I('s_cbranch_vccnz g_spin')
            a.label('g_done')
            a.ext(ub03)
            a.I('s_mov_b32 m0, s98')
            a.I('s_nop 1')
            a.I('s_branch g_ok')


def hop(a, s):
    for w in range(1, 4):
        a.I('s_cmp_eq_u32 %s, %d' % (sW, w))
        a.I('s_cbranch_scc1 hop%d_%d' % (s, w))


def add_pads(txt):
    import subprocess, re, tempfile
    d = tempfile.mkdtemp()
    tmp = txt.replace('ffn_body:', 'ffn_body:\n' + ''.join('hop%d_%d:\n' % (s, w) for s in range(3) for w in range(1, 4)))
    open(d + '/a.s', 'w').write(tmp)
    subprocess.check_call(['clang', '-x', 'assembler', '-target', 'amdgcn-amd-amdhsa', '-mcpu=gfx950', '-c', d + '/a.s', '-o', d + '/a.o'])
    dis = subprocess.check_output(['llvm-objdump', '-d', '--mcpu=gfx950', d + '/a.o'], text=True)
    sym = subprocess.check_output(['llvm-objdump', '-t', d + '/a.o'], text=True)
    base = int(re.search(r'^([0-9a-f]+) .* ffn_body$', sym, re.M).group(1), 16)
    addrs = [x for x in (int(m, 16) for m in re.findall(r'// ?([0-9A-F]{12}):', dis)) if x >= base]
    lines = txt.split('\n')
    i0 = lines.index('ffn_body:')
    i1 = lines.index('ffn_end:')
    idx = [i for i in range(i0 + 1, i1 + 2) if lines[i].startswith('    ')]
    assert len(idx) == len(addrs), (len(idx), len(addrs))
    pads, page = [], 1
    while True:
        cand = [j for j in range(len(idx)) if page * 4096 <= addrs[j] - base + 8 * len(pads) <= page * 4096 + 52]
        if not cand:
            break
        good = [j for j in cand if 'v_mfma' in lines[idx[j - 1]] and 'v_mfma' in lines[idx[j]]] or \
               [j for j in cand if 'v_mfma' in lines[idx[j - 1]] and not lines[idx[j]].startswith('    s_')] or cand
        pads.append(idx[good[0]])
        page += 1
    rets = [lines.index('hop%d_ret:' % s) for s in range(3)] + [10 ** 9]
    ins = {}
    for s in range(3):
        mine = [p for p in pads if (rets[s] if s else 0) < p < rets[s + 1]]
        for w in range(1, 4):
            ch = mine[w - 1::3] if opt('hop', 1) else []
            for k, p in enumerate(ch):
                ins[p] = ['    s_branch .Lps%d' % p] + (['hop%d_%d:' % (s, w)] if k == 0 else []) + \
                         ['.Lpd%d:' % p, '    s_branch ' + ('.Lpd%d' % ch[k + 1] if k + 1 < len(ch) else 'hop%d_ret' % s), '.Lps%d:' % p]
            if not ch:
                ins.setdefault(rets[s], []).append('hop%d_%d:' % (s, w))
        sys.stderr.write('pad set %d: %d\n' % (s, len(mine)))
    out = []
    for i, l in enumerate(lines):
        out += ins.get(i, [])
        out.append(l)
    return '\n'.join(out)


def verify(txt):
    from collections import Counter
    ver, cnt = {}, {}
    for k, l in enumerate(txt[txt.index('ffn_body:'):txt.index('_slow:')].split('\n')):
        if not l.startswith('    '):
            continue
        x = Ins(l.strip())
        if x.kind == 'mfma':
            for o in x.ops[1:3]:
                vs = {ver.get(r) for r in asmlib.regs_of(o)}
                for v in vs:
                    if v is not None:
                        cnt[v] += 1
        for r in x.dst:
            if x.kind in ('vmem', 'ds'):
                ver[r] = (k, x.op + (' sc1' if 'sc1' in l else ''))
                cnt.setdefault(ver[r], 0)
            else:
                ver[r] = None
    h = Counter((v[1], c) for v, c in cnt.items())
    exp = {('buffer_load_dwordx4 sc1', 14): 80, ('buffer_load_dwordx4 sc1', 4): 120 - 2 * (54 - NRE), ('buffer_load_dwordx4 sc1', 8): 54 - NRE, ('buffer_load_dwordx2 sc1', 5): 24}
    for e, n in exp.items():
        assert h[e] == n, (e, h)
    assert h[('buffer_load_dwordx4 sc1', 5)] + h[('ds_read_b128', 5)] == 96, h
    assert h[('ds_read_b128', 1)] >= 60 and h[('ds_read_b128', 2)] >= 560, h
    return txt


def main():
    from phase0d import phase0
    a = Asm()
    if opt('list', 1):
        head = '; @launch kernel=%s grid=(256,1,1) block=(256,1,1) lds=163840\n' % KNAME
    else:
        head = '; @launch grid=(256,1,1) block=(256,1,1) lds=163840\n'
    head += '.amdgcn_target "amdgcn-amd-amdhsa--gfx950"\n.text\n'
    st = Stamps()
    phase0(a, st, KNAME, hop, timed, take, stage_a_tables)
    q = []
    for layer in range(2):
        st.on = STAMP == 'P' or opt('stl', 1 if STAMP == 'Y' else 0) == layer
        qw, q3, q = kb(a, st, layer, q)
        q = gemms(a, st, layer, qw, q3, q)
    st.flush(a)
    a.I('s_endpgm')
    emit_slow(a)
    emit_slow2(a)
    emit_polls(a)
    emit_slow3(a)
    a.label('rdy_slow')
    a.reset()
    a.I('s_mov_b32 %s, 0' % sSP)
    a.label('rdy_spin')
    a.I('s_sleep 8')
    a.I('global_load_dword v247, v246, %s sc1' % sDBG)
    a.I('s_add_u32 %s, %s, 1' % (sSP, sSP))
    a.I('v_readfirstlane_b32 %s, v247' % sT[14])
    a.I('s_cmp_ge_u32 %s, 16' % sT[14])
    a.I('s_cbranch_scc1 rdy_ok')
    a.I('s_cmp_lt_u32 %s, %d' % (sSP, SPIN))
    a.I('s_cbranch_scc1 rdy_spin')
    a.I('s_branch rdy_ok')
    a.label('ffn_end')
    a.I('s_endpgm')
    tail = '.section .rodata,"a"\n.p2align 6\n' + kdesc(KNAME, 512, 256)
    sys.stdout.write(add_pads(verify(head + a.finalize() + tail)))


if __name__ == '__main__':
    main()
```

```python
import struct, sys
from asmlib import Asm, Ins, vr, weave

STAMP = None
for _a in sys.argv:
    if _a.startswith('--stamp'):
        STAMP = _a.split('=')[1] if '=' in _a else 'A'


def opt(name, default):
    for x in sys.argv:
        if x.startswith('--%s=' % name):
            return type(default)(x.split('=')[1])
    return default


W1P, WDP = 0x0, 0x440000
LB0, LBS = 0x800000, 0x1400000
oG, oXA, oZ, oX1, oH, oST, oFL = 0x0, 0x280000, 0x500000, 0x780000, 0xA00000, 0x1100000, 0x1180000
oRS = oX1
STAMPS = 0x4000000
WS_BYTES = 0x10000000
XB = 2048 * 640 * 2
W1B = 640 * 1728 * 2
OOB = 0x80000000
LOG2E = 1.4426950408889634

WS, SA, SB = 's[4:7]', 's[8:11]', 's[12:15]'
sW, sG, sMU, sHB, sJJ, sLB, sLN, sLAST = 's16', 's17', 's18', 's19', 's20', 's21', 's22', 's23'
sT = ['s%d' % i for i in range(24, 50)]


def fl(x):
    return '0x%08x' % struct.unpack('<I', struct.pack('<f', x))[0]


def srd(a, base, lo, size, keep_scc=False):
    a.I('s_mov_b32 s%d, s%d' % (base, lo))
    if keep_scc:
        a.I('s_pack_ll_b32_b16 s%d, s%d, 0' % (base + 1, lo + 1))
    else:
        a.I('s_and_b32 s%d, s%d, 0xffff' % (base + 1, lo + 1))
    a.I('s_mov_b32 s%d, 0x%x' % (base + 2, size))
    a.I('s_mov_b32 s%d, 0x20000' % (base + 3))


class Stamps:
    def __init__(self):
        self.n = 0

    on = True

    def __call__(self, a, sets='A'):
        if not STAMP or STAMP not in sets or not self.on:
            return
        i = self.n
        self.n += 1
        if STAMP in 'XYZW':
            assert i < 16
            a.I('s_memtime s[%d:%d]' % (64 + 2 * i, 65 + 2 * i))
            return
        assert i < 8
        a.I('s_memrealtime s[%d:%d]' % (64 + 4 * i, 65 + 4 * i))
        a.I('s_memtime s[%d:%d]' % (66 + 4 * i, 67 + 4 * i))

    def flush(self, a):
        if not STAMP:
            return
        n0 = self.n
        self.on = True
        a.I('s_waitcnt vmcnt(0)')
        self(a, STAMP)
        a.I('s_lshl_b32 s50, s2, 2')
        a.I('s_add_u32 s50, s50, %s' % sW)
        a.I('s_lshl_b32 s50, s50, 7')
        a.I('s_add_u32 s50, s50, s51')
        a.I('s_add_u32 s50, s50, 0x%x' % STAMPS)
        a.I('s_waitcnt lgkmcnt(0)')
        a.I('v_mov_b32 v1, 0')
        for i in range(8 if STAMP in 'XYZW' else self.n):
            a.I('v_mov_b32 v2, s%d' % (64 + 4 * i))
            a.I('v_mov_b32 v3, s%d' % (66 + 4 * i))
            a.I('buffer_store_dwordx2 v[2:3], v1, %s, s50 offen offset:%d' % (WS, 8 * i))
        a.I('v_mov_b32 v2, s96\nv_mov_b32 v3, s97')
        a.I('buffer_store_dwordx2 v[2:3], v1, %s, s50 offen offset:64' % WS)
        self.n = n0


def entry(a, name, nwg, layer, launch, ptrs, end, first=None):
    a.raw('.globl %s\n.p2align 8\n.type %s,@function' % (name, name))
    a.label(name)
    a.reset()
    a.I('s_cmp_ge_u32 s2, %d' % nwg)
    a.I('s_cbranch_scc1 %s' % end)
    a.I('s_load_dwordx2 s[52:53], s[0:1], 88')
    for i, (b, off, sz) in enumerate(ptrs):
        a.I('s_load_dwordx2 s[%d:%d], s[0:1], %d' % (54 + 2 * i, 55 + 2 * i, off))
    if first:
        first(a)
    a.I('s_mov_b32 %s, 0x%x' % (sLB, LB0 + layer * LBS))
    a.I('s_mov_b32 %s, %d' % (sLAST, layer))
    if STAMP:
        a.I('s_mov_b32 s51, 0x%x' % (launch * 0x80000))
        a.I('s_mov_b32 s96, 0\ns_mov_b32 s97, 0')


def decode(a, lanes=True):
    if lanes:
        a.I('v_lshrrev_b32 v1, 6, v0')
        a.I('v_and_b32 v0, 63, v0')
        a.I('v_readfirstlane_b32 %s, v1' % sW)
    a.I('s_and_b32 %s, s2, 1' % sG)
    a.I('s_lshl_b32 %s, %s, 2' % (sG, sG))
    a.I('s_bfe_u32 s3, s2, 0x20004')
    a.I('s_add_u32 %s, %s, s3' % (sG, sG))
    a.I('s_add_u32 %s, %s, 1' % (sG, sG))
    a.I('s_sub_u32 s3, 16, %s' % sG)
    a.I('s_cmp_eq_u32 s3, 8')
    a.I('s_cselect_b32 s3, 0, s3')
    a.I('s_bitcmp1_b32 s2, 3')
    a.I('s_cselect_b32 %s, s3, %s' % (sG, sG))
    a.I('s_bfe_u32 %s, s2, 0x20001' % sMU)
    a.I('s_lshl_b32 %s, %s, 2' % (sMU, sMU))
    a.I('s_bfe_u32 s3, s2, 0x20006')
    a.I('s_or_b32 %s, %s, s3' % (sMU, sMU))
    a.I('s_bfe_u32 %s, %s, 0x10002' % (sHB, sMU))
    a.I('s_lshr_b32 %s, %s, 3' % (sJJ, sMU))
    a.I('s_lshl_b32 %s, %s, 2' % (sJJ, sJJ))
    a.I('s_or_b32 %s, %s, s3' % (sJJ, sJJ))


def srds(a, ptrs):
    a.I('s_waitcnt lgkmcnt(0)')
    srd(a, 4, 52, WS_BYTES)
    for i, (b, off, sz) in enumerate(ptrs):
        srd(a, b, 54 + 2 * i, sz)


def kdesc(name, vgpr, acc):
    return '''.amdhsa_kernel %s
  .amdhsa_next_free_vgpr %d
  .amdhsa_next_free_sgpr %d
  .amdhsa_accum_offset %d
  .amdhsa_group_segment_fixed_size 0
  .amdhsa_kernarg_size 96
  .amdhsa_user_sgpr_count 2
  .amdhsa_user_sgpr_kernarg_segment_ptr 1
  .amdhsa_system_sgpr_workgroup_id_x 1
  .amdhsa_float_denorm_mode_32 3
.end_amdhsa_kernel
''' % (name, vgpr, 100, acc)


def unpack(srcs, dst):
    o = []
    for i, s in enumerate(srcs):
        o.append('v_lshlrev_b32 v%d, 16, v%d' % (dst(2 * i), s))
        o.append('v_and_b32 v%d, 0xffff0000, v%d' % (dst(2 * i + 1), s))
    return o


def xr_addr(a, vA0, vA2, vm, vi, t):
    a.I('v_lshrrev_b32 v%d, 1, v%d' % (t, vm))
    a.I('v_mul_u32_u24 v%d, 640, v%d' % (t, t))
    a.I('v_and_b32 v%d, 1, v%d' % (t + 1, vm))
    a.I('v_and_b32 v%d, 7, v%d' % (vA0, vm))
    a.I('v_xor_b32 v%d, v%d, v%d' % (vA0, vA0, vi))
    a.I('v_lshl_add_u32 v%d, v%d, 4, v%d' % (vA0, vA0, t))
    a.I('v_and_b32 v%d, 6, v%d' % (vA2, vm))
    a.I('v_xor_b32 v%d, v%d, v%d' % (vA2, vA2, vi))
    a.I('v_lshl_add_u32 v%d, v%d, 4, v%d' % (vA2, vA2, t))
    a.I('v_lshl_add_u32 v%d, v%d, 3, v%d' % (vA2, t + 1, vA2))
    a.I('v_add_u32 v%d, 256, v%d' % (vA2, vA2))
    a.I('v_mul_u32_u24 v%d, 384, v%d' % (t + 1, t + 1))
    a.I('v_add_u32 v%d, v%d, v%d' % (vA0, vA0, t + 1))


def tile_xr_addr(a, vA0, vA2, t, st='s3'):
    a.I('v_lshrrev_b32 v%d, 4, v0' % (t + 2))
    a.I('s_lshl_b32 %s, %s, 2' % (st, sJJ))
    a.I('v_add_u32 v%d, %s, v%d' % (t + 2, st, t + 2))
    a.I('v_and_b32 v%d, 7, v0' % (t + 3))
    xr_addr(a, vA0, vA2, t + 2, t + 3, t)
    a.I('v_bfe_u32 v%d, v0, 3, 1' % t)
    a.I('v_mul_u32_u24 v%d, 10240, v%d' % (t, t))
    a.I('v_add_u32 v%d, v%d, v%d' % (vA0, vA0, t))
    a.I('v_add_u32 v%d, v%d, v%d' % (vA2, vA2, t))


def set_wave_index(a, sd):
    a.I('s_lshl_b32 %s, %s, 1' % (sd, sG))
    a.I('s_add_u32 %s, %s, %s' % (sd, sd, sHB))
    a.I('s_lshl_b32 %s, %s, 2' % (sd, sd))
    a.I('s_add_u32 %s, %s, %s' % (sd, sd, sW))


def tile_blk_soff(a, sd, sbase, off):
    set_wave_index(a, sd)
    a.I('s_mul_i32 %s, %s, 20480' % (sd, sd))
    a.I('s_add_u32 %s, %s, %s' % (sd, sd, sbase))
    a.I('s_add_u32 %s, %s, 0x%x' % (sd, sd, off))


def stats_soff(a, sd, sbase):
    set_wave_index(a, sd)
    a.I('s_lshl_b32 %s, %s, 10' % (sd, sd))
    a.I('s_add_u32 %s, %s, %s' % (sd, sd, sbase))
    a.I('s_add_u32 %s, %s, 0x%x' % (sd, sd, oST))


def row_nat_soff(a, sd, st='s3'):
    a.I('s_lshl_b32 %s, %s, 4' % (sd, sHB))
    a.I('s_add_u32 %s, %s, %s' % (sd, sd, sG))
    a.I('s_lshr_b32 %s, %s, 1' % (st, sW))
    a.I('s_lshl_b32 %s, %s, 5' % (st, st))
    a.I('s_add_u32 %s, %s, %s' % (sd, sd, st))
    a.I('s_and_b32 %s, %s, 1' % (st, sW))
    a.I('s_lshl_b32 %s, %s, 10' % (st, st))
    a.I('s_add_u32 %s, %s, %s' % (sd, sd, st))
    a.I('s_mul_i32 %s, %s, 1280' % (sd, sd))


def ln_coef(a, vS, vQ, vR, vN, t, scale=None):
    a.I('v_mul_f32 v%d, %s, v%d' % (vN, fl(-1.0 / 640), vS))
    a.I('v_mul_f32 v%d, %s, v%d' % (vR, fl(1.0 / 640), vQ))
    a.I('v_fma_f32 v%d, -v%d, v%d, v%d' % (vR, vN, vN, vR))
    a.I('v_max_f32 v%d, 0, v%d' % (vR, vR))
    a.I('v_add_f32 v%d, %s, v%d' % (vR, fl(1e-5), vR))
    a.I('v_rsq_f32 v%d, v%d' % (vR, vR))
    if scale:
        a.I('v_mul_f32 v%d, %s, v%d' % (vR, fl(scale), vR))
    a.I('v_mul_f32 v%d, v%d, v%d' % (vN, vN, vR))


def quad_reduce(a, r0, r1, t):
    for op in ('v_permlane16_swap_b32', 'v_permlane32_swap_b32'):
        a.I('v_mov_b32 v%d, v%d' % (t, r0))
        a.I('v_mov_b32 v%d, v%d' % (t + 1, r1))
        a.I('%s v%d, v%d' % (op, r0, t))
        a.I('%s v%d, v%d' % (op, r1, t + 1))
        a.I('v_add_f32 v%d, v%d, v%d' % (r0, r0, t))
        a.I('v_add_f32 v%d, v%d, v%d' % (r1, r1, t + 1))


def xa_store(a, PK, vA0, vA2, so, t, tag=None):
    a.I('buffer_store_dwordx4 %s, v%d, %s, %s offen sc1' % (vr(PK, 4), vA0, WS, so))
    a.I('buffer_store_dwordx4 %s, v%d, %s, %s offen offset:128 sc1' % (vr(PK + 4, 4), vA0, WS, so))
    a.I('v_mov_b32 v%d, v%d' % (t, PK + 8))
    a.I('v_mov_b32 v%d, v%d' % (t + 1, PK + 9))
    a.I('v_mov_b32 v%d, v%d' % (t + 2, PK + 8))
    a.I('v_mov_b32 v%d, v%d' % (t + 3, PK + 9))
    a.I('v_bfe_u32 v%d, v0, 4, 1' % (t + 4))
    a.I('v_lshl_add_u32 v%d, v%d, 31, v%d' % (t + 4, t + 4, vA2))
    a.I('v_permlane16_swap_b32 v%d, v%d' % (t, t + 2))
    a.I('v_permlane16_swap_b32 v%d, v%d' % (t + 1, t + 3))
    a.I('buffer_store_dwordx4 %s, v%d, %s, %s offen sc1' % (vr(t, 4), t + 4, WS, so), tag)


def tile_via_lds(b, nch, pitch, base, RW, PK, nt, vW, vR, t):
    b.I('s_mul_i32 s3, %s, %d' % (sW, 16 * pitch))
    b.I('s_add_u32 s3, s3, %d' % base)
    b.I('v_lshrrev_b32 v%d, 3, v0' % vW)
    b.I('v_mul_u32_u24 v%d, %d, v%d' % (vW, pitch, vW))
    b.I('v_and_b32 v%d, 7, v0' % t)
    b.I('v_lshl_add_u32 v%d, v%d, 4, v%d' % (vW, t, vW))
    b.I('v_add_u32 v%d, s3, v%d' % (vW, vW))
    b.I('v_and_b32 v%d, 15, v0' % vR)
    b.I('v_mul_u32_u24 v%d, %d, v%d' % (vR, pitch, vR))
    b.I('v_lshrrev_b32 v%d, 4, v0' % t)
    b.I('v_mad_u32_u24 v%d, v%d, 40, v%d' % (vR, t, vR))
    b.I('v_add_u32 v%d, s3, v%d' % (vR, vR))
    b.I('s_mul_i32 s3, %s, 160' % sJJ)
    b.I('s_and_b32 s3, s3, 127')
    b.I('v_add_u32 v%d, s3, v%d' % (vR, vR))
    wr = ['ds_write_b128 v%d, %s offset:%d' % (vW, vr(RW + 8 * i + 4 * s, 4), 128 * i + 8 * pitch * s) for i in range(nch) for s in range(2)]
    rd = ['ds_read_b64 %s, v%d offset:%d' % (vr(PK + 12 * k + 2 * n, 2), vR, 160 * k + 8 * n) for k in range(nt) for n in range(5)]
    return wr + rd


class AT:
    def __init__(self, base, lds_z, lds_b):
        self.F = base
        self.ZW, self.ZR, self.BW = base + 8, base + 9, base + 10
        self.BR = (base + 11, base + 12, base + 13)
        self.GA = (base + 14, base + 15, base + 16)
        self.T = base + 17
        self.lds_z, self.lds_b = lds_z, lds_b
        self.GA2 = None

    def setup(self, a, sOut, sGo):
        T = self.T
        a.I('v_and_b32 v%d, 15, v0' % T)
        a.I('v_lshrrev_b32 v%d, 1, v%d' % (T + 1, T))
        a.I('v_mul_u32_u24 v%d, 336, v%d' % (self.BW, T + 1))
        a.I('s_lshl_b32 s3, %s, 3' % sW)
        a.I('v_add_u32 v%d, s3, v%d' % (T + 1, T + 1))
        a.I('v_and_b32 v%d, 1, v0' % (T + 2))
        a.I('v_lshl_add_u32 v%d, v%d, 3, v%d' % (self.BW, T + 2, self.BW))
        a.I('v_cvt_f32_u32 v%d, v%d' % (T + 3, T + 2))
        a.I('v_mul_f32 v%d, %s, v%d' % (T + 3, fl(0.25), T + 3))
        a.I('v_cmp_eq_u32 vcc, 0, v%d' % (T + 1))
        a.I('v_lshlrev_b32 v%d, 5, v%d' % (T + 2, T + 2))
        a.I('v_lshrrev_b32 v%d, 5, v0' % (T + 4))
        a.I('v_cndmask_b32 v%d, v%d, v%d, vcc' % (T + 1, T + 1, T + 2))
        a.I('v_cndmask_b32_e64 v%d, v%d, 0, vcc' % (T + 3, T + 3))
        a.I('v_cvt_f32_u32 v%d, v%d' % (T + 1, T + 1))
        a.I('v_mul_f32 v%d, %s, v%d' % (T + 1, fl(1.0 / 64), T + 1))
        a.I('v_bfe_u32 v%d, v0, 4, 1' % (T + 2))
        a.I('v_lshlrev_b32 v%d, 5, v%d' % (T + 2, T + 2))
        a.I('v_lshl_add_u32 v%d, v%d, 1, v%d' % (T + 2, T + 4, T + 2))
        a.I('v_cvt_f32_u32 v%d, v%d' % (T + 2, T + 2))
        a.I('v_fma_f32 v%d, v%d, v%d, v%d' % (T + 3, T + 1, T + 2, T + 3))
        prev = None
        for ks in range(2):
            for p in range(4):
                d = self.F + 4 * ks + p
                tt = T + 2 + 2 * (p & 1)
                k = lambda j: 8 * (j & 3) + 4 * (j >> 2) + ks
                a.I('v_fmamk_f32 v%d, v%d, %s, v%d' % (d, T + 1, fl(k(2 * p)), T + 3))
                a.I('v_fmamk_f32 v%d, v%d, %s, v%d' % (tt, T + 1, fl(k(2 * p + 1)), T + 3))
                if prev:
                    a.I(prev)
                a.I('v_cos_f32 v%d, v%d' % (d, d))
                a.I('v_cos_f32 v%d, v%d' % (tt, tt))
                prev = 'v_cvt_pk_bf16_f32 v%d, v%d, v%d' % (d, d, tt)
        a.I('s_lshl_b32 s3, %s, 4' % sW)
        a.I(prev)
        a.I('v_add_u32 v%d, s3, v%d' % (T, T))
        a.I('v_mul_u32_u24 v%d, 168, v%d' % (self.ZW, T))
        a.I('v_lshrrev_b32 v%d, 4, v0' % T)
        a.I('v_mad_u32_u24 v%d, v%d, 40, v%d' % (self.ZW, T, self.ZW))
        a.I('v_and_b32 v%d, 28, v0' % (T + 1))
        a.I('v_lshrrev_b32 v%d, 5, v0' % (T + 2))
        a.I('v_add_u32 v%d, v%d, v%d' % (T + 1, T + 1, T + 2))
        a.I('v_mul_u32_u24 v%d, 168, v%d' % (T + 1, T + 1))
        a.I('v_and_b32 v%d, 3, v0' % (T + 2))
        a.I('v_lshl_add_u32 v%d, v%d, 3, v%d' % (self.ZR, T + 2, T + 1))
        if self.lds_z:
            a.I('v_add_u32 v%d, 0x%x, v%d' % (self.ZW, self.lds_z, self.ZW))
            a.I('v_add_u32 v%d, 0x%x, v%d' % (self.ZR, self.lds_z, self.ZR))
        a.I('s_and_b32 s3, %s, 3' % sG)
        a.I('v_xor_b32 v%d, s3, v%d' % (T, T))
        a.I('v_lshl_add_u32 v%d, v%d, 4, v%d' % (self.BW, T, self.BW))
        a.I('s_mul_i32 s3, %s, 2688' % sW)
        a.I('s_add_u32 s3, s3, 0x%x' % self.lds_b)
        a.I('v_add_u32 v%d, s3, v%d' % (self.BW, self.BW))
        a.I('s_mul_i32 %s, %s, 5' % (sGo, sJJ))
        GAs = [self.GA] + ([self.GA2] if self.GA2 else [])
        for it in range(3):
            a.I('v_add_u32 v%d, %d, v0' % (T, 64 * it))
            a.I('v_mul_u32_u24 v%d, 205, v%d' % (T + 1, T))
            a.I('v_lshrrev_b32 v%d, 12, v%d' % (T + 1, T + 1))
            a.I('v_add_u32 v%d, v%d, v%d' % (T + 2, T, T + 1))
            a.I('v_lshl_add_u32 v%d, v%d, 4, s3' % (self.BR[it], T + 2))
            a.I('v_mul_u32_u24 v%d, 5, v%d' % (T + 2, T + 1))
            a.I('v_lshrrev_b32 v%d, 2, v%d' % (T + 3, T))
            a.I('v_sub_u32 v%d, v%d, v%d' % (T + 2, T + 3, T + 2))
            a.I('v_add_u32 v%d, %s, v%d' % (T + 2, sGo, T + 2))
            a.I('v_mul_u32_u24 v%d, 81920, v%d' % (T + 1, T + 1))
            a.I('v_and_b32 v%d, 3, v0' % T)
            a.I('v_lshl_add_u32 v%d, v%d, 4, v%d' % (T + 1, T, T + 1))
            if it == 2:
                a.I('v_lshrrev_b32 v%d, 5, v0' % T)
                a.I('v_lshl_add_u32 v%d, v%d, 31, v%d' % (T + 1, T, T + 1))
            for k, GA in enumerate(GAs):
                if k:
                    a.I('v_add_u32 v%d, 5, v%d' % (T + 2, T + 2))
                a.I('v_bfe_u32 v%d, v%d, 2, 1' % (T + 3, T + 2))
                a.I('v_xor_b32 v%d, v%d, v%d' % (T + 3, T + 2, T + 3))
                a.I('v_lshl_add_u32 v%d, v%d, 6, v%d' % (GA[it], T + 3, T + 1))
        a.I('s_lshl_b32 %s, %s, 4' % (sGo, sHB))
        a.I('s_add_u32 %s, %s, %s' % (sGo, sGo, sG))
        a.I('s_mul_i32 %s, %s, 2560' % (sGo, sGo))
        a.I('s_mul_i32 s3, %s, %d' % (sW, 8 * 81920))
        a.I('s_add_u32 %s, %s, s3' % (sGo, sGo))
        a.I('s_add_u32 %s, %s, %s' % (sGo, sGo, sOut))

    def main(self, a, X, vS, vQ, W, sGo, tag=None, nt=1):
        T = self.T + (self.T & 1)
        ln_coef(a, vS, vQ, T, T + 2, None)
        for k in range(nt):
            Xk, Wk = X + 20 * k, W + 60 * k
            for n in range(5):
                for i in range(2):
                    x = vr(Xk + 4 * n + 2 * i, 2)
                    a.I('v_pk_fma_f32 %s, %s, %s, %s op_sel_hi:[1,0,0]' % (x, x, vr(T, 2), vr(T + 2, 2)))
            for n in range(10):
                a.I('v_cvt_pk_bf16_f32 v%d, v%d, v%d' % (Wk + n, Xk + 2 * n, Xk + 2 * n + 1))
            for n in range(5):
                a.I('ds_write_b64 v%d, %s offset:%d' % (self.ZW, vr(Wk + 2 * n, 2), 8 * n + 10752 * k))
        a.I('s_waitcnt lgkmcnt(0)')
        a.I('s_barrier')
        rds = ['ds_read_b64_tr_b16 %s, v%d offset:%d' % (vr(W + 60 * k + 8 * t + 4 * ks + 2 * rd, 2), self.ZR, (32 * ks + 2 * rd) * 168 + 32 * t + 10752 * k)
               for k in range(nt) for t in range(5) for ks in range(2) for rd in range(2)]
        mf = []
        for k in range(nt):
            D = W + 60 * k + 40
            for t in range(5):
                mf.append('v_mfma_f32_16x16x32_bf16 %s, %s, %s, 0' % (vr(D + 4 * t, 4), vr(D - 40 + 8 * t, 4), vr(self.F, 4)))
                mf.append('v_mfma_f32_16x16x32_bf16 %s, %s, %s, %s' % (vr(D + 4 * t, 4), vr(D - 36 + 8 * t, 4), vr(self.F + 4, 4), vr(D + 4 * t, 4)))
        cv = lambda k: ['v_cvt_pk_bf16_f32 v%d, v%d, v%d' % (X + 20 * k + n, W + 60 * k + 40 + 2 * n, W + 60 * k + 41 + 2 * n) for n in range(10)]
        a.ext(rds[:12])
        ncv = 4 if nt == 1 else 10
        a.ext(weave(mf[:-2] if nt == 1 else mf[:14], rds[12:], 0, 2))
        a.ext(weave(mf[-2:] if nt == 1 else mf[14:], cv(0)[:ncv], 0, 2))
        for k in range(nt):
            a.ext(cv(k)[ncv if k == 0 else 0:])
            for t in range(5):
                a.I('ds_write_b64 v%d, %s offset:%d' % (self.BW, vr(X + 20 * k + 2 * t, 2), 64 * t + 10752 * k))
            for it in range(3):
                a.I('ds_read_b128 %s, v%d offset:%d' % (vr(W + 60 * k + 4 * it, 4), self.BR[it], 10752 * k))
        for k in range(nt):
            for it in range(3):
                a.I('buffer_store_dwordx4 %s, v%d, %s, %s offen sc1' % (vr(W + 60 * k + 4 * it, 4), (self.GA, self.GA2)[k][it], WS, sGo), tag)
```

```python
from common8 import *

vL16, vFl = 14, 12
N_WD, N_W1 = 108, 135


def phase0(a, st, name, hop, timed, take, stage_a_tables, early):
    a.raw('.p2align 12\n.globl %s\n.p2align 8\n.type %s,@function' % (name, name))
    a.label(name)
    a.raw('ffn_body:')
    a.I('s_cmp_ge_u32 s2, 256')
    a.I('s_cbranch_scc1 ffn_end')
    a.I('s_load_dwordx2 s[52:53], s[0:1], 88')
    a.I('s_load_dwordx2 s[54:55], s[0:1], 0')
    a.I('s_load_dwordx8 s[56:63], s[0:1], 48')
    a.I('s_load_dwordx2 s[22:23], s[0:1], 80')
    a.I('s_getpc_b64 s[46:47]')
    a.raw('.Lpc0:')
    a.I('s_and_b32 s46, s46, 0xffffff00')
    if opt('spf', 2) == 2:
        a.I('s_lshr_b32 s3, s2, 3')
        a.I('s_mul_i32 s3, s3, 12')
        a.I('v_min_u32 v21, 91, v0')
        a.I('v_cmp_lt_u32 vcc, 79, v0')
        a.I('v_add_u32 v20, s3, v21')
        a.I('v_cndmask_b32 v21, v21, v20, vcc')
        a.I('v_lshlrev_b32 v21, 7, v21')
        a.I('v_min_u32 v21, ffn_end-ffn_body, v21')
    else:
        a.I('v_min_u32 v21, %d, v0' % opt('pf0', 80))
        a.I('v_lshlrev_b32 v21, 7, v21')
    a.I('global_load_dword v21, v21, s[46:47]')
    if STAMP:
        a.I('s_mov_b32 s51, 0x80000\ns_mov_b32 s96, 0\ns_mov_b32 s97, 0')
    st(a, 'PQW')
    a.I('v_lshrrev_b32 v1, 6, v0')
    a.I('v_and_b32 v0, 63, v0')
    a.I('v_readfirstlane_b32 %s, v1' % sW)
    a.I('s_and_b32 %s, s2, 15' % sG)
    a.I('s_bfe_u32 %s, s2, 0x10004' % sHB)
    a.I('s_lshr_b32 %s, s2, 5' % sJJ)
    a.I('s_lshr_b32 %s, s2, 4' % sMU)
    a.I('v_lshlrev_b32 v%d, 4, v0' % vL16)
    WO = 'a'
    sW0, sW1 = sT[16], sT[17]
    RW, PK, S = 176, 64, 44
    at = AT(76, 61440, 139264)
    X = 24
    sR0, sR, sRe, sTl = sT[8], sT[9], sT[10], sT[11]
    row_nat_soff(a, sR0)
    a.I('v_lshrrev_b32 v16, 3, v0')
    a.I('v_mul_u32_u24 v16, 81920, v16')
    a.I('v_and_b32 v17, 7, v0')
    a.I('v_lshl_add_u32 v16, v17, 4, v16')
    a.I('v_add_u32 v17, 0x%x, v16' % (512 * 1280))
    a.I('s_mul_i32 %s, %s, 160' % (sTl, sJJ))
    a.I('s_and_b32 %s, %s, 0xffffff80' % (sR, sTl))
    a.I('s_add_u32 %s, %s, %s' % (sTl, sTl, sR0))
    a.I('s_add_u32 %s, %s, %s' % (sR, sR, sR0))
    a.I('s_add_u32 %s, %s, 1280' % (sRe, sR0))
    q = []
    for i in range(10):
        for s in range(2):
            q.append([Ins('buffer_load_dwordx4 %s, v%d, %s, %s offen' % (vr(RW + 8 * i + 4 * s, 4), 16 + s, SA, sR), 'x%d' % i)])
        if i < 9:
            q[-1] += [Ins('s_add_u32 %s, %s, 128' % (sR, sR)), Ins('s_cmp_eq_u32 %s, %s' % (sR, sRe)), Ins('s_cselect_b32 %s, %s, %s' % (sR, sR0, sR))]
    a.I('s_waitcnt lgkmcnt(0)')
    st(a, 'W')
    srd(a, 8, 54, XB)
    NX0 = opt('x0', 4)
    a.I('s_cmp_lg_u32 s2, 248')
    srd(a, 4, 52, WS_BYTES, True)
    a.I('s_cbranch_scc1 p0_noown0')
    c = Asm()
    c.I('s_lshl_b32 s3, %s, 12' % sW)
    c.I('s_add_u32 s3, s3, 0x%x' % (LB0 + oFL + 384 * 128))
    for i in range(4):
        c.I('v_mov_b32 v%d, 0' % (8 + i))
    for i in range(4):
        c.I('buffer_store_dwordx4 v[8:11], v%d, %s, s3 offen offset:%d sc1' % (vL16, WS, 1024 * i))
    a.raw(c.finalize().rstrip('\n'))
    a.label('p0_noown0')
    a.ext(take(q, NX0))
    a.I('s_cmp_lg_u32 s2, 248')
    a.I('s_cbranch_scc1 p0_noown')
    a.raw('    v_mov_b32 v9, 16\n    v_mov_b32 v10, 0\n    s_waitcnt vmcnt(%d)\n    s_barrier\n    s_cmp_lg_u32 %s, 0\n    s_cbranch_scc1 p0_noown\n'
          '    s_mov_b64 exec, 1\n    global_atomic_add v10, v9, s[22:23] sc1\n    s_mov_b64 exec, -1' % (NX0, sW))
    a.label('p0_noown')
    a.I('s_cmp_lt_u32 s2, %d' % N_WD)
    a.I('s_cbranch_scc1 p0_wd')
    a.I('s_sub_u32 %s, s2, %d' % (sT[0], N_WD))
    a.I('s_lshl_b32 %s, %s, 2' % (sT[0], sT[0]))
    a.I('s_add_u32 %s, %s, %s' % (sT[0], sT[0], sW))
    a.I('s_lshl_b32 %s, %s, 1' % (sT[0], sT[0]))
    a.I('s_cmp_ge_u32 %s, 1080' % sT[0])
    a.I('s_cselect_b32 %s, 0x80000000, 0' % sT[6])
    a.I('s_cmp_ge_u32 %s, 540' % sT[0])
    a.I('s_cselect_b32 s56, s58, s56')
    a.I('s_cselect_b32 s57, s59, s57')
    a.I('s_cselect_b32 %s, 5120, 0' % sT[7])
    a.I('s_cselect_b32 s3, 540, 0')
    a.I('s_sub_u32 %s, %s, s3' % (sT[0], sT[0]))
    srd(a, 12, 56, W1B)
    a.I('v_lshrrev_b32 v1, 3, v0')
    a.I('v_mul_u32_u24 v4, 3456, v1')
    a.I('v_and_b32 v2, 7, v0')
    a.I('v_lshl_add_u32 v4, v2, 4, v4')
    a.I('v_lshrrev_b32 v3, 2, v1')
    a.I('v_mul_u32_u24 v3, %d, v3' % (16 * 3456))
    a.I('v_add_u32 v4, %s, v4' % sT[6])
    a.I('v_add_u32 v5, v4, v3')
    a.I('s_lshl_b32 %s, %s, 13' % (sT[5], sW))
    for u in range(2):
        sD = (sW0, sW1)[u]
        a.I('s_mul_i32 %s, %s, 2428' % (sT[1], sT[0]))
        a.I('s_lshr_b32 %s, %s, 16' % (sT[1], sT[1]))
        a.I('s_mul_i32 s3, %s, 27' % sT[1])
        a.I('s_sub_u32 %s, %s, s3' % (sT[4], sT[0]))
        a.I('s_mul_i32 %s, %s, %d' % (sT[2], sT[1], 32 * 3456))
        a.I('s_lshl_b32 s3, %s, 7' % sT[4])
        a.I('s_add_u32 %s, %s, s3' % (sT[2], sT[2]))
        a.I('s_mul_i32 s3, %s, 205' % sT[1])
        a.I('s_lshr_b32 s3, s3, 10')
        a.I('s_mul_i32 s3, s3, 5')
        a.I('s_add_u32 %s, s3, %s' % (sD, sT[1]))
        a.I('s_add_u32 s3, s3, 5')
        a.I('s_sub_u32 %s, s3, %s' % (sT[3], sT[1]))
        for k in range(4):
            a.I('s_cmp_eq_u32 %s, 5' % sT[3])
            a.I('s_cselect_b32 %s, 0, %s' % (sT[3], sT[3]))
            a.I('s_cmp_ge_u32 %s, 3' % sT[3])
            a.I('s_cselect_b32 s3, %d, %d' % (8 * 3456 * k - 4 * 3456, 0) if k == 0 else 's_cselect_b32 s3, %d, 0' % (-4 * 3456))
            a.I('s_add_u32 s3, %s, s3' % sT[2])
            a.I('s_cmp_eq_u32 %s, 2' % sT[3])
            a.I('s_cselect_b64 vcc, -1, 0')
            a.I('s_add_u32 m0, %s, %d' % (sT[5], u * 4096 + k * 1024))
            a.I('v_cndmask_b32 v6, v4, v5, vcc')
            a.I('buffer_load_dwordx4 v6, %s, s3 offen lds' % SB, tag='wdma')
            if k < 3:
                a.I('s_add_u32 %s, %s, %d' % (sT[2], sT[2], 8 * 3456))
                a.I('s_add_u32 %s, %s, 1' % (sT[3], sT[3]))
        a.I('s_lshl_b32 %s, %s, 10' % (sD, sD))
        a.I('s_mul_i32 s3, %s, %d' % (sT[4], 4 * 40960))
        a.I('s_add_u32 %s, %s, s3' % (sD, sD))
        a.I('s_add_u32 %s, %s, %s' % (sD, sD, sT[7]))
        if u == 0:
            a.I('s_add_u32 %s, %s, 1' % (sT[0], sT[0]))
    a.I('s_branch p0_rows')

    a.label('p0_wd')
    c = Asm()
    c.I('s_and_b32 %s, s2, 1' % sT[1])
    c.I('s_lshr_b32 %s, s2, 1' % sT[0])
    c.I('s_lshr_b32 %s, %s, 1' % (sT[5], sW))
    c.I('s_mul_i32 %s, %s, 43' % (sT[4], sT[0]))
    c.I('s_lshr_b32 %s, %s, 9' % (sT[4], sT[4]))
    c.I('s_and_b32 s3, %s, 3' % sT[0])
    c.I('s_mul_i32 %s, s3, 7' % sT[2])
    c.I('s_lshr_b32 s3, %s, 2' % sT[0])
    c.I('s_lshl_b32 s3, s3, 1')
    c.I('s_add_u32 %s, %s, s3' % (sT[2], sT[2]))
    c.I('s_mul_i32 s3, %s, 21' % sT[4])
    c.I('s_add_u32 %s, %s, s3' % (sT[2], sT[2]))
    c.I('s_add_u32 %s, %s, %s' % (sT[2], sT[2], sT[5]))
    c.I('s_lshl_b32 %s, %s, 1' % (sT[4], sT[0]))
    c.I('s_add_u32 %s, %s, %s' % (sT[4], sT[4], sT[5]))
    c.I('s_sub_u32 %s, %s, 96' % (sT[4], sT[4]))
    c.I('s_mul_i32 s3, %s, 86' % sT[4])
    c.I('s_lshr_b32 s3, s3, 8')
    c.I('s_mul_i32 s3, s3, 6')
    c.I('s_mul_i32 %s, %s, 7' % (sT[4], sT[4]))
    c.I('s_add_u32 %s, %s, s3' % (sT[4], sT[4]))
    c.I('s_add_u32 %s, %s, 6' % (sT[4], sT[4]))
    c.I('s_cmp_ge_u32 %s, 48' % sT[0])
    c.I('s_cselect_b32 %s, %s, %s' % (sT[2], sT[4], sT[2]))
    c.I('s_lshl_b32 %s, %s, 1' % (sT[2], sT[2]))
    c.I('s_and_b32 s3, %s, 1' % sW)
    c.I('s_add_u32 %s, %s, s3' % (sT[2], sT[2]))
    c.I('s_mul_i32 %s, %s, 10240' % (sT[2], sT[2]))
    c.I('s_mul_i32 s3, %s, 640' % sT[1])
    c.I('s_add_u32 %s, %s, s3' % (sT[2], sT[2]))
    c.I('s_mul_i32 %s, %s, 5120' % (sT[3], sW))
    srd(c, 12, 60, W1B)
    for it in range(5):
        c.I('v_add_u32 v2, %d, v0' % (64 * it))
        c.I('v_mul_u32_u24 v3, 1639, v2')
        c.I('v_lshrrev_b32 v3, 16, v3')
        c.I('v_mul_u32_u24 v3, 640, v3')
        c.I('s_add_u32 m0, %s, %d' % (sT[3], it * 1024))
        c.I('v_lshl_add_u32 v3, v2, 4, v3')
        c.I('buffer_load_dwordx4 v3, %s, %s offen lds' % (SB, sT[2]))
    c.I('v_mov_b32 v2, 0x80000000')
    for it in range(3):
        c.I('buffer_load_dword v%d, v2, %s, 0 offen' % ((20, 22, 23)[it], SB))
    a.raw(c.finalize().rstrip('\n'))

    a.label('p0_rows')
    a.ext(take(q, opt('x1', 0)))
    st(a, 'QW')
    tp = opt('tp', 0)
    if tp == 1:
        a.I('v_min_u32 v110, 24, v0')
        a.I('v_lshlrev_b32 v110, 21, v110')
        a.I('v_add_u32 v110, 0x1ff000, v110')
        a.I('buffer_load_dword v110, v110, %s, 0 offen' % WS)
    if tp == 2:
        a.I('s_lshr_b32 s3, s2, 3')
        a.I('s_min_u32 s3, s3, 24')
        a.I('s_lshl_b32 s3, s3, 21')
        a.I('s_add_u32 s3, s3, 0x1ff000')
        a.raw('    s_load_dword s21, s[52:53], s3\n    s_load_dword s21, s[62:63], 0')
    if opt('spf', 2) == 1:
        a.I('s_lshr_b32 s3, s2, 3')
        a.I('s_lshl_b32 s3, s3, 2')
        a.I('s_add_u32 s3, s3, %s' % sW)
        a.I('s_lshl_b32 s3, s3, 9')
        a.I('s_min_u32 s3, s3, ffn_end-ffn_body-512')
        a.I('s_add_u32 s46, s46, s3')
        a.I('s_addc_u32 s47, s47, 0')
        a.raw('\n'.join('    s_load_dword s21, s[46:47], %d' % (64 * i) for i in range(8)))
    hop(a, 0)
    a.label('hop0_ret')
    st(a, 'W')
    if early:
        at.setup(a, '0x%x' % LB0, sT[15])
        for i in range(4):
            a.I('v_mov_b32 v%d, -1' % (100 + i))
        for i in range(3 if opt('pfp', 1) == 0 else 0):
            a.I('buffer_store_dwordx4 v[100:103], v%d, %s, %s offen sc1' % (at.GA[i], WS, sT[15]))
    b = Asm()
    tl = tile_via_lds(b, 2, 272, 32768, RW, PK, 1, 18, 19, 4)
    b.I('v_min_u32 v%d, 1, v0' % vFl)
    b.I('v_lshlrev_b32 v%d, 31, v%d' % (vFl, vFl))
    sI0, sI1, sI2 = sT[12], sT[13], sT[14]
    set_wave_index(b, sI0)
    b.I('s_lshl_b32 %s, %s, 3' % (sI0, sI0))
    b.I('s_add_u32 %s, %s, %s' % (sI0, sI0, sJJ))
    b.I('s_lshl_b32 %s, %s, 7' % (sI0, sI0))
    b.I('s_add_u32 %s, %s, 0x%x' % (sI0, sI0, LB0 + LBS + oST))
    b.I('v_lshrrev_b32 v4, 5, v0')
    b.I('v_lshlrev_b32 v5, 2, v0')
    b.I('v_lshl_add_u32 v4, v4, 31, v5')
    b.I('v_mov_b32 v5, -1')
    b.I('v_mov_b32 v6, 0')
    b.I('s_lshr_b32 %s, %s, 1' % (sI1, sW))
    b.I('s_lshl_b32 %s, %s, 8' % (sI1, sI1))
    b.I('s_add_u32 %s, %s, s2' % (sI1, sI1))
    b.I('s_and_b32 s3, %s, 1' % sW)
    b.I('s_lshl_b32 %s, s3, 9' % sI2)
    b.I('s_add_u32 %s, %s, 384' % (sI2, sI2))
    b.items.append([Ins('s_cmp_ge_u32 %s, %s' % (sI1, sI2)), Ins('s_cselect_b32 %s, 0x80000000, 0' % sI2)])
    b.I('v_or_b32 v7, %s, v4' % sI2)
    if opt('rsw', 1):
        b.I('s_and_b32 %s, s2, 1' % sI2)
        b.I('s_mul_i32 %s, %s, 0x%x' % (sI2, sI2, LBS - 64))
        b.I('s_lshl_b32 %s, s2, 6' % sT[19])
        b.I('s_add_u32 %s, %s, %s' % (sI2, sI2, sT[19]))
        b.I('s_add_u32 %s, %s, 0x%x' % (sI2, sI2, LB0 + oRS - 128))
        b.items.append([Ins('s_cmp_eq_u32 %s, 0' % sW), Ins('s_cselect_b32 %s, %s, 0x80000000' % (sI2, sI2))])
        b.I('v_mov_b32 v4, %s' % sI0)
        b.I('v_mov_b32 v11, %s' % sI2)
        b.I('v_cmp_gt_u32 vcc, 32, v0')
        b.I('s_mov_b32 %s, 0' % sI0)
        b.I('s_nop 0')
        b.I('v_cndmask_b32 v4, v11, v4, vcc')
        b.I('v_lshl_add_u32 v4, v0, 2, v4')
    b.I('s_lshl_b32 %s, %s, 7' % (sI1, sI1))
    b.I('s_mul_i32 s3, s3, 0x%x' % LBS)
    b.I('s_add_u32 %s, %s, s3' % (sI1, sI1))
    b.I('s_add_u32 %s, %s, 0x%x' % (sI1, sI1, LB0 + oFL))
    if not early:
        at.setup(b, '0x%x' % LB0, sT[15])
    b.I('v_mov_b32 v%d, 0x3f803f80' % (S + 4))
    for i in range(4):
        b.I('v_mov_b32 v%d, 0' % (S + i))
    dots = []
    for i in range(10):
        for r in range(4):
            for s in range(2):
                v = RW + 8 * i + 4 * s + r
                dots.append('v_dot2c_f32_bf16 v%d, v%d, v%d' % (S + 2 * s, v, S + 4))
                dots.append('v_dot2c_f32_bf16 v%d, v%d, v%d' % (S + 2 * s + 1, v, v))
    a.ext(timed(b.items + (stage_a_tables(50, 24) if opt('hoist0', opt('hoist', 0)) else []), q, opt('xp', 20 if early else 64), -opt('xd', 0)))
    nd = opt('nd', 7)
    assert len(q) <= 16
    st(a, 'W')
    a.wait_vm('x1')
    st(a, 'W')
    a.ext(timed(tl + dots[:16 * nd], q, 32))
    a.ext(take(q, 99))
    a.I('buffer_store_dword v5, v4, %s, %s offen sc1' % (WS, sI0))
    a.I('buffer_store_dword v6, v7, %s, %s offen sc1' % (WS, sI1))
    st(a, 'QW')
    def wstore():
        a.wait_vm('wdma')
        a.I('s_barrier')
        st(a, 'W')
        a.I('s_cmp_lt_u32 s2, %d' % N_WD)
        a.I('s_cbranch_scc0 p0_w1b')
        c = Asm()
        c.I('v_lshrrev_b32 v1, 2, v0')
        c.I('v_mul_u32_u24 v1, 640, v1')
        c.I('v_and_b32 v2, 3, v0')
        c.I('v_mul_u32_u24 v2, 40, v2')
        c.I('s_mul_i32 s3, %s, 160' % sW)
        c.I('v_add3_u32 v1, v1, v2, s3')
        for n in range(5):
            for rd in range(2):
                c.I('ds_read_b64_tr_b16 %s, v1 offset:%d' % (vr(4 * n + 2 * rd, 2, 'a'), rd * 10240 + n * 8))
        c.I('s_lshl_b32 %s, %s, 2' % (sT[1], sT[1]))
        c.I('s_add_u32 %s, %s, %s' % (sT[1], sT[1], sW))
        c.I('s_mul_i32 %s, %s, 276480' % (sT[1], sT[1]))
        c.I('s_mul_i32 s3, %s, 5120' % sT[0])
        c.I('s_add_u32 %s, %s, s3' % (sT[1], sT[1]))
        c.I('s_add_u32 %s, %s, 0x%x' % (sT[1], sT[1], WDP))
        c.I('s_add_u32 %s, %s, 4096' % (sT[2], sT[1]))
        c.I('v_mov_b32 v2, 0x80000000')
        for n in range(5):
            c.I('buffer_store_dwordx4 %s, v%d, %s, %s offen offset:%d sc1' % (vr(4 * n, 4, 'a'), vL16, WS, sT[2] if n == 4 else sT[1], (n % 4) * 1024))
        for n in range(3):
            c.I('buffer_store_dword v2, v2, %s, 0 offen' % WS)
        c.I('s_branch p0_stat')
        a.raw(c.finalize().rstrip('\n'))
        a.label('p0_w1b')
        a.I('v_lshrrev_b32 v1, 4, v0')
        a.I('v_lshlrev_b32 v1, 10, v1')
        a.I('v_bfe_u32 v2, v0, 2, 2')
        a.I('v_lshl_add_u32 v1, v2, 7, v1')
        a.I('v_and_b32 v2, 3, v0')
        a.I('v_lshl_add_u32 v1, v2, 3, v1')
        a.I('v_add_u32 v1, %s, v1' % sT[5])
        for k in range(2):
            for ft in range(4):
                for rd in range(2):
                    a.I('ds_read_b64_tr_b16 %s, v1 offset:%d' % (vr(16 * k + 4 * ft + 2 * rd, 2, 'a'), k * 4096 + rd * 512 + ft * 32))
        a.I('v_add_u32 v2, %s, v%d' % (sT[6], vL16))
        for k in range(2):
            sD = (sW0, sW1)[k]
            for ft in range(4):
                a.I('buffer_store_dwordx4 %s, v2, %s, %s offen sc1' % (vr(16 * k + 4 * ft, 4, 'a'), WS, sD), tag='ws')
                if ft < 3:
                    a.I('s_add_u32 %s, %s, 40960' % (sD, sD))
        a.label('p0_stat')
        st(a, 'W')
    for i in range(3 if (early and opt('pfp', 1) == 1) else 0):
        a.I('buffer_store_dwordx4 v[100:103], v%d, %s, %s offen sc1' % (at.GA[i], WS, sT[15]))
    if not opt('wpos', 0):
        wstore()
    a.I('v_mov_b32 v104, 0')
    rdy = Ins('global_load_dword v105, v104, s[22:23] sc1', 'ws')
    if early and not opt('rdl', 1):
        a.ext([rdy])
    a.ext(dots[16 * nd:])
    st(a, 'QW')
    a.I('v_and_b32 v3, 1, v0')
    a.I('v_cmp_eq_u32 vcc, 1, v3')
    a.I('v_and_b32 v3, 7, v0')
    for m in ('quad_perm:[1,0,3,2]', 'quad_perm:[2,3,0,1]', 'row_half_mirror'):
        for i in range(4):
            a.I('v_add_f32_dpp v%d, v%d, v%d %s row_mask:0xf bank_mask:0xf' % (S + i, S + i, S + i, m))
    a.I('v_bfe_u32 v%d, v0, 3, 1' % (S + 4))
    a.I('v_lshl_add_u32 v3, v3, 3, v%d' % (S + 4))
    a.I('v_lshlrev_b32 v3, 2, v3')
    a.I('v_cndmask_b32 v%d, v%d, v%d, vcc' % (S, S, S + 2))
    a.I('v_cndmask_b32 v%d, v%d, v%d, vcc' % (S + 1, S + 1, S + 3))
    a.I('ds_bpermute_b32 v%d, v3, v%d' % (S + 2, S))
    a.I('ds_bpermute_b32 v%d, v3, v%d' % (S + 3, S + 1))
    a.ext(unpack(range(PK, PK + 10), lambda i: X + i))
    b = Asm()
    at.main(b, X, S + 2, S + 3, 176, sT[15], 'gs')
    if early:
        early(a, LB0)
        if opt('rdl', 1):
            b.items.insert([i for i, x in enumerate(b.items) if x.op == 's_barrier'][0] + 1, rdy)
        k = len(b.items) - opt('ar0', 3)
        a.ext(b.items[:k])
        a.wait_vm('ws')
        a.I('v_readfirstlane_b32 %s, v105' % sT[19])
        a.I('s_cmp_lt_u32 %s, 16' % sT[19])
        a.I('s_cbranch_scc1 rdy_slow')
        a.label('rdy_ok')
        a.I('s_barrier')
        a.I('buffer_atomic_add v242, v245, %s, %s offen sc0 sc1' % (WS, sT[14]))
        if opt('stress', 0):
            a.I('s_cmp_eq_u32 %s, 0\ns_cbranch_scc1 .Lst9\ns_bitcmp1_b32 s2, 5\ns_cbranch_scc1 .Lst9\ns_sleep 60' % sW)
            a.label('.Lst9')
        a.ext(b.items[k:])
    else:
        a.ext(b.items)
    if opt('wpos', 0):
        wstore()
    st(a, 'W')
    decode(a, False)
```

```python
from common8 import *
from sched import Sched
import asmlib

M16 = 'v_mfma_f32_16x16x32_bf16'
M32 = 'v_mfma_f32_32x32x16_bf16'
L_V, L_X = 126976, 151552
L_P = 0
PERS = 1
KNAME = 'interleave_layers__spectral_fnet__swiglu_ffn__prompt_kernel'
sDBG = 's[22:23]'
SPIN = 20000

vL16, vD0, vFl, vDt, vWa = 14, 11, 12, 13, 15
sZF, sHF, sHC = sT[21], sT[22], sT[23]
sCK, sSP = sT[24], sT[25]
slow = []


def lst(f, *args):
    b = Asm()
    f(b, *args)
    return b.items


def dma(vbase, sbase, lds, n, tag):
    o = []
    for i in range(n):
        g = []
        if i % 4 == 0:
            g.append(Ins('s_add_u32 m0, %s, %d' % (sbase, lds + i * 1024)))
            g.append(Ins('v_add_u32 v%d, m0, v%d' % (vDt, vbase)))
        g.append(Ins('buffer_load_dwordx4 v%d, %s, 0 offen offset:%d sc1 lds' % (vDt, WS, (i % 4) * 1024), tag))
        o.append(g)
    return link(o)


def wda_loads(n=54):
    o = []
    for i in range(n):
        g = []
        if i and i % 4 == 0:
            g.append(Ins('v_add_u32 v%d, 4096, v%d' % (vWa, vWa)))
        g.append(Ins('buffer_load_dwordx4 %s, v%d, %s, 0 offen offset:%d sc1' % (vr(4 * i + (40 if i >= 40 else 0), 4, 'a'), vWa, WS, (i % 4) * 1024), 'wda'))
        o.append(g)
    return o


def est(x):
    if isinstance(x, tuple):
        return 0 if x[0] in ('label', 'raw') else 30
    if x.kind == 'mfma':
        return 4 * x.passes
    if x.op == 's_barrier':
        return 40
    if x.op == 's_waitcnt':
        return 40
    if x.op.startswith(('v_sin', 'v_cos', 'v_exp', 'v_r', 'v_pk', 'ds_write')):
        return 8
    return 4


def timed(items, q, period, t=0):
    out = []
    for x in items:
        x = Ins(x) if isinstance(x, str) else x
        if isinstance(x, list):
            out += x
            t += 4 * len(x)
        else:
            out.append(x)
            t += est(x)
        if t >= period and q:
            g = q.pop(0)
            out += g
            t += 4 * len(g) - period
    return out


def link(groups):
    last = {}
    for g in groups:
        for x in g:
            if isinstance(x, Ins):
                if x.kind == 'vmem':
                    for r in ('m0',):
                        if r in x.src and r in last:
                            x.dep = last[r]
                for r in x.dst:
                    last[r] = x
    return groups


def weave_groups(main, groups, every, start=0):
    out, gi = [], 0
    for i, m in enumerate(main):
        out.append(m)
        if i >= start and (i - start) % every == every - 1 and gi < len(groups):
            out += groups[gi]
            gi += 1
    return out, groups[gi:]


def check_issue(vC, so):
    return [Ins('v_mov_b32 v%d, 0' % vC), Ins('buffer_atomic_add v%d, v%d, %s, %s offen sc0 sc1' % (vC, vFl, WS, so), 'ck')]


def check_test(vC, so, bit, name):
    slow.append((vC, so, bit, name))
    return [Ins('v_readfirstlane_b32 %s, v%d' % (sCK, vC)),
            [Ins('s_bitcmp1_b32 %s, %d' % (sCK, bit)), Ins('s_cbranch_scc0 %s_slow' % name), ('label', name + '_ok')]]


polls = []


def poll_test(regs, so, bit, name):
    polls.append((regs, so, bit, name))
    return [Ins('v_readfirstlane_b32 %s, v%d' % (sCK, regs[0])), Ins('s_bitcmp1_b32 %s, %d' % (sCK, bit)),
            Ins('s_cbranch_scc0 %s_slow' % name), ('label', name + '_ok')]


def emit_polls(a):
    for k, (regs, so, bit, name) in enumerate(polls):
        a.label(name + '_slow')
        a.reset()
        a.I('s_mov_b32 %s, 0' % sSP)
        a.label(name + '_spin')
        for r in range(3):
            a.reset()
            if STAMP:
                a.I('s_add_u32 s97, s97, 0x%x' % (1 << (5 * (2 + k))))
            a.ext(check_issue(regs[r], so))
            a.I('s_waitcnt vmcnt(2)')
            a.I('v_readfirstlane_b32 %s, v%d' % (sCK, regs[(r + 1) % 3]))
            a.I('s_bitcmp1_b32 %s, %d' % (sCK, bit))
            a.I('s_cbranch_scc1 %s_ok' % name)
        a.I('s_add_u32 %s, %s, 1' % (sSP, sSP))
        a.I('s_cmp_lt_u32 %s, %d' % (sSP, SPIN))
        a.I('s_cbranch_scc1 %s_spin' % name)
        a.I('s_branch %s_ok' % name)


def emit_slow(a):
    for k, (vC, so, bit, name) in enumerate(slow):
        a.label(name + '_slow')
        a.reset()
        a.I('s_mov_b32 %s, 0' % sSP)
        a.label(name + '_spin')
        if STAMP:
            sys.stderr.write('slow %d = %s\n' % (k, name))
            a.I('s_add_u32 s%d, s%d, 0x%x' % (96 + k // 6, 96 + k // 6, 1 << (5 * (k % 6))))
        if vC is None:
            a.I('s_load_dword %s, s[52:53], %s glc' % (sCK, so))
            a.I('s_add_u32 %s, %s, 1' % (sSP, sSP))
            a.I('s_waitcnt lgkmcnt(0)')
        else:
            a.ext(check_issue(vC, so))
            a.I('s_add_u32 %s, %s, 1' % (sSP, sSP))
            a.I('s_waitcnt vmcnt(0)')
            a.I('v_readfirstlane_b32 %s, v%d' % (sCK, vC))
        a.I('s_bitcmp1_b32 %s, %d' % (sCK, bit))
        a.I('s_cbranch_scc1 %s_ok' % name)
        a.I('s_cmp_lt_u32 %s, %d' % (sSP, SPIN))
        a.I('s_cbranch_scc1 %s_spin' % name)
        a.I('s_branch %s_ok' % name)


def take(q, n):
    r = []
    for g in q[:n]:
        r += g
    del q[:n]
    return r


def stream_bases(b):
    b.I('s_lshr_b32 s3, %s, 2' % sMU)
    b.I('s_sub_u32 s3, %s, s3' % sMU)
    b.I('s_mul_i32 %s, %s, 6' % (sCK, sMU))
    b.I('s_add_u32 s3, s3, %s' % sCK)
    b.I('s_mul_i32 s3, s3, 40960')
    b.I('v_add_u32 v%d, s3, v%d' % (vD0, vL16))
    b.I('s_mul_i32 s3, %s, 276480' % sJJ)
    b.I('s_mul_i32 %s, %s, 61440' % (sCK, sW))
    b.I('s_add_u32 s3, s3, %s' % sCK)
    b.I('s_add_u32 s3, s3, 0x%x' % WDP)
    b.I('v_add_u32 v%d, s3, v%d' % (vWa, vL16))
    b.I('s_mul_i32 %s, %s, 11264' % (sW11, sW))


sW11 = sT[20]
EZL, EG, EG0 = (opt('ez0', 0), opt('ez1', 2)), opt('eg', 1), opt('eg0', 1)
VAL = opt('val', 1)
slow3 = []
NRE = opt('nre', 0)


def stage_a_tables(T, R0, TA=112):
    b = Asm()
    K = T + 2
    b.I('v_and_b32 v%d, 15, v0' % T)
    b.I('v_bfe_u32 v%d, v0, 2, 2' % (T + 1))
    b.I('v_sub_u32 v%d, v%d, v%d' % (T, T, T + 1))
    b.I('v_cvt_f32_u32 v%d, v%d' % (T, T))
    b.I('v_mul_f32 v%d, %s, v%d' % (T, fl(1.0 / 640), T))
    b.I('s_lshl_b32 s3, %s, 3' % sW)
    b.I('v_cos_f32 v%d, v%d' % (K, T))
    b.I('v_cvt_f32_u32 v%d, s3' % (T + 1))
    b.I('v_lshrrev_b32 v%d, 4, v0' % (T + 3))
    b.I('v_cvt_f32_u32 v%d, v%d' % (T + 3, T + 3))
    b.I('v_fmamk_f32 v%d, v%d, %s, v%d' % (T + 1, T + 3, fl(32), T + 1))
    b.I('v_mul_f32 v%d, v%d, v%d' % (T + 1, T, T + 1))
    b.I('v_add_f32 v%d, v%d, v%d' % (K, K, K))
    for ib in range(8):
        C, Sn = TA + 8 * ib, TA + 8 * ib + 4
        cur, oth = R0 + 10 * (ib & 1), R0 + 10 * ((ib + 1) & 1)
        for j in range(5):
            r = cur + 2 * j
            if ib < 2:
                b.I('v_fmamk_f32 v%d, v%d, %s, v%d' % (r + 1, T, fl(128 * j + ib), T + 1))
                b.I('v_cos_f32 v%d, v%d' % (r, r + 1))
                b.I('v_sin_f32 v%d, v%d' % (r + 1, r + 1))
            else:
                b.I('v_pk_fma_f32 %s, %s, %s, %s op_sel_hi:[0,1,1] neg_lo:[0,0,1] neg_hi:[0,0,1]' % (vr(r, 2), vr(K, 2), vr(oth + 2 * j, 2), vr(r, 2)))
        for e, d in ((0, C), (1, Sn)):
            b.I('v_cvt_pk_bf16_f32 v%d, v%d, v%d' % (d, cur + e, cur + 2 + e))
            b.I('v_cvt_pk_bf16_f32 v%d, v%d, v%d' % (d + 1, cur + 4 + e, cur + 6 + e))
            b.I('v_cvt_pk_bf16_f32 v%d, v%d, 0' % (d + 2, cur + 8 + e))
    for ib in range(8):
        b.I('v_mov_b32 v%d, 0' % (TA + 8 * ib + 3))
        b.I('v_mov_b32 v%d, 0' % (TA + 8 * ib + 7))
    return b.items


def kb(a, st, layer, q):
    LB = LB0 + layer * LBS
    EZ = EZL[layer]
    FS, TA, TB, AP, AM, WA, WD = 16, 112, 24, 176, 192, 72, 208
    vRS, vVW, vVR, vA0, vA2 = (1, 2), (3, 4, 255), (5, 6, 7, 8), 9, 10
    vZS, vRB, vGs, vXs, vRo = (248, 249, 250), 251, 252, 253, 254
    T, R0 = AP + 20, AP
    sT1, sCLS, sQ, sW10, sBLK, sW25 = sT[0], sT[1], sT[2], sT[3], sT[4], sT[5]
    sSig, sAmp, sZS, sRS, sW9, sW20 = sT[6], sT[7], sT[8], sT[9], sT[10], sT[11]
    PER = opt('per%d' % layer, opt('per', 52))
    b = Asm()
    b.I('s_lshr_b32 %s, %s, 2' % (sT1, sMU))
    b.I('s_sub_u32 s3, 3, %s' % sT1)
    b.items.append([Ins('s_cmp_gt_u32 %s, 8' % sG), Ins('s_cselect_b32 %s, s3, %s' % (sT1, sT1))])
    b.I('s_and_b32 s3, %s, 1' % sT1)
    b.I('s_lshl_b32 %s, %s, 1' % (sCLS, sG))
    b.I('s_add_u32 %s, %s, s3' % (sCLS, sCLS))
    b.I('s_lshl_b32 %s, %s, 1' % (sCLS, sCLS))
    b.I('s_lshr_b32 s3, %s, 1' % sT1)
    b.I('s_add_u32 %s, %s, s3' % (sCLS, sCLS))
    b.I('s_lshl_b32 %s, %s, 4' % (sT1, sT1))
    b.I('s_add_u32 %s, %s, %s' % (sT1, sT1, sG))
    b.I('s_sub_u32 s3, 64, %s' % sT1)
    b.I('s_min_u32 s3, s3, %s' % sT1)
    b.I('s_and_b32 s3, s3, 31')
    b.I('s_mul_i32 s3, s3, 81920')
    b.I('s_add_u32 s3, s3, 0x%x' % (LB + oG))
    b.I('v_add_u32 v%d, s3, v%d' % (vGs, vL16))
    b.I('s_mul_i32 %s, %s, 10240' % (sW10, sW))
    sc0 = b.items
    b = Asm()
    b.I('s_and_b32 %s, %s, 3' % (sQ, sMU))
    b.I('s_lshl_b32 %s, %s, 2' % (sBLK, sCLS))
    b.I('s_add_u32 %s, %s, %s' % (sBLK, sBLK, sQ))
    b.I('s_mul_i32 s3, %s, 10240' % sBLK)
    b.I('s_add_u32 s3, s3, 0x%x' % (LB + oXA - L_X))
    b.I('v_add_u32 v%d, s3, v%d' % (vXs, vL16))
    b.I('s_mul_i32 %s, %s, 2560' % (sW25, sW))
    b.items.append([Ins('s_cmp_lt_u32 %s, 32' % sT1), Ins('s_cselect_b32 %s, %s, 0' % (sSig, fl(-0.25)))])
    b.items.append([Ins('s_cmp_gt_u32 %s, 32' % sT1), Ins('s_cselect_b32 %s, %s, %s' % (sSig, fl(0.25), sSig))])
    b.items.append([Ins('s_cmp_eq_u32 %s, 0' % sT1), Ins('s_cselect_b32 %s, 0xffff, -1' % sAmp)])
    b.items.append([Ins('s_cmp_eq_u32 %s, 32' % sT1), Ins('s_cselect_b32 %s, 0xffff0000, %s' % (sAmp, sAmp))])
    b.I('v_and_b32 v%d, 31, v0' % T)
    b.I('s_lshr_b32 s3, %s, 1' % sW)
    b.I('v_add_u32 v%d, s3, v%d' % (T, T))
    b.I('v_cvt_f32_u32 v%d, v%d' % (T, T))
    b.I('v_mul_f32 v%d, %s, v%d' % (T, fl(1.0 / 32), T))
    b.I('s_and_b32 s3, %s, 1' % sW)
    b.I('s_lshl_b32 s3, s3, 4')
    b.I('v_cos_f32 v%d, v%d' % (T + 2, T))
    b.I('v_lshrrev_b32 v%d, 5, v0' % (T + 1))
    b.I('v_lshl_add_u32 v%d, v%d, 3, s3' % (T + 1, T + 1))
    b.I('v_cvt_f32_u32 v%d, v%d' % (T + 1, T + 1))
    b.I('v_mul_f32 v%d, v%d, v%d' % (R0 + 1, T, T + 1))
    b.I('v_add_f32 v%d, v%d, v%d' % (R0 + 3, R0 + 1, T))
    b.I('v_add_f32 v%d, v%d, v%d' % (T + 2, T + 2, T + 2))
    for j in range(2):
        b.I('v_cos_f32 v%d, v%d' % (R0 + 2 * j, R0 + 2 * j + 1))
        b.I('v_sin_f32 v%d, v%d' % (R0 + 2 * j + 1, R0 + 2 * j + 1))
    b.I('s_lshl_b32 s3, %s, 11' % sW)
    b.I('v_add_u32 v%d, 0x%x, v%d' % (vRB, L_V, vL16))
    b.I('v_add_u32 v%d, s3, v%d' % (T + 1, vRB))
    for j in range(2, 8):
        b.I('v_pk_fma_f32 %s, %s, %s, %s op_sel_hi:[0,1,1] neg_lo:[0,0,1] neg_hi:[0,0,1]' % (vr(R0 + 2 * j, 2), vr(T + 2, 2), vr(R0 + 2 * j - 2, 2), vr(R0 + 2 * j - 4, 2)))
    for e in range(2):
        for p in range(4):
            b.I('v_cvt_pk_bf16_f32 v%d, v%d, v%d' % (TB + 4 * e + p, R0 + 4 * p + e, R0 + 4 * p + 2 + e))
        b.I('ds_write_b128 v%d, %s offset:%d' % (T + 1, vr(TB + 4 * e, 4), 1024 * e))
    b.I('s_lshl_b32 s3, %s, 9' % sQ)
    b.I('s_add_u32 s3, s3, %s' % sT1)
    b.I('v_bfe_u32 v%d, v0, 1, 3' % T)
    b.I('v_lshl_add_u32 v%d, v%d, 6, s3' % (T, T))
    b.I('v_cvt_f32_u32 v%d, v%d' % (T, T))
    b.I('v_mul_f32 v%d, %s, v%d' % (T, fl(1.0 / 2048), T))
    b.I('v_lshrrev_b32 v%d, 4, v0' % (T + 1))
    b.I('v_cvt_f32_u32 v%d, v%d' % (T + 5, T + 1))
    b.I('v_add_f32 v%d, v%d, v%d' % (T + 1, T + 5, T + 5))
    b.I('v_and_b32 v%d, 1, v0' % (T + 2))
    b.I('v_cvt_f32_u32 v%d, v%d' % (T + 2, T + 2))
    b.I('v_mul_f32 v%d, %s, v%d' % (T + 2, fl(0.25), T + 2))
    b.I('v_fma_f32 v%d, v%d, v%d, v%d' % (T + 1, T, T + 1, T + 2))
    for i in range(8):
        k = 16 * (i >> 2) + 8 * ((i >> 1) & 1) + (i & 1)
        b.I('v_fmamk_f32 v%d, v%d, %s, v%d' % (FS + i, T, fl(k), T + 1))
        b.I('v_add_f32 v%d, %s, v%d' % (R0 + i, sSig, FS + i))
        b.I('v_cos_f32 v%d, v%d' % (FS + i, FS + i))
        b.I('v_cos_f32 v%d, v%d' % (R0 + i, R0 + i))
    for i in range(8):
        b.I('v_cvt_pk_bf16_f32 v%d, v%d, v%d' % (FS + i, FS + i, R0 + i))
        b.I('v_and_b32 v%d, %s, v%d' % (FS + i, sAmp, FS + i))
    b.I('v_lshrrev_b32 v%d, 3, v0' % T)
    b.I('v_mul_u32_u24 v%d, 2560, v%d' % (T + 1, T))
    b.I('v_bfe_u32 v%d, v0, 2, 1' % (T + 2))
    b.I('v_lshl_add_u32 v%d, v%d, 3, v%d' % (T + 1, T + 2, T + 1))
    b.I('v_and_b32 v%d, 3, v0' % (T + 2))
    b.I('v_lshl_add_u32 v%d, v%d, 7, v%d' % (T + 1, T + 2, T + 1))
    b.I('v_and_b32 v%d, 3, v%d' % (T, T))
    b.I('v_and_b32 v%d, 2, v0' % (T + 2))
    b.I('v_lshl_or_b32 v%d, v%d, 1, v%d' % (T, T + 2, T))
    b.I('s_lshl_b32 s3, %s, 1' % sW)
    b.I('v_xor_b32 v%d, s3, v%d' % (T, T))
    b.I('v_lshl_add_u32 v%d, v%d, 4, v%d' % (vRS[0], T, T + 1))
    b.I('v_xor_b32 v%d, 16, v%d' % (vRS[1], vRS[0]))
    tab1 = b.items
    b = Asm()
    b.I('s_lshl_b32 s3, %s, 1' % sW)
    b.I('v_and_b32 v%d, 31, v0' % (T + 2))
    b.I('v_lshrrev_b32 v%d, 5, v0' % (T + 4))
    b.I('v_add_u32 v%d, s3, v%d' % (T + 3, T + 4))
    xr_addr(b, vA0, vA2, T + 2, T + 3, T)
    b.I('v_add_u32 v%d, 0x%x, v%d' % (vA0, L_X, vA0))
    b.I('v_add_u32 v%d, 0x%x, v%d' % (vA2, L_X, vA2))
    b.I('v_bfe_u32 v%d, v0, 3, 2' % (T + 1))
    b.I('v_cmp_eq_u32 vcc, 3, v%d' % (T + 1))
    b.I('v_bfe_u32 v%d, v0, 2, 1' % T)
    b.I('v_add_u32 v%d, s3, v%d' % (T, T))
    b.I('v_and_b32 v%d, 3, v0' % (T + 2))
    b.I('v_cndmask_b32_e64 v%d, v%d, 0, vcc' % (T + 1, T + 1))
    b.I('v_lshl_add_u32 v%d, v%d, 2, v%d' % (T + 1, T + 1, T + 2))
    b.I('v_mad_u32_u24 v%d, v%d, 12, v%d' % (T + 2, T, T + 1))
    b.I('v_lshlrev_b32 v%d, 7, v%d' % (T + 2, T + 2))
    b.I('v_lshrrev_b32 v%d, 1, v%d' % (T + 1, T + 1))
    b.I('v_and_b32 v%d, 3, v%d' % (T, T))
    b.I('v_xor_b32 v%d, v%d, v%d' % (T, T, T + 1))
    b.I('v_xor_b32 v%d, v%d, v%d' % (T, T, T + 4))
    b.I('v_lshl_add_u32 v%d, v%d, 4, v%d' % (T, T, T + 2))
    b.I('v_add_u32 v%d, 0x%x, v%d' % (vVR[0], L_V, T))
    for k in range(1, 4):
        b.I('v_xor_b32 v%d, %d, v%d' % (vVR[k], 32 * k, vVR[0]))
    b.I('v_bfe_u32 v%d, v0, 1, 3' % T)
    b.I('v_lshrrev_b32 v%d, 4, v0' % (T + 1))
    b.I('v_mul_u32_u24 v%d, 3, v%d' % (T + 1, T + 1))
    b.I('v_mad_u32_u24 v%d, v%d, 12, v%d' % (T + 2, T, T + 1))
    b.I('v_lshlrev_b32 v%d, 7, v%d' % (T + 2, T + 2))
    b.I('v_add_u32 v%d, 0x%x, v%d' % (T + 2, L_V, T + 2))
    b.I('v_and_b32 v%d, 3, v%d' % (T, T))
    b.I('v_and_b32 v%d, 1, v0' % (T + 3))
    b.I('v_lshl_or_b32 v%d, v%d, 2, %s' % (T + 3, T + 3, sW))
    b.I('v_xor_b32 v%d, v%d, v%d' % (T, T, T + 3))
    for r in range(3):
        if r:
            b.I('v_add_u32 v%d, 1, v%d' % (T + 1, T + 1))
        b.I('v_lshrrev_b32 v%d, 1, v%d' % (T + 3, T + 1))
        b.I('v_xor_b32 v%d, v%d, v%d' % (T + 3, T + 3, T))
        b.I('v_lshl_add_u32 v%d, v%d, 4, v%d' % (vVW[r], T + 3, T + 2))
    b.I('s_mul_i32 %s, %s, 5120' % (sW20, sW))
    addr = b.items

    b = Asm()
    U = T
    b.I('s_mul_i32 s3, %s, 20' % sW)
    b.I('v_lshrrev_b32 v%d, 3, v0' % U)
    b.I('v_add_u32 v%d, s3, v%d' % (U, U))
    for it in range(3):
        if it:
            b.I('v_add_u32 v%d, 8, v%d' % (U, U))
        b.I('v_mul_u32_u24 v%d, 205, v%d' % (U + 1, U))
        b.I('v_lshrrev_b32 v%d, 9, v%d' % (U + 1, U + 1))
        b.I('v_xor_b32 v%d, v%d, v0' % (U + 1, U + 1))
        b.I('v_and_b32 v%d, 7, v%d' % (U + 1, U + 1))
        b.I('v_lshlrev_b32 v%d, 9, v%d' % (U + 2, U))
        b.I('v_lshl_add_u32 v%d, v%d, 4, v%d' % (vZS[it], U + 1, U + 2))
    b.I('v_lshrrev_b32 v%d, 5, v0' % U)
    b.I('v_lshl_add_u32 v%d, v%d, 31, v%d' % (vZS[2], U, vZS[2]))
    b.I('s_mul_i32 %s, %s, 40960' % (sZS, sCLS))
    b.I('s_lshl_b32 s3, %s, 7' % sQ)
    b.I('s_add_u32 %s, %s, s3' % (sZS, sZS))
    b.I('s_add_u32 %s, %s, 0x%x' % (sZS, sZS, LB + oZ))
    b.I('s_add_u32 s3, %s, 0x%x' % (sW25, L_X))
    b.I('v_add_u32 v%d, s3, v%d' % (vRB, vL16))
    b.I('v_and_b32 v%d, 31, v0' % (U + 1))
    b.I('v_min_u32 v%d, 1, v%d' % (U + 1, U + 1))
    b.I('v_lshlrev_b32 v%d, 31, v%d' % (U + 1, U + 1))
    b.I('v_lshl_add_u32 v%d, v%d, 3, v%d' % (vRo, U, U + 1))
    b.I('s_lshl_b32 %s, %s, 2' % (sRS, sBLK))
    b.I('s_add_u32 %s, %s, %s' % (sRS, sRS, sW))
    b.I('s_lshl_b32 %s, %s, 4' % (sRS, sRS))
    b.I('s_add_u32 %s, %s, 0x%x' % (sRS, sRS, LB + oRS))
    b.I('s_lshl_b32 %s, %s, 9' % (sZF, sCLS))
    b.I('s_add_u32 %s, %s, 0x%x' % (sZF, sZF, LB + oFL))
    late = b.items

    tbr = ['ds_read_b128 %s, v%d offset:%d' % (vr(TB + 24 * (w >> 1) + 8 * e + 4 * (w & 1), 4), vRB, 2048 * w + 1024 * e) for w in range(4) for e in range(2)]
    neg = ['v_xor_b32 v%d, 0x80008000, v%d' % (TB + 16 + i, TB + 8 + i) for i in range(8)] + \
          ['v_xor_b32 v%d, 0x80008000, v%d' % (TB + 40 + i, TB + 24 + i) for i in range(8)]
    XE = lambda e: AP + e if e < 10 else AM + 20 - e
    rds = lambda ks: ['ds_read_b64_tr_b16 %s, v%d offset:%d' % (vr(WA + 20 * bg + 4 * t + 2 * rd, 2), vRS[bg], (16 * ks + 8 * rd) * 2560 + 512 * t)
                      for bg in range(2) for t in range(5) for rd in range(2)]
    mf = lambda ks: ['%s %s, %s, %s, %s' % (M16, vr(WD + 4 * i, 4), vr(WA + 4 * i, 4), vr(FS + 4 * ks, 4), vr(WD + 4 * i, 4) if ks else '0') for i in range(10)]
    gq = dma(vGs, sW10, 0, 10, 'g0') + dma(vGs, sW10, 40960, 10, 'g1')
    xd = dma(vXs, sW25, L_X, 3, 'xa')
    xd[2] = [Ins('s_mov_b32 exec_hi, 0')] + xd[2] + [Ins('s_mov_b32 exec_hi, -1')]
    early = dma(vD0, sW11, 81920, 11, 'w')

    ly = str(layer)
    O = lambda name, d0, d1: opt(name + ly, opt(name, d1 if layer else d0))
    vAr, vRp, vCk = WD + 32, WD + 33, WD + 34
    sAr, sRp = sT[12], sT[13]
    XP = WD + 8
    ntb = [i for i, x in enumerate(tab1) if isinstance(x, Ins) and x.op == 'ds_write_b128'][-1] + 1
    zf = Asm()
    zf.I('s_mul_i32 %s, %s, 40960' % (sZS, sCLS))
    zf.I('s_lshl_b32 s3, %s, 7' % sQ)
    zf.I('s_add_u32 %s, %s, s3' % (sZS, sZS))
    zf.I('s_add_u32 %s, %s, %s' % (sZS, sZS, sW10))
    zf.I('s_add_u32 %s, %s, 0x%x' % (sZS, sZS, LB + oZ))
    zf.I('v_lshrrev_b32 v248, 3, v0')
    zf.I('v_and_b32 v249, 7, v0')
    zf.I('v_lshlrev_b32 v249, 4, v249')
    zf.I('v_lshl_add_u32 v248, v248, 9, v249')
    zf.I('v_add_u32 v249, 4096, v248')
    zf.I('v_lshrrev_b32 v250, 5, v0')
    zf.I('v_lshl_add_u32 v250, v250, 31, v249')
    zf.I('v_add_u32 v250, 4096, v250')
    for i in range(4):
        zf.I('v_mov_b32 v%d, -1' % (WA + i))
    for i in range(3):
        zf.I('buffer_store_dwordx4 %s, v%d, %s, %s offen sc1' % (vr(WA, 4), 248 + i, WS, sZS))
    EGL = (EG0, EG)[layer]
    if EGL:
        if layer:
            q[:0] = early
            pre = sc0 + tab1
            work = pre + tbr + addr + neg + late
            n1 = 0
        else:
            b = Asm()
            stream_bases(b)
            b.I('s_lshl_b32 s3, %s, 2' % sQ)
            b.I('s_add_u32 s3, s3, %s' % sW)
            b.I('s_lshl_b32 s3, s3, 7')
            b.I('s_add_u32 s3, s3, %s' % sT1)
            b.I('s_mul_i32 s3, s3, 1280')
            b.I('v_lshrrev_b32 v%d, 5, v0' % vXs)
            b.I('v_mul_u32_u24 v%d, 81920, v%d' % (vXs, vXs))
            b.I('v_and_b32 v%d, 31, v0' % vRo)
            b.I('v_mad_u32_u24 v%d, v%d, 40, v%d' % (vXs, vRo, vXs))
            b.I('buffer_load_dwordx4 %s, v%d, %s, s3 offen' % (vr(XP, 4), vXs, SA))
            b.I('buffer_load_dwordx4 %s, v%d, %s, s3 offen offset:16' % (vr(XP + 4, 4), vXs, SA))
            b.I('buffer_load_dwordx2 %s, v%d, %s, s3 offen offset:32' % (vr(XP + 8, 2), vXs, SA))
            pre = sc0 + tab1[:ntb] + b.items + tab1[ntb:] + ([] if O('hoist', 0, 1) else stage_a_tables(T, R0)) + addr
            work = pre + tbr + late + neg + unpack(range(XP, XP + 10), XE)
            n1 = opt('t2e', 80)
            a.ext(timed(work[:n1], [], 1))
            st(a, 'W')
            st(a, 'QW')
        a.I('v_readfirstlane_b32 %s, v%d' % (sCK, vCk))
        st(a, 'Y')
        a.I('s_cmp_lg_u32 %s, 15' % sCK)
        a.I('s_cbranch_scc1 a2a_notlast' + ly)
        a.raw('    buffer_atomic_add v%d, v%d, %s, %s offen sc1' % (vAr, vRp, WS, sAr))
        a.label('a2a_notlast' + ly)
        qa = take1(q, opt('a3e', 8))
        n4 = min(len(pre), max(len(sc0) + ntb, O('t3e', 400, 120)))
        rest = timed(work[n1:n4], qa, 64)
    else:
        b = Asm()
        if layer:
            q[:0] = early
        else:
            a.I('v_mov_b32 v246, 0')
            a.I('global_load_dword v247, v246, %s sc1' % sDBG, tag='gs')
            stream_bases(b)
        b.I('s_lshl_b32 %s, %s, 7' % (sAr, sG))
        b.I('s_add_u32 %s, %s, 0x%x' % (sAr, sAr, LB + oFL + 384 * 128))
        b.I('s_min_u32 s3, %s, 1' % sW)
        b.I('s_lshl_b32 s3, s3, 31')
        b.I('v_or_b32 v%d, s3, v%d' % (vAr, vFl))
        b.I('v_mov_b32 v%d, 1' % vCk)
        qa = take1(q, opt('a1', 7))
        a.ext(take(qa, 2))
        a.ext(timed(b.items + sc0 + tab1[:ntb], qa, 60))
        a.ext(take(qa, 99))
        st(a, 'YW')
        a.items.append(('wait_both', 'gs'))
        st(a, 'YW')
        if not layer:
            a.I('v_readfirstlane_b32 %s, v247' % sT[14])
            a.I('s_cmp_lt_u32 %s, 16' % sT[14])
            a.I('s_cbranch_scc1 rdy_slow')
            a.label('rdy_ok')
        a.I('s_barrier')
        a.I('buffer_atomic_add v%d, v%d, %s, %s offen sc0 sc1' % (vCk, vAr, WS, sAr))
        st(a, 'Q' if layer == 0 else 'R')
        qa = take1(q, opt('a2', 8))
        b = Asm()
        if not layer:
            if EZ and VAL:
                b.ext(zf.items)
            b.I('s_lshl_b32 s3, %s, 2' % sQ)
            b.I('s_add_u32 s3, s3, %s' % sW)
            b.I('s_lshl_b32 s3, s3, 7')
            b.I('s_add_u32 s3, s3, %s' % sT1)
            b.I('s_mul_i32 s3, s3, 1280')
            b.I('v_lshrrev_b32 v%d, 5, v0' % vXs)
            b.I('v_mul_u32_u24 v%d, 81920, v%d' % (vXs, vXs))
            b.I('v_and_b32 v%d, 31, v0' % vRp)
            b.I('v_mad_u32_u24 v%d, v%d, 40, v%d' % (vXs, vRp, vXs))
            b.I('buffer_load_dwordx4 %s, v%d, %s, s3 offen' % (vr(XP, 4), vXs, SA))
            b.I('buffer_load_dwordx4 %s, v%d, %s, s3 offen offset:16' % (vr(XP + 4, 4), vXs, SA))
            b.I('buffer_load_dwordx2 %s, v%d, %s, s3 offen offset:32' % (vr(XP + 8, 2), vXs, SA))
        b.I('s_and_b32 %s, s2, 63' % sRp)
        b.I('v_mov_b32 v%d, v%d' % (vCk + 3, vAr))
        b.I('s_lshl_b32 %s, %s, 7' % (sRp, sRp))
        b.I('s_add_u32 %s, %s, 0x%x' % (sRp, sRp, LB + oFL + 448 * 128))
        b.I('s_mov_b32 %s, 0x%x' % (sAr, LB + oFL + 448 * 128))
        b.I('v_lshlrev_b32 v%d, 7, v0' % vRp)
        b.I('v_mov_b32 v%d, 1' % vAr)
        work = tab1[ntb:] + ([] if O('hoist', 0, 1) else stage_a_tables(T, R0)) + tbr + addr + neg + late + ([] if layer else unpack(range(XP, XP + 10), XE))
        n2 = O('t2', 50, 60)
        a.ext(timed(b.items + work[:n2], qa, 50))
        a.ext(take(qa, 99))
        st(a, 'Y')
        a.I('v_readfirstlane_b32 %s, v%d' % (sCK, vCk))
        st(a, 'Y')
        a.I('s_cmp_lg_u32 %s, 15' % sCK)
        a.I('s_cbranch_scc1 a2a_notlast' + ly)
        a.raw('    buffer_atomic_add v%d, v%d, %s, %s offen sc1' % (vAr, vRp, WS, sAr))
        a.label('a2a_notlast' + ly)
        qa = take1(q, opt('a3', 12))
        n4 = n2 + O('t3', 230, 110)
        rest = timed(work[n2:n4], qa, 64)
    pr = (vCk, vCk + 1, vCk + 2)
    n3 = len(rest) // 3
    for r in range(3):
        a.ext(rest[r * n3:(r + 1) * n3 if r < 2 else 9999])
        a.I('v_mov_b32 v%d, 0' % pr[r])
        a.I('buffer_atomic_add v%d, v%d, %s, %s offen sc0 sc1' % (pr[r], vCk + 3, WS, sRp))
    a.ext(take(qa, 99))
    if q and q[0][-1].tag == 'w':
        assert len(q[0]) == 3
    a.I('s_waitcnt lgkmcnt(0)')
    st(a, 'YW')
    hop(a, layer + 1)
    pt = poll_test(pr, sRp, 4, 'a2a' + ly)
    a.raw('    s_waitcnt vmcnt(2)\n    ' + pt[0].text + '\n    s_nop 1\n    ' + pt[1].text + '\n    ' + pt[2].text)
    a.label('a2a%s_ok' % ly)
    a.label('hop%d_ret' % (layer + 1))
    a.I('s_barrier')
    st(a, 'ABCDPQYZW')
    a.ext(take(gq, 11))
    a.ext(timed(work[n4:], gq, 64, -O('gd', 0, 150)))
    a.ext(take(gq, 20))
    if layer:
        q[:0] = xd
    else:
        q = early + wda_loads()
    late, neg = [], []
    st(a, 'BYZ')
    b = Asm()
    b.items.append(('wait_both', 'g0'))
    b.I('s_barrier')
    st(b, 'YZ')
    b.ext(rds(0)[:12])
    b.ext(weave(mf(0), rds(0)[12:], 0, 2))
    a.ext(timed(b.items, q, O('perB', 40, 60)))
    a.items.append(('wait_both', 'g1'))
    a.I('s_barrier')
    st(a, 'ABYZ')
    b = Asm()
    b.ext(rds(1)[:12])
    if layer and EZ and VAL:
        b.ext(['v_mov_b32 v%d, -1' % (AP + i) for i in range(4)])
        b.ext([Ins('buffer_store_dwordx4 %s, v%d, %s, %s offen sc1' % (vr(AP, 4), vZS[i], WS, sZS), 'zp') for i in range(3)])
    b.ext(neg[:6])
    b.ext(weave(mf(1), rds(1)[12:] + neg[6:], 0, 2))

    def ub(ib):
        d = lambda t: WD + 20 * (ib >> 2) + 4 * t + (ib & 3)
        u = WA + 4 * ib
        return ['v_cvt_pk_bf16_f32 v%d, v%d, v%d' % (u, d(0), d(1)), 'v_cvt_pk_bf16_f32 v%d, v%d, v%d' % (u + 1, d(2), d(3)),
                'v_cvt_pk_bf16_f32 v%d, v%d, 0' % (u + 2, d(4))]
    PQ = [[WD + 4 * ib for ib in range(8)], [TA + 8 * ib for ib in range(8)]]
    mP = ['%s %s, %s, %s, 0' % (M16, vr(PQ[0][ib], 4), vr(TA + 8 * ib, 4), vr(WA + 4 * ib, 4)) for ib in range(8)]
    mQ = ['%s %s, %s, %s, 0' % (M16, vr(PQ[1][ib], 4), vr(TA + 8 * ib + 4, 4), vr(WA + 4 * ib, 4)) for ib in range(8)]

    VT = (WA + 32, WA + 36, WD + 32)
    vcv = lambda pq: ['v_cvt_pk_bf16_f32 v%d, v%d, v%d' % (VT[r] + p, PQ[pq][2 * p] + r, PQ[pq][2 * p + 1] + r) for r in range(3) for p in range(4)]
    vwr = lambda pq: ['ds_write_b128 v%d, %s offset:%d' % (vVW[r], vr(VT[r], 4), pq * 12288 + r * 128) for r in range(3)]
    st(b, 'Z')
    ub03 = ub(0) + ub(1) + ub(2) + ub(3)
    if EGL and VAL:
        gv = ['v_add_f32 v190, v%d, v%d' % (WD, WD + 4)] + ['v_add_f32 v190, v190, v%d' % (WD + 4 * i) for i in range(2, 9)] + ['v_cmp_u_f32 vcc, v190, v%d' % (WD + 36)]
        b.items.append([Ins(x) for x in gv[:4] + ub03[:10] + gv[4:] + ub03[10:] + ['s_cbranch_vccnz g_slow' + ly]] + [('label', 'g_ok' + ly)])
        slow3.append((gv, ub03, rds, mf, vGs, ly, 0))
    else:
        b.ext(ub03)
    b.ext(weave(mP[:4] + mQ[:2], ub(4) + ub(5) + ub(6) + ub(7), 0, 2))
    c0, w0 = vcv(0), vwr(0)
    b.ext([mP[4], mP[5], c0[0], c0[4], mP[6], c0[8], c0[1], mP[7], c0[5], c0[9], mQ[2], mQ[3], c0[2], c0[6], mQ[4], c0[10], mQ[5], c0[3], c0[7],
           mQ[6], w0[0], c0[11], mQ[7], w0[1], w0[2]])
    a.ext(timed(b.items, q, PER))
    assert not any(g is xd[2] or g[-1].tag == 'w' for g in q)
    a.items.append(('wait_both', 'xa'))
    a.I('s_barrier')
    st(a, 'BZ')
    q[:0] = dma(vD0, sW20, 0, 5, 'w') + dma(vD0, sW20, 40960, 5, 'w') + dma(vD0, sW20, 20480, 5, 'w2') + dma(vD0, sW20, 61440, 5, 'w2')

    def mb(pq, pm):
        o = []
        for k in range(4):
            ri, wh = k >> 1, k & 1
            tb = (((0, 8), (16, 0)), ((24, 32), (32, 40)))[pm][pq][ri]
            acc = vr((AP, AM)[pm], 16)
            o.append('%s %s, %s, %s, %s' % (M32, acc, vr(WA + 16 * pq + 4 * k, 4), vr(TB + tb + 4 * wh, 4), acc if (pq or pm or k or not layer) else '0'))
        return o
    vrd = lambda pq: ['ds_read_b128 %s, v%d offset:%d' % (vr(WA + 16 * pq + 4 * k, 4), vVR[k], pq * 12288) for k in range(4)]
    c1, w1_ = vcv(1), vwr(1)
    S, XU = WD, WD + 20

    def stat(es, first):
        o = []
        for e in es:
            if first:
                o.append('v_add_f32 v%d, v%d, v%d' % (S, XE(e), XE(e + 1)))
                o.append('v_mul_f32 v%d, v%d, v%d' % (S + 1, XE(e), XE(e)))
                first = False
            else:
                o.append('v_add_f32 v%d, v%d, v%d' % (S, S, XE(e)))
                o.append('v_fmac_f32 v%d, v%d, v%d' % (S + 1, XE(e), XE(e)))
                o.append('v_add_f32 v%d, v%d, v%d' % (S, S, XE(e + 1)))
            o.append('v_fmac_f32 v%d, v%d, v%d' % (S + 1, XE(e + 1), XE(e + 1)))
        return o
    un = unpack(range(XP, XP + 10), lambda e: XU + e if e < 10 else XE(e))
    radd = ['v_add_f32 v%d, v%d, v%d' % (AP + e, AP + e, XU + e) for e in range(10)]
    a.ext(vrd(0))
    if layer:
        a.I('ds_read_b128 %s, v%d offset:128' % (vr(XP + 4, 4), vA0))
        a.I('ds_read_b64 %s, v%d' % (vr(XP + 8, 2), vA2))
        a.I('ds_read_b128 %s, v%d' % (vr(XP, 4), vA0))
    else:
        un, radd = [], []
    a.ext(take(q, 1))
    a.ext(c1)
    mm = mb(0, 0)
    a.ext([w1_[0], mm[0], w1_[1], mm[1], w1_[2], mm[2]] + take(q, 1) + un[10:15] + [mm[3]] + un[15:])
    mm = mb(0, 1) + mb(1, 0) + mb(1, 1)
    a.I(mm[0])
    a.I('s_waitcnt lgkmcnt(0)')
    a.I('s_barrier')
    st(a, 'Z')
    a.ext(vrd(1) + [mm[1]] + un[:6] + [mm[2]] + un[6:10] + radd[:3] + [mm[3]] + radd[3:])
    late = ['s_lshl_b32 s3, %s, 6' % sW, 'v_add_u32 v1, s3, v0', 'v_lshrrev_b32 v1, 2, v1', 'v_min_u32 v1, 1, v1', 'v_lshlrev_b32 v1, 31, v1',
            'v_lshl_add_u32 v1, v0, 7, v1', 'v_mov_b32 v2, 1']
    li = 0
    for i in range(4, 10):
        a.I(mm[i])
        a.ext(take(q, 1) if (i % 2 == 0 or O('sb', 1, 1)) else [])
        a.ext(late[li:li + 5 + i % 2])
        li += 5 + i % 2
    s0 = stat(range(0, 10, 2), True)
    a.I(mm[10])
    a.ext(take(q, 1) + s0[:5])
    a.I(mm[11])
    b = Asm()
    b.ext(s0[5:])
    st(b, 'BZ')
    b.ext(stat(range(10, 20, 2), False))
    red = []
    for m in ('quad_perm:[1,0,3,2]', 'quad_perm:[2,3,0,1]', 'row_half_mirror', 'row_mirror'):
        for i in range(2):
            red.append('v_add_f32_dpp v%d, v%d, v%d %s row_mask:0xf bank_mask:0xf' % (S + i, S + i, S + i, m))
    b.ext(weave(red, late[li:], 1, 0.5))
    b.I('v_mov_b32 v%d, v%d' % (S + 2, S))
    b.I('v_mov_b32 v%d, v%d' % (S + 3, S + 1))
    b.I('v_permlane16_swap_b32 v%d, v%d' % (S, S + 2))
    b.I('v_permlane16_swap_b32 v%d, v%d' % (S + 1, S + 3))
    b.I('v_add_f32 v%d, v%d, v%d' % (S, S, S + 2))
    b.I('v_add_f32 v%d, v%d, v%d' % (S + 1, S + 1, S + 3))
    ln_coef(b, S, S + 1, S + 2, S + 4, None, LOG2E)
    st(b, 'Z')
    ZP = WA
    pkf = lambda r: 'v_pk_fma_f32 %s, %s, %s, %s op_sel_hi:[1,0,0]' % (vr(r, 2), vr(r, 2), vr(S + 2, 2), vr(S + 4, 2))
    cz = lambda i: 'v_cvt_pk_bf16_f32 v%d, v%d, v%d' % (ZP + i, XE(2 * i), XE(2 * i + 1))
    nst = len(b.items)
    for r in [AP + 2 * i for i in range(5)] + [AM + 10, AM + 8, AM + 6, AM + 4]:
        b.I(pkf(r))
    for i in range(8):
        b.I(cz(i))
    b.I('ds_write_b128 v%d, %s' % (vA0, vr(ZP, 4)))
    b.I('ds_write_b128 v%d, %s offset:128' % (vA0, vr(ZP + 4, 4)))
    b.I(pkf(AM + 2))
    b.I(pkf(AM))
    b.I(cz(8))
    b.I(cz(9))
    b.I('ds_write_b64 v%d, %s' % (vA2, vr(ZP + 8, 2)))
    qa = take1(q, O('nS', 3, 4))
    a.ext(timed(b.items, qa, PER))
    a.I('v_rcp_f32 v%d, v%d' % (S + 1, S + 2))
    a.I('v_mul_f32 v%d, %s, v%d' % (S, fl(1.0 / 640), S))
    a.items.append(('wait_both', 'zp'))
    a.I('s_barrier')
    st(a, 'Z')
    for it in range(3):
        a.I('ds_read_b128 %s, v%d offset:%d' % (vr(WD + 8 + 4 * it, 4), vRB, 1024 * it))
    if EZ == 1:
        a.I('buffer_atomic_add v2, v1, %s, %s offen sc1' % (WS, sZF))
    if opt('stress', 0):
        a.I('s_bitcmp1_b32 s2, 6\ns_cbranch_scc1 .Lst%d\ns_sleep 40' % layer)
        a.label('.Lst%d' % layer)
    a.I('buffer_store_dwordx2 %s, v%d, %s, %s offen sc1' % (vr(S, 2), vRo, WS, sRS), tag='zs')
    for it in range(3):
        a.I('buffer_store_dwordx4 %s, v%d, %s, %s offen sc1' % (vr(WD + 8 + 4 * it, 4), vZS[it], WS, sZS), tag='zs')
    a.I('s_barrier')
    if EZ == 2:
        a.I('buffer_atomic_add v2, v1, %s, %s offen sc1' % (WS, sZF))
    st(a, 'ABZ')
    a.I('s_mul_i32 %s, %s, 9216' % (sW9, sW))
    w1 = [g for g in q if g[-1].tag in ('w', 'w2')]
    rest = [g for g in q if g[-1].tag not in ('w', 'w2')]
    sys.stderr.write('layer %d after KB: w1 left %d, wda left %d\n' % (layer, len(w1), len(rest)))
    return w1, dma(vD0, sW9, L_V, 9, 't3'), rest


def gemms(a, st, layer, qw, q3, q):
    LB = LB0 + layer * LBS
    LN = LB + LBS
    EZ = EZL[layer]
    KEEP = layer == 0 and NRE == 0
    ly = str(layer)
    O = lambda name, d0, d1=None: opt(name + ly, opt(name, d0 if (layer == 0 or d1 is None or not PERS) else d1))
    vLD, vZ, vL8, vC, vSg, vH = (vL16, 1, 2), 3, 4, 5, 6, 7
    vS0, vS1 = 8, 9
    HP, ACC, ET, Z = 16, [24, 40, 56, 72], 88, 96
    WB = 160
    sZ, sZc, sHS, sH6, sW5, sT6, sC2 = sT[0], sT[1], sT[3], sT[4], sT[5], sT[6], sT[7]
    sQ, sZp = sT[2], sT[12]
    b = Asm()
    b.I('v_mov_b32 v%d, 1' % vSg)
    b.I('s_lshl_b32 %s, %s, 2' % (sZ, sG))
    b.I('s_add_u32 %s, %s, %s' % (sZ, sZ, sW))
    b.I('s_lshl_b32 %s, %s, 9' % (sZc, sZ))
    b.I('s_add_u32 %s, %s, 0x%x' % (sZc, sZc, LB + oFL))
    b.I('s_lshr_b32 %s, %s, 2' % (sZp, sMU))
    b.I('s_lshl_b32 %s, %s, 7' % (sZp, sZp))
    b.I('s_add_u32 %s, %s, %s' % (sZp, sZp, sZc))
    b.I('s_lshl_b32 s3, %s, 6' % sW)
    b.I('v_add_u32 v%d, s3, v0' % vH)
    b.I('v_lshrrev_b32 v%d, 2, v%d' % (vH, vH))
    b.I('v_min_u32 v%d, 1, v%d' % (vH, vH))
    b.I('v_lshlrev_b32 v%d, 31, v%d' % (vH, vH))
    b.I('v_lshl_add_u32 v%d, v0, 7, v%d' % (vH, vH))
    b.I('s_mul_i32 %s, %s, 110592' % (sHS, sZ))
    b.I('s_mul_i32 %s, %s, 40960' % (sZ, sZ))
    b.I('s_add_u32 %s, %s, 0x%x' % (sZ, sZ, LB + oZ))
    b.I('v_lshrrev_b32 v%d, 4, v0' % vZ)
    b.I('v_and_b32 v%d, 15, v0' % vL8)
    b.I('v_lshlrev_b32 v%d, 4, v%d' % (vL8, vL8))
    b.I('v_lshl_add_u32 v%d, v%d, 9, v%d' % (vZ, vZ, vL8))
    b.I('v_add_u32 v%d, %s, v%d' % (vZ, sZ, vZ))
    b.I('v_lshlrev_b32 v%d, 3, v0' % vL8)
    b.I('v_add_u32 v%d, 0x10000, v%d' % (vLD[1], vL16))
    b.I('v_add_u32 v%d, 0x20000, v%d' % (vLD[2], vL16))
    b.I('s_add_u32 %s, %s, 0x%x' % (sHS, sHS, LB + oH))
    b.I('s_lshr_b32 s3, %s, 2' % sMU)
    b.I('s_sub_u32 %s, %s, s3' % (sH6, sMU))
    b.I('s_lshl_b32 %s, %s, 10' % (sH6, sH6))
    b.I('s_add_u32 %s, %s, %s' % (sH6, sH6, sHS))
    b.I('s_add_u32 %s, %s, 98304' % (sH6, sH6))
    b.I('s_mul_i32 s3, s3, 24576')
    b.I('s_add_u32 %s, %s, s3' % (sHS, sHS))
    b.I('s_lshl_b32 s3, %s, 11' % sQ)
    b.I('s_add_u32 %s, %s, s3' % (sHS, sHS))
    b.I('s_mul_i32 %s, %s, 5120' % (sW5, sW))
    b.I('s_add_u32 %s, %s, 1' % (sT6, sQ))
    b.I('s_lshr_b32 %s, %s, 2' % (sT6, sT6))
    b.I('s_lshl_b32 %s, %s, 31' % (sT6, sT6))
    b.I('s_mov_b32 %s, %s' % (sC2, fl(LOG2E * LOG2E)))
    set1 = b.items
    b = Asm()
    b.I('s_lshl_b32 %s, %s, 2' % (sHF, sG))
    b.I('s_lshr_b32 s3, %s, 2' % sMU)
    b.I('s_add_u32 %s, %s, s3' % (sHF, sHF))
    b.I('s_lshl_b32 %s, %s, 1' % (sHF, sHF))
    b.I('s_lshr_b32 s3, %s, 1' % sW)
    b.I('s_add_u32 %s, %s, s3' % (sHF, sHF))
    b.I('s_lshl_b32 %s, %s, 7' % (sHF, sHF))
    b.I('s_add_u32 %s, %s, 0x%x' % (sHF, sHF, LB + oFL + 256 * 128))
    b.I('s_lshl_b32 %s, %s, 2' % (sHC, sG))
    b.I('s_add_u32 %s, %s, %s' % (sHC, sHC, sW))
    b.I('s_lshl_b32 %s, %s, 1' % (sHC, sHC))
    b.I('s_add_u32 %s, %s, %s' % (sHC, sHC, sHB))
    b.I('s_lshl_b32 %s, %s, 7' % (sHC, sHC))
    b.I('s_add_u32 %s, %s, 0x%x' % (sHC, sHC, LB + oFL + 256 * 128))
    sHP = sT[13:17]
    b.I('s_lshl_b32 %s, %s, 1' % (sT[17], sG))
    b.I('s_add_u32 %s, %s, %s' % (sT[17], sT[17], sHB))
    b.I('s_mul_i32 %s, %s, %d' % (sT[17], sT[17], 2 * 110592))
    b.I('s_mul_i32 s3, %s, 24576' % sW)
    b.I('s_add_u32 %s, %s, s3' % (sT[17], sT[17]))
    b.I('s_add_u32 %s, %s, 0x%x' % (sT[17], sT[17], LB + oH))
    for p in range(4):
        b.I('s_xor_b32 %s, %s, %d' % (sT[18], sW, 3 - p))
        b.I('s_lshr_b32 s3, %s, 1' % sT[18])
        b.I('s_mul_i32 s3, s3, 110592')
        b.I('s_add_u32 %s, %s, s3' % (sHP[p], sT[17]))
        b.I('s_and_b32 s3, %s, 1' % sT[18])
        b.I('s_lshl_b32 s3, s3, 10')
        b.I('s_add_u32 %s, %s, s3' % (sHP[p], sHP[p]))
    set2 = b.items

    NG = O('ng', 2, 3)
    groups = [[(t, ks, m) for t in range(3) for m in range(2)] for ks in range(5 * NG)]
    for kg in range(NG, 4):
        tm = [(t, m) for t in range(3) for m in range(2)] if kg < 3 else [(t, m) for m in range(2) for t in range(3)]
        groups += [[(t, 5 * kg + i, m) for i in range(5)] for t, m in tm]
    groups += [[(t, 5 * kg + i, m) for i in range(5)] for t in range(3, 7) for m in range(2) for kg in range(4)]
    gstart = [0]
    for gr in groups:
        gstart.append(gstart[-1] + 2 * len(gr))
    DST = [0, 40960, 81920, 20480, 61440, 102400]
    accof = [0, 1, 2, 3, 0, 1, 2]
    wbuf = lambda gi, i: vr(WB + 20 * (gi & 1) + 4 * i, 4, 'a') if i < 5 else vr(ACC[3] + 4 * (gi & 1), 4)

    def grp_reads(n):
        o = []
        for i, (t, ks, m) in enumerate(groups[n]):
            kg = ks // 5
            off = t * 40960 + kg * 10240 if t < 4 else DST[2 * (t - 4) + (kg >> 1)] + (kg & 1) * 10240
            off += m * 5120 + (ks % 5) * 1024
            o.append('ds_read_b128 %s, v%d offset:%d' % (wbuf(n, i), vLD[off >> 16], off & 0xffff))
        return o

    q[:0] = qw + q3
    pr = (vC, vS0, vS1)
    if EZ:
        a.ext(take(q, max(O('nA', 2), len([g for g in q if g[-1].tag == 'w']))))
        st(a, 'Z')
        st(a, 'B')
        su = set1 + set2
        if EZ == 3:
            su.insert(O('hd', 40), Ins('buffer_atomic_add v%d, v%d, %s, %s offen sc1' % (vSg, vH, WS, sZF)))
        cut = [0, O('p1', 44), O('p2', 68), 999]
        for r in range(3):
            a.ext(su[cut[r]:cut[r + 1]])
            a.ext(check_issue(pr[r], sZp))
            a.ext(take(q, O('nC', 1, 1)))
        a.ext(take(q, O('nD', 2, 2)))
    else:
        nA = O('nA', 7)
        qa = take1(q, nA)
        a.ext(take(qa, 4))
        a.ext(timed(set1, qa, 24))
        a.ext(take(qa, 99))
        a.wait_vm('zs')
        st(a, 'Z')
        a.I('s_barrier')
        a.I('buffer_atomic_add v%d, v%d, %s, %s offen sc1' % (vSg, vH, WS, sZF))
        st(a, 'B')
        pr = (vC, vS0, vS1)
        a.ext(take(q, O('nB', 8, 1)))
        dB = O('dB', 16)
        for r in range(3):
            a.ext(set2[r * dB:(r + 1) * dB if r < 2 else 99])
            a.ext(check_issue(pr[r], sZp))
            a.ext(take(q, O('nC', 3, 1)))
        assert not any(g[-1].tag in ('w', 'w2') for g in q)
    sys.stderr.write('into GEMM1: left %d\n' % len(q))
    st(a, 'Z')
    a.wait_vm('w')
    a.I('s_barrier')
    a.ext(grp_reads(0))
    a.ext(poll_test(pr, sZp, 2, 'zf' + ly))
    st(a, 'ACPQZ')
    zq = []
    for ks in range(20):
        for rt in range(2):
            zq.append(([Ins('v_add_u32 v%d, 4096, v%d' % (vZ, vZ))] if (ks and ks % 2 == 0 and rt == 0) else []) +
                      [Ins('buffer_load_dwordx4 %s, v%d, %s, 0 offen offset:%d sc1' % (vr(Z + 8 * ks + 4 * rt, 4), vZ, WS, (ks & 1) * 2048 + rt * 256), 'z%d' % (ks if ks < 5 * NG else ks // 5 * 5))])
    a.ext(take(zq, O('nz', 11)))
    nzv = [0]

    def zval(kss):
        r = [Z + 8 * ks + 4 * rt for ks in kss for rt in range(2)]
        o = ['v_max_u32 v%d, v%d, v%d' % (ET, r[0], r[1])] + ['v_max3_u32 v%d, v%d, v%d, v%d' % (ET, ET, r[i], r[i + 1]) for i in range(2, len(r), 2)]
        nzv[0] += 1
        name = 'zv%s_%d' % (ly, nzv[0])
        slow3.append((name, ly))
        return o + ['v_cmp_eq_u32 vcc, -1, v%d' % ET], [Ins('s_cbranch_vccnz %s_slow' % name), ('label', name + '_ok')]
    if EZ and VAL:
        a.I('buffer_atomic_add v%d, v%d, %s, %s offen offset:8 sc1' % (vSg, vFl, WS, sZF))
        slow3.append(('zrel', ly, sZc, sZ, Z, ET))
        o, br = zval([0])
        a.ext(o)
        a.I('s_waitcnt lgkmcnt(0)')
        a.ext(br)
    a.I('s_waitcnt lgkmcnt(0)')
    w2 = [g for g in q if g[-1].tag == 'w2']
    del q[:len(w2)]
    for i, g in enumerate(w2):
        zq.insert(O('w2a', 2) + i * O('w2s', 2), g)

    prevd = [0]

    def half_dma(h):
        g = dma(vD0, sW5, DST[h], 5, 't%d' % (4 + h // 2))
        d = (8 + h) * 20480 - DST[h]
        pre = [Ins('v_add_u32 v%d, 0x%x, v%d' % (vD0, (d - prevd[0]) & 0xffffffff, vD0))]
        prevd[0] = d
        if h == 4:
            pre.append(Ins('v_add_u32 v%d, %s, v%d' % (vD0, sT6, vD0)))
        g[0] = pre + g[0]
        return g

    def epg(t):
        A = ACC[accof[t]]
        o = []
        for r in range(8):
            o.append('v_exp_f32_e64 v%d, -v%d' % (ET + r, A + r))
            o.append('v_fma_f32 v%d, v%d, %s, %s' % (ET + r, ET + r, sC2, sC2))
        for r in range(8):
            o.append('v_rcp_f32 v%d, v%d' % (ET + r, ET + r))
            o.append('v_mul_f32 v%d, v%d, v%d' % (A + r, A + r, ET + r))
        return o

    def epu(t):
        A = ACC[accof[t]]
        o = []
        for p in range(4):
            for r in (2 * p, 2 * p + 1):
                o.append('v_mul_f32 v%d, v%d, v%d' % (A + 8 + r, A + 8 + r, A + r))
            o.append('v_cvt_pk_bf16_f32 v%d, v%d, v%d' % (HP + 4 * (p >> 1) + 2 * (t & 1) + (p & 1), A + 8 + 2 * p, A + 9 + 2 * p))
        return o

    def hstore(e):
        if e < 3:
            return [Ins('buffer_store_dwordx4 %s, v%d, %s, %s offen offset:%d sc1' % (vr(HP + 4 * rt, 4), vL16, WS, sHS, 1024 * rt), 'hs%d' % e) for rt in range(2)] + \
                   [Ins('s_add_u32 %s, %s, 8192' % (sHS, sHS))]
        return [Ins('buffer_store_dwordx2 %s, v%d, %s, %s offen offset:%d sc1' % (vr(HP + 4 * rt, 2), vS0, WS, sH6, 512 * rt), 'hs3') for rt in range(2)]

    def signal(e):
        return [Ins('v_mov_b32 v%d, 0x%x' % (vSg, 1 << (8 * e) if e < 3 else 1)),
                [('wait_vm', 'hs%d' % e), Ins('buffer_atomic_add v%d, v%d, %s, %s offen offset:%d sc1' % (vSg, vFl, WS, sHF if e < 3 else sZc, 0 if e < 3 else 4))]]

    hs = [[('v', r + 4 * i) for r in (ACC[3], ACC[0], 144, 160) for i in range(4)],
          [('v', r + 4 * i) for r in (ACC[1], 96, 112, 128) for i in range(4)],
          [('a', 4 * i) for i in range(16)],
          [('v', 144 + 4 * i) for i in range(6)]]
    wsl = [('a', 184 + 4 * i) for i in range(4)] + [('a', 64 + 4 * i) for i in range(4)] + [('v', 168), ('v', 172)] + [('v', 96 + 4 * i) for i in range(8)] + [('a', 80 + 4 * i) for i in range(12)]
    if KEEP:
        hs[2] = [(k, r + 4 * i) for k, r in (('v', 144), ('v', 160), ('a', 184), ('v', 96)) for i in range(4)]
        hs[3] = [('v', 144 + 4 * i) for i in range(4)] + [('v', 48), ('v', 52)]
        wsl = [('v', 88)] + [('v', 112 + 4 * i) for i in range(8)] + [('v', 64 + 4 * i) for i in range(3)] + [('v', 160 + 4 * i) for i in range(4)] + \
              [('a', 184 + 4 * i) for i in range(4)] + [('v', 96 + 4 * i) for i in range(4)] + [('a', 160 + 4 * i) for i in range(6)]
    wb2 = [('a', 200 + 4 * i) for i in range(14)] + [('a', 160 + 4 * i) for i in range(6)]
    wd = lambda ps, i, n: ('a', 80 * ps + 20 * i + 4 * n) if ps < 2 else (wb2[5 * i + n] if ps == 2 else wsl[5 * i + n])
    R = lambda s, n=4, o=0: vr(s[1] + o, n, s[0])

    def hload(ps, p):
        o = []
        tag = 'h%d%d' % (ps, p)
        if ps < 3:
            for i in range(4):
                g = []
                if i % 2 == 0:
                    g += [Ins('v_add_u32 v%d, %s, v%d' % (vH, sHP[p], vL16)), Ins('s_add_u32 %s, %s, 4096' % (sHP[p], sHP[p]))]
                g.append(Ins('buffer_load_dwordx4 %s, v%d, %s, 0 offen offset:%d sc1' % (R(hs[ps][4 * p + i]), vH, WS, (i & 1) * 2048), tag))
                o.append(g)
        else:
            for i in range(12):
                g = [Ins('v_add_u32 v%d, 4096, v%d' % (vHs, vHs))] if i in (4, 8) else []
                g.append(Ins('buffer_load_dwordx2 %s, v%d, %s, 0 offen offset:%d sc1' % (R(hs[3][i >> 1], 2, 2 * (i & 1)), vHs, WS, (i % 4) * 1024), 'h3_%d' % (i >> 1)))
                o.append(g)
        return o

    sc = Sched()
    G = 560
    bar = {(110 if NG < 2 else 108): (None if NG < 2 else 'z9'), 230: 't4', 390: 't6', 470: 'sts'}
    if O('b4', 1):
        bar.update({230: 't3', 310: 't4'})
    for gi in range(1, len(groups)):
        n = gstart[gi]
        zw = (n <= 60 * NG or n in (120, 180))
        if zw and EZ and VAL:
            ks = groups[gi][0][1]
            o, br = zval([ks] if ks < 5 * NG else range(ks, ks + 5))
            m = n - 3 - len(o) // 2
            sc.add([('wait_vm', 'z%d' % ks), o[0]], m - 1, m - 1)
            sc.asap(o[1:], m - 1, n - 3)
            sc.add(br, n - 2, n - 2)
            sc.items[-1].dst -= {'vmq'}
        if n in bar:
            sc.add([('wait_both', 'w2' if (n < 120 and w2) else bar[n]), 's_barrier'], n - 1, n - 1)
        elif zw and not (EZ and VAL):
            sc.add([('wait_both', 'z%d' % groups[gi][0][1])], n - 1, n - 1)
        else:
            sc.add('s_waitcnt lgkmcnt(0)', n - 1, n - 1)
        for i, x in enumerate(grp_reads(gi)):
            sc.add(x, gstart[gi - 1], gstart[gi - 1] + 1 + (i * 3) // 4)

    def check(e, n0, n1):
        so = sHC if e < 3 else sC3
        if e == 2 and O('sck', 1):
            name = 'h%d%s' % (e, ly)
            slow.append((None, so, 8 * e + 3 if e < 3 else 4, name))
            sc.add('s_load_dword %s, s[52:53], %s glc' % (sCK, so), n0, n0 + 2)
            sc.add(['s_waitcnt lgkmcnt(0)', 's_bitcmp1_b32 %s, %d' % (sCK, 8 * e + 3 if e < 3 else 4), 's_cbranch_scc0 %s_slow' % name, ('label', name + '_ok')], n1, n1 + 3)
            return n1 + 1
        sc.asap(check_issue(vC, so), n0, n0 + 3)
        ct = check_test(vC, so, 8 * e + 3 if e < 3 else 4, 'h%d%s' % (e, ly))
        sc.add([('wait_vm', 'ck'), ct[0]], n1, n1 + 2)
        sc.add(ct[1], n1 + 2, n1 + 4)
        return n1 + 3
    SUM, TMP, PK, vA0, vA2, vRs, vHs = 24, 44, 64, 8, 9, 16, 17
    vPW, vPR, PO = (3, 10), (11, 22, 23), (0, 5120, 20480)
    sX1, sO, sC3, sRS = sT[0], sT[8], sT[9], sT[10]
    e0, e1, e2, e3 = O('e0', 295), O('e1', 376), O('e2', 497), G + O('e3', 13)
    ze = O('zend', 116) + 4 * len(w2)
    assert ze >= 110
    sc.paced(zq, 0, ze)
    q3l = [g for g in q if g[-1].tag == 't3']
    qd = [g for g in q if g[-1].tag != 't3']
    l1 = q3l + half_dma(0) + half_dma(1) + half_dma(2)
    r1 = O('r1', 42)
    n1 = max(0, (232 - ze) * 10 // r1 - len(l1))
    plan = n1 + O('n3', 14, 12) - (15 - (e0 - 232) * 10 // r1) + O('n4', 2, 2) + O('n5', 5, 4) + (O('n6', 10) if layer == 0 else 0)
    xs = max(0, -(-(len(qd) - plan) // 4))
    sys.stderr.write('extra per window %d\n' % xs)
    sc.paced(l1 + take1(qd, n1 + xs), ze, 232)
    l2 = half_dma(3) + half_dma(4) + half_dma(5)
    sc.paced(take1(l2, (e0 - 232) * 10 // r1), 232, e0)
    sts = dma(vS1, sT[19], 122880, 8, 'sts')
    sts[0] = [Ins('s_mul_i32 %s, %s, 7680' % (sT[19], sW)), Ins('s_mul_i32 s3, %s, 276480' % sJJ), Ins('s_add_u32 s3, s3, 0x%x' % (WDP + 245760 - 122880)),
              Ins('v_add_u32 v%d, s3, v%d' % (vS1, vL16))] + sts[0]
    l3 = l2 + qd
    ct0 = O('ct0', 436)
    n3 = take1(l3, O('n3', 14, 12) + xs)
    if n3:
        sc.paced(n3, e0 + 6, e1)
    sc.paced(sts + take1(l3, O('n4', 2, 2) + xs), O('s0', e1 + 6) if O('b4', 1) else 392, ct0 - O('s1', 8))
    sc.asap(epg(0), 196, 260)
    sc.asap(epg(1), 206, e0 - 6)
    sc.asap(epu(0), 226, e0 - 8)
    sc.asap(epu(1), 236, e0 + 2)
    sc.asap(hstore(0), e0, e0 + 6)
    if layer and opt('ow', 1):
        c = Asm()
        srd(c, 8, 62, XB)
        c.I('s_and_b32 %s, %s, 1' % (sT[18], sW))
        c.I('s_lshl_b32 %s, %s, 1' % (sT[18], sT[18]))
        c.I('s_lshr_b32 %s, %s, 1' % (sT[17], sW))
        c.I('s_add_u32 %s, %s, %s' % (sT[18], sT[18], sT[17]))
        c.I('s_lshl_b32 %s, %s, 3' % (sT[17], sMU))
        c.I('s_add_u32 %s, %s, %s' % (sT[18], sT[18], sT[17]))
        c.I('s_lshl_b32 %s, %s, 4' % (sT[18], sT[18]))
        c.I('s_add_u32 %s, %s, %s' % (sT[18], sT[18], sG))
        c.I('s_mul_i32 %s, %s, 1280' % (sT[18], sT[18]))
        c.I('v_lshrrev_b32 v%d, 5, v0' % vH)
        c.I('v_mul_u32_u24 v%d, %d, v%d' % (vH, 81920 - 512, vH))
        c.I('v_add3_u32 v%d, v%d, v%d, %s' % (vH, vH, vL16, sT[18]))
        c.I('v_bfe_u32 v10, v0, 4, 1')
        c.I('v_lshl_add_u32 v10, v10, 31, v%d' % vH)
        sc.asap(c.items, 130, 190)
        sc.paced(['buffer_store_dwordx4 %s, v%d, %s, 0 offen offset:%d sc1' % (vr(Z, 4), 10 if i == 2 else vH, SA, 512 * i) for i in range(3)], O('own', 316), O('own', 316) + 9)
    sc.asap(epg(2), 240, 340)
    sc.asap(epu(2), e0 + 2, e1 - 8)
    sc.asap(epg(3), 286, e1 - 6)
    sc.asap(epu(3), 326, e1 + 2)
    sc.asap(signal(0), O('sg0', 348), O('sg0', 348) + 3)
    sc.asap(hstore(1), e1, e1 + 6)
    sc.asap(epg(4), 366, 430)
    sc.asap(epu(4), 406, 440)
    n = check(0, O('ck0', 384), ct0)
    sc.asap(signal(1), O('sg1', 434), O('sg1', 434) + 4)
    sSa = sT[19]
    hst = dma(vS1, sSa, 0, 8, 'hst')
    sc.asap([Ins('s_lshr_b32 %s, %s, 1' % (sSa, sW)), Ins('s_mul_i32 %s, %s, 20480' % (sSa, sSa)), Ins('s_mul_i32 s3, %s, 10240' % sW),
              Ins('s_add_u32 %s, %s, s3' % (sSa, sSa)), Ins('s_min_u32 s3, %s, %s' % (sHP[2], sHP[3])), Ins('s_sub_u32 s3, s3, %s' % sSa),
              Ins('v_add_u32 v%d, s3, v%d' % (vS1, vL16)), Ins('s_sub_u32 s3, %s, s3' % sHP[2]), Ins('v_add_u32 v10, s3, v%d' % vL16),
              Ins('s_add_u32 %s, %s, 8192' % (sHP[2], sHP[2])), Ins('s_add_u32 %s, %s, 8192' % (sHP[3], sHP[3]))], ct0, ct0 + 24)
    sc.paced(hload(0, 0) + hload(0, 1) + hst, n, O('h0e', e2 + 4))
    sc.asap(epg(5), 446, 490)
    sc.asap(epu(5), 486, e2 + 2)
    n = check(1, O('ck1', 470), O('ct1', 522))
    sc.asap(hstore(2), e2, e2 + 6)
    if l3:
        sc.paced(take1(l3, O('n5', 5, 4) + xs), e2 + 6, n)
    sc.asap(epg(6), 526, G + 6)
    sc.add('v_add_u32 v%d, %s, v%d' % (vS0, sT6, vL8), 500, 550)
    sc.asap(epu(6), G + 6, e3 + 2)
    sc.asap(signal(2), O('sg2', 558), O('sg2', 558) + 3)
    sc.asap(hstore(3), e3, e3 + 4)
    h1e = G + O('h1e', 40, 52)
    sc.paced(hload(1, 0) + hload(1, 1) + hload(1, 2) + hload(1, 3), n, h1e)
    sc.add([('wait_vm', 'hst')], G - 1, G - 1)
    sc.asap(['ds_read_b128 %s, v10 offset:%d' % (R(hs[0][8 + i]), 2048 * i) for i in range(4)] + ['v_xor_b32 v10, 0x400, v10'] +
            ['ds_read_b128 %s, v10 offset:%d' % (R(hs[0][12 + i]), 2048 * i) for i in range(4)], G + 16, G + 28)
    sc.add('s_waitcnt lgkmcnt(0)', G + 38, G + 38)
    n = check(2, G + O('ck2', 54), G + O('ct2', 94))
    wl = []
    for i in range(54, 60):
        wl.append(([Ins('v_add_u32 v%d, 4096, v%d' % (vWa, vWa))] if i % 4 == 0 else []) +
                  [Ins('buffer_load_dwordx4 %s, v%d, %s, 0 offen offset:%d sc1' % (R(wb2[i - 40]), vWa, WS, (i % 4) * 1024))])
    assert len(l3) <= (14 if layer == 0 else max(0, NRE - 40))
    if layer and NRE < 54:
        wl[0] = [Ins('v_add_u32 v%d, %d, v%d' % (vWa, 4096 * (13 - max(NRE - 1, 0) // 4), vWa))] + wl[0]
    sc.paced(l3 + wl, h1e, G + O('wle', 70))
    sc.asap(signal(3), e3 + O('sg3', 64), e3 + O('sg3', 64) + 4)
    sc.paced(hload(2, 0) + hload(2, 1) + hload(2, 2) + hload(2, 3), max(n, G + 81), G + O('h2e', 154))
    srd_ = []
    for i in range(6):
        for c in range(5):
            off = 122880 + i * 5120 + c * 1024
            srd_.append('ds_read_b128 %s, v%d offset:%d' % (R(wd(3, i, c)), vLD[off >> 16], off & 0xffff))
    if KEEP:
        sc.paced(srd_[:5], G + 142, G + 160)
        sc.paced(srd_[5:9], G + 161, G + 169)
        sc.paced(srd_[9:16], G + 196, G + 218)
        sc.paced(srd_[16:20], G + 221, G + 229, G + 230)
        sc.asap(srd_[20:], G + 241, G + 248)
    else:
        sc.paced(srd_[:18], G + 92, G + 157, G + 158)
        sc.paced(srd_[18:], G + 161, G + 176, G + 178)
    n = check(3, G + O('ck3', 146), G + O('ct3', 190))
    sc.paced(hload(3, 3), n, n + O('h3n', 30))
    b = Asm()
    b.I('s_lshl_b32 %s, %s, 1' % (sC3, sG))
    b.I('s_add_u32 %s, %s, %s' % (sC3, sC3, sHB))
    b.I('s_lshl_b32 %s, %s, 2' % (sC3, sC3))
    b.I('s_add_u32 %s, %s, %s' % (sC3, sC3, sW))
    b.I('s_lshl_b32 %s, %s, 7' % (sRS, sC3))
    b.I('s_add_u32 %s, %s, 0x%x' % (sRS, sRS, LB + oRS))
    b.I('s_lshr_b32 %s, %s, 1' % (sC3, sC3))
    b.I('s_mul_i32 %s, %s, 40960' % (sX1, sC3))
    b.I('s_mul_i32 %s, %s, 110592' % (sO, sC3))
    b.I('s_lshl_b32 %s, %s, 9' % (sC3, sC3))
    b.I('s_add_u32 %s, %s, 0x%x' % (sC3, sC3, LB + oFL + 4))
    b.I('s_and_b32 %s, %s, 1' % (sT[3], sW))
    b.I('s_lshl_b32 %s, %s, 8' % (sT[3], sT[3]))
    b.I('s_add_u32 %s, %s, %s' % (sX1, sX1, sT[3]))
    b.I('s_add_u32 %s, %s, %s' % (sO, sO, sT[3]))
    b.I('s_add_u32 %s, %s, %s' % (sO, sO, sT[3]))
    b.I('s_add_u32 %s, %s, 0x%x' % (sO, sO, LB + oH + 98304))
    b.I('v_add_u32 v%d, %s, v%d' % (vHs, sO, vL8))
    b.I('s_mul_i32 %s, %s, 5120' % (sT[3], sJJ))
    b.I('s_add_u32 %s, %s, %s' % (sX1, sX1, sT[3]))
    b.I('s_add_u32 %s, %s, 0x%x' % (sX1, sX1, LB + oZ))
    b.I('v_and_b32 v%d, 15, v0' % ET)
    b.I('v_lshlrev_b32 v%d, 3, v%d' % (vRs, ET))
    b.I('v_lshrrev_b32 v%d, 5, v0' % (ET + 1))
    b.I('v_mul_u32_u24 v%d, 2560, v%d' % (ET + 1, ET + 1))
    b.I('v_lshl_add_u32 v%d, v%d, 4, v%d' % (ET, ET, ET + 1))
    b.I('v_bfe_u32 v%d, v0, 4, 1' % (ET + 1))
    b.I('v_lshl_add_u32 v%d, v%d, 3, v%d' % (vA2, ET + 1, ET))
    b.I('v_mul_u32_u24 v%d, 1536, v%d' % (ET + 1, ET + 1))
    b.I('v_add_u32 v%d, v%d, v%d' % (vA0, ET, ET + 1))
    for r, x in ((vPW[0], 0), (vPR[0], 3), (vPR[1], 2)):
        b.I('s_xor_b32 %s, %s, %d' % (sT[3], sW, x))
        b.I('s_and_b32 %s, %s, 2' % (sT[18], sT[3]))
        b.I('s_add_u32 %s, %s, %s' % (sT[3], sT[3], sT[18]))
        b.I('s_mul_i32 %s, %s, 10240' % (sT[3], sT[3]))
        b.I('v_add_u32 v%d, %s, v%d' % (r, sT[3], vL16))
    for r, x in ((vPW[1], 0), (vPR[2], 1)):
        b.I('s_xor_b32 %s, %s, %d' % (sT[3], sW, x))
        b.I('s_mul_i32 %s, %s, 5120' % (sT[3], sT[3]))
        b.I('v_add_u32 v%d, %s, v%d' % (r, sT[3], vL16))
    vOW, vOR, vOG = 18, (19, 20, 21), (ET + 3, ET + 4, ET + 5)
    if layer == 1:
        if not opt('ow', 1):
            srd(b, 8, 62, XB)
        row_nat_soff(b, sO, sT[3])
        b.I('s_mul_i32 %s, %s, 160' % (sT[3], sJJ))
        b.I('s_add_u32 %s, %s, %s' % (sO, sO, sT[3]))
        b.I('s_mul_i32 %s, %s, 2816' % (sT[3], sW))
        b.I('s_add_u32 %s, %s, 61440' % (sT[3], sT[3]))
        b.I('v_and_b32 v%d, 15, v0' % ET)
        b.I('v_mul_u32_u24 v%d, 176, v%d' % (vOW, ET))
        b.I('v_lshrrev_b32 v%d, 4, v0' % ET)
        b.I('v_mad_u32_u24 v%d, v%d, 40, v%d' % (vOW, ET, vOW))
        b.I('v_add_u32 v%d, %s, v%d' % (vOW, sT[3], vOW))
        for it in range(3):
            b.I('v_add_u32 v%d, %d, v0' % (ET, 64 * it))
            b.I('v_mul_u32_u24 v%d, 205, v%d' % (ET + 1, ET))
            b.I('v_lshrrev_b32 v%d, 11, v%d' % (ET + 1, ET + 1))
            b.I('v_add_u32 v%d, v%d, v%d' % (ET + 2, ET, ET + 1))
            b.I('v_lshl_add_u32 v%d, v%d, 4, %s' % (vOR[it], ET + 2, sT[3]))
            b.I('v_mul_u32_u24 v%d, %d, v%d' % (ET + 1, 81920 - 160, ET + 1))
            b.I('v_lshl_add_u32 v%d, v%d, 4, v%d' % (vOG[it], ET, ET + 1))
        b.I('v_lshrrev_b32 v%d, 5, v0' % ET)
        b.I('v_lshl_add_u32 v%d, v%d, 31, v%d' % (vOG[2], ET, vOG[2]))
    else:
        sS = sT[11]
        set_wave_index(b, sS)
        b.I('s_mul_i32 %s, %s, 20480' % (sO, sS))
        b.I('s_add_u32 %s, %s, 0x%x' % (sO, sO, LN + oXA))
        b.I('s_lshl_b32 %s, %s, 10' % (sS, sS))
        b.I('s_add_u32 %s, %s, 0x%x' % (sS, sS, LN + oST))
        b.I('s_lshl_b32 %s, %s, 7' % (sT[12], sJJ))
        b.I('s_add_u32 %s, %s, %s' % (sT[12], sT[12], sS))
        b.I('v_lshrrev_b32 v%d, 4, v0' % ET)
        b.I('v_lshl_add_u32 v21, v%d, 8, v%d' % (ET, vRs))
        b.I('v_min_u32 v%d, 1, v%d' % (ET, ET))
        b.I('v_lshl_add_u32 v20, v%d, 31, v%d' % (ET, vL8))
        tile_xr_addr(b, 18, 19, ET, sT[3])
    sc.asap(b.items[:31], e3 + 8, G + 68)
    sc.asap(b.items[31:], G + 40, G + 140)
    if layer == 0:
        at = AT(76, 61440, 139264)
        at.GA, at.T, at.BR = (56, 57, 58), 59, (87, 94, 95)
        b = Asm()
        at.setup(b, '0x%x' % LN, sT[5])
        sc.asap(b.items, G + 60, G + 214)
        if EG and VAL:
            sc.asap(['v_mov_b32 v%d, -1' % (44 + i) for i in range(4)], G + 200, G + 220)
            sc.paced(['buffer_store_dwordx4 v[44:47], v%d, %s, %s offen sc1' % (at.GA[i], WS, sT[5]) for i in range(3)], G + O('gf', 232), G + O('gf', 232) + 6)
    sc.paced([Ins('buffer_load_dwordx2 %s, v%d, %s, %s offen sc1' % (vr(PK + 10, 2), vRs, WS, sRS), 'x1'),
              Ins('buffer_load_dwordx4 %s, v%d, %s, %s offen sc1' % (vr(PK, 4), vA0, WS, sX1), 'x1'),
              Ins('buffer_load_dwordx4 %s, v%d, %s, %s offen offset:512 sc1' % (vr(PK + 4, 4), vA0, WS, sX1), 'x1'),
              Ins('buffer_load_dwordx2 %s, v%d, %s, %s offen offset:1024 sc1' % (vr(PK + 8, 2), vA2, WS, sX1), 'x1')], G + O('wle', 70), G + O('wle', 70) + 12)
    sc.add([('wait_vm', 'x1')], G + 150, G + 150)
    un = unpack(range(PK, PK + 10), lambda i: SUM + i)
    sc.asap([x for i in range(20) for x in (un[i], 'v_fma_f32 v%d, v%d, v%d, v%d' % (SUM + i, SUM + i, PK + 11, PK + 10))], G + 151, G + 195)
    A2 = lambda p: 176 + 20 * p
    for p in range(3):
        for n in range(5):
            m = G + 170 + 20 * p + 4 * n
            sc.add('ds_write_b128 v%d, %s offset:%d' % (vPW[p >> 1], vr(A2(p) + 4 * n, 4), PO[p] + 1024 * n), m, m + 1)
    nb = G + O('rb', 229, 232)
    sc.add(['s_waitcnt lgkmcnt(0)', 's_barrier'], nb, nb)
    rds = lambda p, r: ['ds_read_b128 %s, v%d offset:%d' % (vr(r + 4 * n, 4), vPR[p], PO[p] + n * 1024) for n in range(5)]
    add = lambda r: ['v_pk_add_f32 %s, %s, %s' % (vr(SUM + 2 * i, 2), vr(SUM + 2 * i, 2), vr(r + 2 * i, 2)) for i in range(10)]
    sc.asap(rds(0, A2(0)) + rds(1, A2(1)) + rds(2, A2(2)), nb + 1, nb + 9)
    sc.add('s_waitcnt lgkmcnt(%d)' % (10 if KEEP else 0), nb + 16, nb + 16)
    if KEEP:
        sc.add('s_waitcnt lgkmcnt(0)', G + 258, G + 258)
    sc.asap(['v_add_f32 v%d, v%d, v%d' % (A2(0) + i, A2(0) + i, A2(1) + i) for i in range(20)], nb + 17, 10 ** 6)
    nfin = O('nfin', 20)
    sc.asap(['v_add_f32 v%d, v%d, v%d' % (SUM + i, SUM + i, A2(2) + i) for i in range(nfin)], nb + 17, 10 ** 6 + 1)

    mf = []
    for gi, gr in enumerate(groups):
        for rt in range(2):
            for i, (t, ks, m) in enumerate(gr):
                A = vr(ACC[accof[t]] + 8 * m + 4 * rt, 4)
                mf.append('%s %s, %s, %s, %s' % (M16, A, wbuf(gi, i), vr(Z + 8 * ks + 4 * rt, 4), A if ks else '0'))
    for ps, p in [(ps, p) for ps in range(3) for p in range(4)]:
        if (ps, p) not in ((0, 0), (0, 2), (0, 3)):
            sc.add([('wait_vm', 'h%d%d' % (ps, p))], len(mf) - 1, len(mf) - 1)
        for c in range(5):
            for i in range(4):
                A = vr(A2(p) + 4 * c, 4)
                mf.append('%s %s, %s, %s, %s' % (M16, A, R(wd(ps, i, c)), R(hs[ps][4 * p + i]), A if (ps or i) else '0'))
    for i0 in range(0, 6, 2):
        sc.add([('wait_vm', 'h3_%d' % (i0 + 1))], len(mf) - 1, len(mf) - 1)
        for c in range(5):
            for i in (i0, i0 + 1):
                A = vr(A2(3) + 4 * c, 4)
                mf.append('%s %s, %s, %s, %s' % (M16, A, R(wd(3, i, c)), R(hs[3][i]), A))

    def hook(n):
        if n in range(opt('p0', 0), opt('p0', 0) + 15 * opt('dp', 10), opt('dp', 10)):
            st(a, 'X')
        for s, pts in (('Z', (0,)), ('A', (0, 559)), ('C', (0, 240, 400, 559)), ('D', (559, 639, 719, 799)), ('E', (0, 60, 120, 180, 240, 320, 400)), ('F', (400, 480, 559, 639, 719, 799))):
            if n in pts:
                st(a, s)
    r = sc.run(a, mf, hook)
    sys.stderr.write('sched overflow slots %d, left %d\n' % r)
    if STAMP == 'Y':
        st.on = layer == 0
    st(a, 'ACDFPY')
    a.ext(add(A2(2))[nfin // 2:] + add(A2(0)) + add(A2(3)))
    if layer == 1:
        for nn in range(5):
            a.I('v_cvt_pk_bf16_f32 v%d, v%d, v%d' % (PK + 2 * nn, SUM + 4 * nn, SUM + 4 * nn + 1))
            a.I('v_cvt_pk_bf16_f32 v%d, v%d, v%d' % (PK + 2 * nn + 1, SUM + 4 * nn + 2, SUM + 4 * nn + 3))
            a.I('ds_write_b64 v%d, %s offset:%d' % (vOW, vr(PK + 2 * nn, 2), 8 * nn))
        for it in range(3):
            a.I('ds_read_b128 %s, v%d' % (vr(TMP + 4 * it, 4), vOR[it]))
        for it in range(3):
            a.I('buffer_store_dwordx4 %s, v%d, %s, %s offen%s' % (vr(TMP + 4 * it, 4), vOG[it], SA, sO, ' sc1' if opt('osc', 1) else ''))
        return None

    T = 96
    a.I('v_pk_add_f32 %s, %s, %s' % (vr(T, 2), vr(SUM, 2), vr(SUM + 2, 2)))
    a.I('v_pk_mul_f32 %s, %s, %s' % (vr(T + 2, 2), vr(SUM, 2), vr(SUM, 2)))
    a.I('v_pk_fma_f32 %s, %s, %s, %s' % (vr(T + 2, 2), vr(SUM + 2, 2), vr(SUM + 2, 2), vr(T + 2, 2)))
    for e in range(4, 20, 2):
        a.I('v_pk_add_f32 %s, %s, %s' % (vr(T, 2), vr(T, 2), vr(SUM + e, 2)))
        a.I('v_pk_fma_f32 %s, %s, %s, %s' % (vr(T + 2, 2), vr(SUM + e, 2), vr(SUM + e, 2), vr(T + 2, 2)))
    a.I('v_add_f32 v%d, v%d, v%d' % (T, T, T + 1))
    a.I('v_add_f32 v%d, v%d, v%d' % (T + 1, T + 2, T + 3))
    pk = ['v_cvt_pk_bf16_f32 v%d, v%d, v%d' % (PK + i, SUM + 2 * i, SUM + 2 * i + 1) for i in range(10)]
    qr = lst(quad_reduce, T, T + 1, T + 2)
    a.ext(qr[:2] + pk[:1] + qr[2:8] + pk[1:2] + qr[8:])
    a.I('v_min_u32 v%d, -2, v%d' % (T, T))
    a.I('v_min_u32 v%d, -2, v%d' % (T + 1, T + 1))
    a.I('buffer_store_dwordx2 %s, v20, %s, %s offen sc1' % (vr(T, 2), WS, sT[12]), tag='ss')
    st(a, 'Y')
    stream_bases(a)
    q = wda_loads(NRE)
    a.ext(take(q, opt('b1', 2)))
    a.ext(pk[2:])
    ta = stage_a_tables(44, 236) if opt('hoist1', opt('hoist', 1)) else []
    nta = opt('nta', 200)
    a.ext(ta[:nta])
    st(a, 'Y')
    if opt('wss', 1):
        a.wait_vm('ss')
    st(a, 'DY')
    pl = ['buffer_load_dwordx2 %s, v21, %s, %s offen sc1' % (vr(T, 2), WS, sS), 'buffer_load_dwordx2 %s, v21, %s, %s offen offset:128 sc1' % (vr(T + 2, 2), WS, sS)]
    tst = ['v_max3_u32 v%d, v%d, v%d, v%d' % (T + 5, T, T + 1, T + 2), 'v_max_u32 v%d, v%d, v%d' % (T + 5, T + 5, T + 3), 'v_cmp_eq_u32 vcc, -1, v%d' % (T + 5), 's_nop 4']
    a.ext(pl)
    xa_store(a, PK, 18, 19, sO, T + 8, 'xs')
    a.ext(take(q, opt('b2', 4)))
    a.ext(ta[nta:])
    if EG:
        vCk = 242
        a2a_setup(a, LN)
    a.ext(tst)
    a.I('s_cbranch_vccnz st_slow')
    a.label('st_ok')
    st(a, 'Y')
    slow2.append((pl, tst))
    b = Asm()
    b.I('v_pk_add_f32 %s, %s, %s' % (vr(T, 2), vr(T, 2), vr(T + 2, 2)))
    quad_reduce(b, T, T + 1, T + 2)
    at.main(b, SUM, T, T + 1, 176, sT[5], 'gs')
    if EG:
        k = [i for i, x in enumerate(b.items) if x.op == 's_barrier'][0]
        c1, c2 = Asm(), Asm()
        st(c1, 'Y')
        st(c2, 'Y')
        b.items[k - 1:k + 1] = [c1.items + [('wait_both', 'xs'), b.items[k]] + c2.items]
        b.items.insert(k + opt('ard', 0), Ins('buffer_atomic_add v%d, v%d, %s, %s offen sc0 sc1' % (vCk, vCk + 3, WS, sT[14])))
    if opt('stress', 0):
        b.items[-3:-3] = [[Ins('s_cmp_eq_u32 %s, 0' % sW), Ins('s_cbranch_scc1 .Lstg'), Ins('s_bitcmp1_b32 s2, 5'), Ins('s_cbranch_scc1 .Lstg'), Ins('s_sleep 60'), ('label', '.Lstg')]]
    qa = take1(q, opt('b3', 2))
    a.ext(timed(b.items, qa, 100))
    st(a, 'Y')
    return q


slow2 = []


def take1(q, n):
    r = q[:n]
    del q[:n]
    return r


def emit_slow2(a):
    for pl, tst in slow2:
        a.label('st_slow')
        a.reset()
        a.I('s_mov_b32 %s, 0' % sSP)
        a.label('st_spin')
        if STAMP:
            a.I('s_add_u32 s97, s97, 0x%x' % (1 << 30))
        a.ext(pl)
        a.I('s_add_u32 %s, %s, 1' % (sSP, sSP))
        a.I('s_cmp_ge_u32 %s, %d' % (sSP, SPIN))
        a.I('s_waitcnt vmcnt(0)')
        a.I('s_cbranch_scc1 st_ok')
        a.ext(tst)
        a.I('s_cbranch_vccnz st_spin')
        a.I('s_branch st_ok')


def a2a_setup(a, LN):
    vAr, vRp, vCk, sAr, sRp = 240, 241, 242, sT[12], sT[13]
    a.I('s_lshl_b32 %s, %s, 7' % (sT[14], sG))
    a.I('s_add_u32 %s, %s, 0x%x' % (sT[14], sT[14], LN + oFL + 384 * 128))
    a.I('s_min_u32 s3, %s, 1' % sW)
    a.I('s_lshl_b32 s3, s3, 31')
    a.I('v_or_b32 v%d, s3, v%d' % (vCk + 3, vFl))
    a.I('v_mov_b32 v%d, 1' % vCk)
    a.I('s_and_b32 %s, s2, 63' % sRp)
    a.I('s_lshl_b32 %s, %s, 7' % (sRp, sRp))
    a.I('s_add_u32 %s, %s, 0x%x' % (sRp, sRp, LN + oFL + 448 * 128))
    a.I('s_mov_b32 %s, 0x%x' % (sAr, LN + oFL + 448 * 128))
    a.I('v_lshlrev_b32 v%d, 7, v0' % vRp)
    a.I('v_mov_b32 v%d, 1' % vAr)


def emit_slow3(a):
    for e in slow3:
        a.reset()
        if len(e) == 2:
            a.label(e[0] + '_slow')
            a.raw('    s_call_b64 s[98:99], zrel' + e[1])
            a.I('s_branch %s_ok' % e[0])
        elif e[0] == 'zrel':
            _, ly, sZc, sZ, Z, ET = e
            a.label('zrel' + ly)
            if STAMP:
                a.I('s_or_b32 s96, s96, 0x%x' % (1 << 30))
            a.I('s_mov_b32 %s, 0' % sSP)
            a.label('zrel_spin' + ly)
            a.I('v_mov_b32 v%d, 0' % ET)
            a.I('buffer_atomic_add v%d, v%d, %s, %s offen offset:8 sc0 sc1' % (ET, vFl, WS, sZc))
            a.I('s_add_u32 %s, %s, 1' % (sSP, sSP))
            a.I('s_waitcnt vmcnt(0)')
            a.I('v_readfirstlane_b32 %s, v%d' % (sCK, ET))
            a.I('s_bitcmp1_b32 %s, 4' % sCK)
            a.I('s_cbranch_scc1 zrel_go' + ly)
            a.I('s_cmp_lt_u32 %s, %d' % (sSP, SPIN))
            a.I('s_cbranch_scc1 zrel_spin' + ly)
            a.label('zrel_go' + ly)
            a.I('v_lshrrev_b32 v%d, 4, v0' % ET)
            a.I('v_and_b32 v%d, 15, v0' % (ET + 1))
            a.I('v_lshlrev_b32 v%d, 4, v%d' % (ET + 1, ET + 1))
            a.I('v_lshl_add_u32 v%d, v%d, 9, v%d' % (ET, ET, ET + 1))
            a.I('v_add_u32 v%d, %s, v%d' % (ET, sZ, ET))
            for ks in range(20):
                if ks and ks % 2 == 0:
                    a.I('v_add_u32 v%d, 4096, v%d' % (ET, ET))
                for rt in range(2):
                    a.I('buffer_load_dwordx4 %s, v%d, %s, 0 offen offset:%d sc1' % (vr(Z + 8 * ks + 4 * rt, 4), ET, WS, (ks & 1) * 2048 + rt * 256))
            a.I('s_waitcnt vmcnt(0)')
            a.I('s_setpc_b64 s[98:99]')
        else:
            gv, ub03, rds, mf, vGs, ly, _ = e
            a.label('g_slow' + ly)
            a.I('s_mov_b32 %s, 0' % sSP)
            a.I('s_mov_b32 s98, m0')
            a.label('g_spin' + ly)
            if STAMP:
                a.I('s_or_b32 s96, s96, 0x%x' % (1 << 31))
            a.I('s_mov_b32 m0, 0')
            a.label('g_copy' + ly)
            a.I('v_add_u32 v190, m0, v%d' % vGs)
            for i in range(4):
                a.I('buffer_load_dwordx4 v190, %s, 0 offen offset:%d sc1 lds' % (WS, 1024 * i))
            a.I('s_add_u32 m0, m0, 4096')
            a.I('s_cmp_lt_u32 m0, 81920')
            a.I('s_cbranch_scc1 g_copy' + ly)
            a.I('s_waitcnt vmcnt(0)')
            for ks in range(2):
                a.ext(rds(ks))
                a.ext(mf(ks))
                a.I('s_nop 7')
            a.ext(gv)
            a.I('s_add_u32 %s, %s, 1' % (sSP, sSP))
            a.I('s_cmp_ge_u32 %s, %d' % (sSP, 2000))
            a.I('s_cbranch_scc1 g_done' + ly)
            a.I('s_nop 2')
            a.I('s_cbranch_vccnz g_spin' + ly)
            a.label('g_done' + ly)
            a.ext(ub03)
            a.I('s_mov_b32 m0, s98')
            a.I('s_nop 1')
            a.I('s_branch g_ok' + ly)


def hop(a, s):
    for w in range(1, 4):
        a.I('s_cmp_eq_u32 %s, %d' % (sW, w))
        a.I('s_cbranch_scc1 hop%d_%d' % (s, w))


def add_pads(txt):
    import subprocess, re, tempfile
    d = tempfile.mkdtemp()
    tmp = txt.replace('ffn_body:', 'ffn_body:\n' + ''.join('hop%d_%d:\n' % (s, w) for s in range(3) for w in range(1, 4)))
    sys.path.insert(0, 'cdna_kernels')
    import cdna_launch
    open(d + '/a.s', 'w').write(cdna_launch.with_harness_metadata(tmp, KNAME, 12, launch_lists=True))
    subprocess.check_call(['clang', '-x', 'assembler', '-target', 'amdgcn-amd-amdhsa', '-mcpu=gfx950', '-c', d + '/a.s', '-o', d + '/a.o'])
    dis = subprocess.check_output(['llvm-objdump', '-d', '--mcpu=gfx950', d + '/a.o'], text=True)
    sym = subprocess.check_output(['llvm-objdump', '-t', d + '/a.o'], text=True)
    base = int(re.search(r'^([0-9a-f]+) .* ffn_body$', sym, re.M).group(1), 16)
    addrs = [x for x in (int(m, 16) for m in re.findall(r'// ?([0-9A-F]{12}):', dis)) if x >= base]
    lines = txt.split('\n')
    i0 = lines.index('ffn_body:')
    i1 = lines.index('ffn_end:')
    idx = [i for i in range(i0 + 1, i1 + 2) if lines[i].startswith('    ')]
    assert len(idx) == len(addrs), (len(idx), len(addrs))
    base &= ~4095
    pads, page = [], 1
    while True:
        cand = [j for j in range(len(idx)) if page * 4096 <= addrs[j] - base + 8 * len(pads) <= page * 4096 + 52]
        if not cand:
            break
        good = [j for j in cand if 'v_mfma' in lines[idx[j - 1]] and 'v_mfma' in lines[idx[j]]] or \
               [j for j in cand if 'v_mfma' in lines[idx[j - 1]] and not lines[idx[j]].startswith('    s_')] or cand
        pads.append(idx[good[0]])
        page += 1
    rets = [lines.index('hop%d_ret:' % s) for s in range(3)] + [10 ** 9]
    ins = {}
    for s in range(3):
        mine = [p for p in pads if (rets[s] if s else 0) < p < rets[s + 1]]
        for w in range(1, 4):
            ch = mine[w - 1::3] if opt('hop', 1) else []
            for k, p in enumerate(ch):
                ins[p] = ['    s_branch .Lps%d' % p] + (['hop%d_%d:' % (s, w)] if k == 0 else []) + \
                         ['.Lpd%d:' % p, '    s_branch ' + ('.Lpd%d' % ch[k + 1] if k + 1 < len(ch) else 'hop%d_ret' % s), '.Lps%d:' % p]
            if not ch:
                ins.setdefault(rets[s], []).append('hop%d_%d:' % (s, w))
        sys.stderr.write('pad set %d: %d\n' % (s, len(mine)))
    out = []
    for i, l in enumerate(lines):
        out += ins.get(i, [])
        out.append(l)
    return '\n'.join(out)


def verify(txt):
    from collections import Counter
    ver, cnt = {}, {}
    for k, l in enumerate(txt[txt.index('ffn_body:'):txt.index('_slow:')].split('\n')):
        if not l.startswith('    '):
            continue
        x = Ins(l.strip())
        if x.kind == 'mfma':
            for o in x.ops[1:3]:
                vs = {ver.get(r) for r in asmlib.regs_of(o)}
                for v in vs:
                    if v is not None:
                        cnt[v] += 1
        for r in x.dst:
            if x.kind in ('vmem', 'ds'):
                ver[r] = (k, x.op + (' sc1' if 'sc1' in l else ''))
                cnt.setdefault(ver[r], 0)
            else:
                ver[r] = None
    h = Counter((v[1], c) for v, c in cnt.items())
    exp = {('buffer_load_dwordx4 sc1', 14): 80, ('buffer_load_dwordx4 sc1', 4): 120 - 2 * (54 - NRE), ('buffer_load_dwordx4 sc1', 8): 54 - NRE, ('buffer_load_dwordx2 sc1', 5): 24}
    for e, n in exp.items():
        assert h[e] == n, (e, h)
    assert h[('buffer_load_dwordx4 sc1', 5)] + h[('ds_read_b128', 5)] == 96, h
    assert h[('ds_read_b128', 1)] >= 60 and h[('ds_read_b128', 2)] >= 560, h
    return txt


def main():
    from phase0h import phase0
    a = Asm()
    if opt('list', 1):
        head = '; @launch kernel=%s grid=(256,1,1) block=(256,1,1) lds=163840\n' % KNAME
    else:
        head = '; @launch grid=(256,1,1) block=(256,1,1) lds=163840\n'
    head += '.amdgcn_target "amdgcn-amd-amdhsa--gfx950"\n.text\n'
    st = Stamps()
    phase0(a, st, KNAME, hop, timed, take, stage_a_tables, a2a_setup if EG0 else None)
    q = []
    for layer in range(2):
        st.on = STAMP == 'P' or opt('stl', 1 if STAMP == 'Y' else 0) == layer
        qw, q3, q = kb(a, st, layer, q)
        q = gemms(a, st, layer, qw, q3, q)
    st.flush(a)
    a.I('s_endpgm')
    emit_slow(a)
    emit_slow2(a)
    emit_polls(a)
    emit_slow3(a)
    a.label('rdy_slow')
    a.reset()
    a.I('s_mov_b32 %s, 0' % sSP)
    a.label('rdy_spin')
    a.I('s_sleep 8')
    a.I('v_mov_b32 v246, 0')
    a.I('global_load_dword v247, v246, %s sc1' % sDBG)
    a.I('s_add_u32 %s, %s, 1' % (sSP, sSP))
    a.I('v_readfirstlane_b32 %s, v247' % sT[19])
    a.I('s_cmp_ge_u32 %s, 16' % sT[19])
    a.I('s_cbranch_scc1 rdy_ok')
    a.I('s_cmp_lt_u32 %s, %d' % (sSP, SPIN))
    a.I('s_cbranch_scc1 rdy_spin')
    a.I('s_branch rdy_ok')
    a.label('ffn_end')
    a.I('s_endpgm')
    tail = '.section .rodata,"a"\n.p2align 6\n' + kdesc(KNAME, 512, 256)
    sys.stdout.write(add_pads(verify(head + a.finalize() + tail)))


if __name__ == '__main__':
    main()
```

```python
import sys
s = open(sys.argv[1]).read(); j, mode = int(sys.argv[2]), sys.argv[3]
body = ''
for i in range(16):
    body += '    global_load_dword v%d, v1, s[8:9] offset:0\n    global_load_dword v%d, v1, s[8:9] offset:%d\n    v_add_u32 v1, 0x2000, v1\n' % (8 + i, 24 + i, 8 * max(j, 0))
body += '    s_waitcnt vmcnt(0)\n    v_readfirstlane_b32 s10, v8\n    s_nop 4\n    s_sub_u32 s10, s10, 1000\n'
for i in range(16):
    body += '    v_subrev_u32 v%d, s10, v%d\n    v_subrev_u32 v%d, s10, v%d\n' % (8 + i, 8 + i, 24 + i, 24 + i)
op = 'v_max_u32' if mode == 'max' else 'v_add_u32'
for i in range(1, 16):
    body += '    v_min_u32 v8, v8, v%d\n    %s v24, v24, v%d\n' % (8 + i, op, 24 + i)
body += '    s_nop 4\n    s_mov_b32 s12, -1\n    s_mov_b32 s13, 0\n'
for l in range(64):
    body += '    v_readlane_b32 s14, v8, %d\n    v_readlane_b32 s15, v24, %d\n    s_nop 2\n    s_min_u32 s12, s12, s14\n    %s s13, s13, s15\n' % (l, l, 's_max_u32' if mode == 'max' else 's_add_u32')
if mode != 'max':
    body += '    s_lshr_b32 s13, s13, 10\n'
body += '    s_sub_u32 s30, s13, s12\n' if j >= 0 else '    s_mov_b32 s30, 0\n'
probe = '''.globl probe_kernel
.p2align 8
.type probe_kernel,@function
probe_kernel:
    s_cmp_lg_u32 s2, 0
    s_cbranch_scc1 .Lpe
    s_load_dwordx2 s[8:9], s[0:1], 88
    s_memrealtime s[4:5]
    v_lshlrev_b32 v1, 7, v0
    s_waitcnt lgkmcnt(0)
    s_add_u32 s8, s8, 0x4080000
    s_addc_u32 s9, s9, 0
%s    s_add_u32 s30, s30, 150
    s_min_u32 s30, s30, 10000
    s_lshl_b32 s30, s30, 2
.Lsp:
    s_memrealtime s[6:7]
    s_waitcnt lgkmcnt(0)
    s_sub_u32 s31, s6, s4
    s_cmp_lt_u32 s31, s30
    s_cbranch_scc1 .Lsp
.Lpe:
    s_endpgm
.section .rodata,"a"
.p2align 6
.amdhsa_kernel probe_kernel
  .amdhsa_next_free_vgpr 48
  .amdhsa_next_free_sgpr 40
  .amdhsa_accum_offset 48
  .amdhsa_group_segment_fixed_size 0
  .amdhsa_kernarg_size 96
  .amdhsa_user_sgpr_count 2
  .amdhsa_user_sgpr_kernarg_segment_ptr 1
  .amdhsa_system_sgpr_workgroup_id_x 1
.end_amdhsa_kernel
''' % body
s = s.replace('.section .rodata,"a"\n', probe, 1)
k = s.index('.amdgcn_target')
s = s[:k] + '; @launch kernel=probe_kernel grid=(1,1,1) block=(64,1,1) lds=0\n' + s[k:]
sys.stdout.write(s)
```
